```python
import torch

def _softmax(x, axis=-1):
    return torch.softmax(x, dim=axis)
def _gelu(x):
    return torch.nn.functional.gelu(x, approximate="tanh")
def _silu(x):
    return torch.nn.functional.silu(x)
def _sigmoid(x):
    return torch.sigmoid(x)
def _layernorm(x, axis=-1, eps=1e-5):
    m = x.mean(dim=axis, keepdim=True)
    v = x.var(dim=axis, keepdim=True, unbiased=False)
    return (x - m) / torch.sqrt(v + eps)
def _scatter_add(tgt, idx, src, axis=0):
    return tgt.clone().index_add_(axis, idx, src)
def _segment_sum(src, seg, n):
    out = torch.zeros((n,) + src.shape[1:], dtype=src.dtype)
    return out.index_add_(0, seg, src)
def _pad(x, pw):
    flat = tuple(v for pair in reversed(pw) for v in pair)
    return torch.nn.functional.pad(x, flat)

kernel_name = 'gated_mix__softmax_full_mha__ssm_conv_h3__prompt'

def setup_inputs():

    _w = (lambda a: (lambda t: t.to(torch.bfloat16) if t.is_floating_point() else t)(torch.as_tensor(a)))
    def _A_setup():
        B, S, D = 1, 2048, 640
        return {
            "x": _w((lambda *s: torch.randn(*s, dtype=torch.bfloat16) * 0.05)(B, S, D)),
            "wqkv": _w((lambda *s: torch.randn(*s, dtype=torch.bfloat16) * 0.8)(D, 3 * D)),
            "wo": _w((lambda *s: torch.randn(*s, dtype=torch.bfloat16) * 0.05)(D, D)),
        }
    _A_in = _A_setup()

    def _B_setup():
        B, S, D = 1, 2048, 640
        ks = 4
        return {
            "q": _w((lambda *s: torch.randn(*s, dtype=torch.bfloat16) * 0.05)(B, S, D)),
            "k": _w((lambda *s: torch.randn(*s, dtype=torch.bfloat16) * 0.8)(B, S, D)),
            "v": _w((lambda *s: torch.randn(*s, dtype=torch.bfloat16) * 0.4)(B, S, D)),
            "shift_k": _w((lambda *s: torch.randn(*s, dtype=torch.bfloat16) * 0.8)(D, ks) * 0.5),
            "ssm_k": _w((lambda *s: torch.randn(*s, dtype=torch.bfloat16) * 0.8)(D, S) * (1.0 / S ** 0.5)),
            "ssm_D": _w((lambda *s: torch.randn(*s, dtype=torch.bfloat16) * 0.4)(D)),
        }
    _B_in = _B_setup()

    return {
        "A_x": _A_in["x"],
        "A_wqkv": _A_in["wqkv"],
        "A_wo": _A_in["wo"],
        "B_q": _B_in["q"],
        "B_k": _B_in["k"],
        "B_v": _B_in["v"],
        "B_shift_k": _B_in["shift_k"],
        "B_ssm_k": _B_in["ssm_k"],
        "B_ssm_D": _B_in["ssm_D"],
        "gate_w": _w((lambda *s: torch.randn(*s, dtype=torch.bfloat16) * 0.05)(640) * 16.0),
    }

def reference(A_x, A_wqkv, A_wo, B_q, B_k, B_v, B_shift_k, B_ssm_k, B_ssm_D, gate_w):
    def _A_ref(x, wqkv, wo):
        B, S, D = x.shape
        H = 32; Dh = D // H
        qkv = (lambda x, *d: x.permute(*d))((x @ wqkv).reshape(B, S, 3, H, Dh), 2, 0, 3, 1, 4)
        q, k, v = qkv[0], qkv[1], qkv[2]
        scale = Dh ** -0.5
        scores = torch.einsum("bhqd,bhkd->bhqk", q, k) * scale
        p = _softmax(scores, axis=-1)
        o = torch.einsum("bhqk,bhkd->bhqd", p, v)
        return (lambda x, *d: x.permute(*d))(o, 0, 2, 1, 3).reshape(B, S, D) @ wo

    def _B_ref(q, k, v, shift_k, ssm_k, ssm_D):
        B, S, D = q.shape
        ks = shift_k.shape[-1]
        k_pad = _pad(k, ((0, 0), (ks - 1, 0), (0, 0)))
        k_shift = torch.zeros_like(k)
        for t in range(ks):
            k_shift = k_shift + k_pad[:, t:t + S, :] * shift_k[:, ks - 1 - t][None, None, :]
        kv = k_shift * v
        L = 2 * S
        kv_pad = _pad(kv, ((0, 0), (0, S), (0, 0)))
        kf_pad = _pad(ssm_k, ((0, 0), (0, S)))
        kv_f = (lambda x, axes=(-2,-1): torch.fft.rfft2(x.float(), dim=axes))(kv_pad[:, None, :, :], axes=(1, 2))
        kf_f = (lambda x, axes=(-2,-1): torch.fft.rfft2(x.float(), dim=axes))(kf_pad[:, None, :], axes=(1, 2))
        kf_f = (lambda x, *d: x.permute(*d))(kf_f, 1, 2, 0)
        y_f = kv_f * kf_f[None, :, :, :]
        y = (lambda x, s, axes=(-2,-1): torch.fft.irfft2(x, s=s, dim=axes).to(torch.bfloat16))(y_f, (1, L), axes=(1, 2))[:, 0, :S, :]
        y = y + kv * ssm_D[None, None, :]
        return q * y

    x = A_x
    g = _sigmoid((x * gate_w).sum(-1, keepdims=True))
    a = _A_ref(x, A_wqkv, A_wo)
    b = _B_ref(x, B_k, B_v, B_shift_k, B_ssm_k, B_ssm_D)
    return g * a + (1 - g) * b
```

```python
import struct, sys, math

NAME = "gated_mix__softmax_full_mha__ssm_conv_h3__prompt"

WS_Q = 0x0
WS_KV = 0x300000
WS_U = 0x900000
WS_Z = 0xC00000
WS_O = 0xF00000
WS_G = 0x1200000
WS_SIZE = 0x1300000

XBYTES = 2048 * 640 * 2
WQKV_BYTES = 640 * 1920 * 2
WO_BYTES = 640 * 640 * 2
OOB = 0x7F000000


def f32hex(x):
    return "0x%08x" % struct.unpack("<I", struct.pack("<f", x))[0]


class Asm:
    def __init__(self):
        self.L = []

    def __call__(self, s):
        self.L.append("    " + s)

    def label(self, s):
        self.L.append(s + ":")

    def c(self, s):
        self.L.append("    ; " + s)

    def raw(self, s):
        self.L.append(s)

    def text(self):
        return "\n".join(self.L) + "\n"


def vr(a, n=1):
    return f"v{a}" if n == 1 else f"v[{a}:{a + n - 1}]"


def sr(a, n=1):
    return f"s{a}" if n == 1 else f"s[{a}:{a + n - 1}]"


def srd(a, d, base, nbytes):
    a(f"s_mov_b32 s{d}, s{base}")
    a(f"s_and_b32 s{d + 1}, s{base + 1}, 0xffff")
    a(f"s_mov_b32 s{d + 2}, 0x{nbytes:x}")
    a(f"s_mov_b32 s{d + 3}, 0x00020000")


def kernel_head(a, name):
    a.raw(f".globl {name}")
    a.raw(".p2align 8")
    a.raw(f".type {name},@function")
    a.label(name)


def kernel_desc(name, vgpr, sgpr=102):
    acc = ((vgpr + 3) // 4) * 4
    return f""".amdhsa_kernel {name}
  .amdhsa_next_free_vgpr {vgpr}
  .amdhsa_next_free_sgpr {sgpr}
  .amdhsa_accum_offset {acc}
  .amdhsa_group_segment_fixed_size 0
  .amdhsa_kernarg_size 104
  .amdhsa_user_sgpr_count 2
  .amdhsa_user_sgpr_kernarg_segment_ptr 1
  .amdhsa_system_sgpr_workgroup_id_x 1
.end_amdhsa_kernel
"""


K1_STAGE = 36864
K1_LDS = 4 * K1_STAGE


def gen_k1(a):
    name = "k1_kernel"
    kernel_head(a, name)
    SX, SW, SWS = 12, 16, 20
    a("s_cmp_ge_u32 s2, 256")
    a("s_cbranch_scc1 K1_END")
    a("s_load_dwordx4 s[4:7], s[0:1], 0")
    a("s_load_dwordx2 s[8:9], s[0:1], 96")
    a("s_load_dwordx4 s[36:39], s[0:1], 32")
    a("s_load_dwordx2 s[40:41], s[0:1], 48")
    a("v_and_b32 v1, 63, v0")
    a("v_lshrrev_b32 v2, 6, v0")
    a("s_nop 0")
    a("v_readfirstlane_b32 s26, v2")
    a("s_waitcnt lgkmcnt(0)")
    srd(a, SWS, 8, WS_SIZE)
    a("s_cmp_ge_u32 s2, 192")
    a("s_cbranch_scc1 K1_E")
    srd(a, SX, 4, XBYTES)
    srd(a, SW, 6, WQKV_BYTES)
    a("s_and_b32 s3, s2, 7")
    a("s_lshr_b32 s10, s2, 3")
    a("s_and_b32 s24, s3, 3")
    a("s_lshl_b32 s24, s24, 2")
    a("s_and_b32 s11, s10, 3")
    a("s_add_u32 s24, s24, s11")
    a("s_lshr_b32 s25, s3, 2")
    a("s_mul_i32 s25, s25, 6")
    a("s_lshr_b32 s11, s10, 2")
    a("s_add_u32 s25, s25, s11")
    a("s_lshl_b32 s27, s24, 7")
    a("s_lshr_b32 s28, s25, 2")
    a("s_and_b32 s29, s25, 3")
    a("s_lshl_b32 s29, s29, 3")
    VXO, VWO = 4, 8
    a("v_lshrrev_b32 v2, 3, v1")
    a("v_and_b32 v3, 7, v1")
    a("v_lshrrev_b32 v13, 4, v1")
    a("s_lshl_b32 s10, s26, 5")
    a("s_add_u32 s10, s10, s27")
    a("v_add_u32 v2, s10, v2")
    a("s_movk_i32 s11, 1280")
    a("v_mul_lo_u32 v2, v2, s11")
    a("v_xor_b32 v14, v3, v13")
    a("v_xor_b32 v15, 4, v14")
    a("v_lshlrev_b32 v14, 4, v14")
    a("v_lshlrev_b32 v15, 4, v15")
    for i in range(4):
        a(f"v_add_u32 v{VXO + i}, {i * 8 * 1280 - 1024 * i}, v2")
        a(f"v_add_u32 v{VXO + i}, v{VXO + i}, v{14 + (i & 1)}")
    a("s_mul_i32 s10, s25, 320")
    a("s_mul_i32 s11, s26, 61440")
    a("s_add_u32 s10, s10, s11")
    a("s_movk_i32 s11, 3840")
    for i in range(5):
        a(f"v_add_u32 v2, {64 * i}, v1")
        a("v_mul_u32_u24 v3, 0xcccd, v2")
        a("v_lshrrev_b32 v3, 20, v3")
        a("v_mul_u32_u24 v14, 20, v3")
        a("v_sub_u32 v2, v2, v14")
        a("v_lshrrev_b32 v14, 3, v3")
        a("v_and_b32 v14, 1, v14")
        a("v_lshlrev_b32 v14, 1, v14")
        a("v_xor_b32 v2, v2, v14")
        a("v_lshlrev_b32 v2, 4, v2")
        a("v_mul_lo_u32 v3, v3, s11")
        a("v_add3_u32 v2, v2, v3, s10")
        comp = 1024 * i if i < 4 else 0
        if comp:
            a(f"v_subrev_u32 v{VWO + i}, {comp}, v2")
        else:
            a(f"v_mov_b32 v{VWO + i}, v2")
    VXB0, VXB1, VWE0, VWO0 = 16, 17, 18, 19
    VXC0, VXC1, VWEC, VWOC = 20, 21, 22, 23
    a("s_and_b32 s10, s26, 1")
    a("s_lshr_b32 s11, s26, 1")
    a("v_and_b32 v2, 15, v1")
    a("v_lshrrev_b32 v3, 1, v2")
    a("v_xor_b32 v3, v3, v13")
    a("s_lshl_b32 s35, s10, 6")
    a("v_add_u32 v14, s35, v2")
    a("v_lshlrev_b32 v14, 7, v14")
    a(f"v_lshl_add_u32 v{VXB0}, v3, 4, v14")
    a("v_xor_b32 v3, 4, v3")
    a(f"v_lshl_add_u32 v{VXB1}, v3, 4, v14")
    a("v_lshrrev_b32 v3, 2, v2")
    a("v_lshl_add_u32 v3, v13, 3, v3")
    a("v_mul_u32_u24 v3, 320, v3")
    a("v_and_b32 v14, 3, v1")
    a("v_lshl_add_u32 v3, v14, 3, v3")
    a("s_mul_i32 s35, s11, 160")
    a("s_add_u32 s35, s35, 16384")
    a("v_add_u32 v3, s35, v3")
    a("v_and_b32 v14, 1, v13")
    a("v_lshlrev_b32 v14, 5, v14")
    a("v_add_u32 v15, v3, v14")
    a("v_sub_u32 v14, v3, v14")
    a("s_cmp_eq_u32 s11, 0")
    a("s_cselect_b64 vcc, -1, 0")
    a("s_nop 1")
    a(f"v_cndmask_b32 v{VWE0}, v14, v15, vcc")
    a(f"v_cndmask_b32 v{VWO0}, v15, v14, vcc")
    ACC = 100
    for r in range(80):
        a(f"v_mov_b32 v{ACC + r}, 0")
    X0, W0, X1, W1 = 28, 44, 64, 80

    a("s_lshl_b32 s42, s26, 12")
    a("s_mul_i32 s43, s26, 5120")
    a("s_add_u32 s43, s43, 16384")

    def dma_ops():
        ops = []
        ops.append(["s_add_u32 m0, s32, s42", "s_nop 0"])
        for i in range(4):
            o = f" offset:{1024 * i}" if i else ""
            ops.append([f"buffer_load_dwordx4 v{VXO + i}, s[{SX}:{SX + 3}], s30 offen{o} lds"])
        ops.append(["s_add_u32 m0, s32, s43", "s_nop 0"])
        for i in range(4):
            o = f" offset:{1024 * i}" if i else ""
            ops.append([f"buffer_load_dwordx4 v{VWO + i}, s[{SW}:{SW + 3}], s31 offen{o} lds"])
        ops.append(["s_add_u32 m0, m0, 4096", "s_nop 0",
                    f"buffer_load_dwordx4 v{VWO + 4}, s[{SW}:{SW + 3}], s31 offen lds"])
        return ops

    def dma_advance():
        a("s_add_u32 s30, s30, 128")
        a("s_add_u32 s31, s31, 245760")
        a(f"s_add_u32 s32, s32, {K1_STAGE}")
        a(f"s_cmp_ge_u32 s32, {K1_LDS}")
        a("s_cselect_b32 s32, 0, s32")

    a("s_mov_b32 s30, 0")
    a("s_mov_b32 s31, 0")
    a("s_mov_b32 s32, 0")
    for st in range(4):
        for op in dma_ops():
            for ins in op:
                a(ins)
        dma_advance()

    def reads(ks, XS, WS_):
        r = []
        xb = VXC0 if ks == 0 else VXC1
        for i in range(4):
            r.append(f"ds_read_b128 {vr(XS + 4 * i, 4)}, v{xb} offset:{i * 2048}")
        for j in range(5):
            wb = VWEC if j % 2 == 0 else VWOC
            for T in range(2):
                r.append(f"ds_read_b64_tr_b16 {vr(WS_ + 4 * j + 2 * T, 2)}, v{wb} offset:{ks * 10240 + T * 1280 + j * 32}")
        order = [r[0], r[4], r[5], r[1], r[2], r[3], r[6], r[7], r[8], r[9], r[10], r[11], r[12], r[13]]
        return order

    def mfmas(XS, WS_, vtype):
        m = []
        for j in range(5):
            for i in range(4):
                d = ACC + (i * 5 + j) * 4
                if vtype:
                    m.append(f"v_mfma_f32_16x16x32_bf16 {vr(d, 4)}, {vr(XS + 4 * i, 4)}, {vr(WS_ + 4 * j, 4)}, {vr(d, 4)}")
                else:
                    m.append(f"v_mfma_f32_16x16x32_bf16 {vr(d, 4)}, {vr(WS_ + 4 * j, 4)}, {vr(XS + 4 * i, 4)}, {vr(d, 4)}")
        return m

    def set_bases():
        a(f"v_add_u32 v{VXC0}, s33, v{VXB0}")
        a(f"v_add_u32 v{VXC1}, s33, v{VXB1}")
        a(f"v_add_u32 v{VWEC}, s33, v{VWE0}")
        a(f"v_add_u32 v{VWOC}, s33, v{VWO0}")

    a("s_mov_b32 s33, 0")
    a("s_mov_b32 s34, 0")
    set_bases()
    a("s_waitcnt vmcnt(27)")
    a("s_barrier")
    for r in reads(0, X0, W0):
        a(r)
    a("s_cmp_eq_u32 s28, 2")
    a("s_cbranch_scc1 K1_LOOP_V")

    for vtype in (0, 1):
        lbl = "K1_LOOP_V" if vtype else "K1_LOOP_QK"
        a.raw(".p2align 6")
        a.label(lbl)
        a("s_waitcnt lgkmcnt(0)")
        m = mfmas(X0, W0, vtype)
        r = reads(1, X1, W1)
        for k in range(20):
            a(m[k])
            if k < 14:
                a(r[k])
        a(f"s_add_u32 s33, s33, {K1_STAGE}")
        a(f"s_cmp_ge_u32 s33, {K1_LDS}")
        a("s_cselect_b32 s33, 0, s33")
        a("s_cmp_ge_u32 s34, 6")
        a(f"s_cselect_b32 s30, 0x{OOB:x}, s30")
        a(f"s_cselect_b32 s31, 0x{OOB:x}, s31")
        a("s_waitcnt vmcnt(18) lgkmcnt(0)")
        a("s_barrier")
        set_bases()
        m = mfmas(X1, W1, vtype)
        r = reads(0, X0, W0)
        d = dma_ops()
        for k in range(20):
            a(m[k])
            if k < 14:
                a(r[k])
            if k >= 6 and (k - 6) < len(d):
                for ins in d[k - 6]:
                    a(ins)
        dma_advance()
        a("s_add_u32 s34, s34, 1")
        a("s_cmp_lt_u32 s34, 10")
        a(f"s_cbranch_scc1 {lbl}")
        a("s_waitcnt vmcnt(0) lgkmcnt(0)")
        a("s_barrier")
        a("v_and_b32 v2, 15, v1")
        a("s_and_b32 s10, s26, 1")
        a("s_lshr_b32 s11, s26, 1")
        a("s_mul_i32 s35, s11, 80")
        OFFJ = 28
        if not vtype:
            a("s_lshl_b32 s44, s10, 6")
            a("v_add_u32 v3, s44, v2")
            a("v_mul_u32_u24 v3, 48, v3")
            a("v_lshlrev_b32 v14, 2, v13")
            a("v_add_u32 v14, s35, v14")
            for j in range(5):
                a(f"v_add_u32 v15, {16 * j}, v14")
                a("v_mul_u32_u24 v24, 0xcccd, v15")
                a("v_lshrrev_b32 v24, 20, v24")
                a("v_mul_u32_u24 v25, 20, v24")
                a("v_sub_u32 v25, v15, v25")
                a("v_mul_u32_u24 v24, 6144, v24")
                a("v_lshl_add_u32 v24, v25, 1, v24")
                a(f"v_add_u32 v{OFFJ + j}, v24, v3")
            qs = math.log2(math.e) / math.sqrt(20.0)
            a(f"s_mov_b32 s44, {f32hex(qs)}")
            a("s_cmp_eq_u32 s28, 0")
            a("s_cselect_b32 s44, s44, 1.0")
            for i in range(4):
                for j in range(5):
                    d = ACC + (i * 5 + j) * 4
                    t = 36 + ((i * 5 + j) % 4) * 2
                    for r in range(4):
                        a(f"v_mul_f32 v{d + r}, s44, v{d + r}")
                    a(f"v_cvt_pk_bf16_f32 v{t}, v{d}, v{d + 1}")
                    a(f"v_cvt_pk_bf16_f32 v{t + 1}, v{d + 2}, v{d + 3}")
                    a(f"ds_write_b64 v{OFFJ + j}, {vr(t, 2)} offset:{768 * i}")
            a("s_movk_i32 s45, 6144")
            a("s_mul_i32 s46, s29, 98304")
            a("s_mul_i32 s48, s27, 48")
            a("s_add_u32 s46, s46, s48")
            a(f"s_add_u32 s46, s46, 0x{WS_Q:x}")
            a("s_mul_i32 s48, s29, 196608")
            a("s_lshr_b32 s49, s27, 8")
            a("s_mul_i32 s49, s49, 24576")
            a("s_add_u32 s48, s48, s49")
            a("s_and_b32 s49, s27, 255")
            a("s_mul_i32 s49, s49, 48")
            a("s_add_u32 s48, s48, s49")
            a(f"s_add_u32 s48, s48, 0x{WS_KV:x}")
            a("s_cmp_eq_u32 s28, 0")
            a("s_cselect_b32 s46, s46, s48")
            a("s_mov_b32 s48, 196608")
            a("s_cselect_b32 s47, 98304, s48")
            a("s_branch K1_COPY")
        else:
            a("v_lshrrev_b32 v3, 1, v13")
            a("s_lshl_b32 s44, s10, 3")
            a("v_add_u32 v3, s44, v3")
            a("v_mul_u32_u24 v3, 336, v3")
            a("v_and_b32 v14, 1, v13")
            a("v_lshl_add_u32 v3, v14, 3, v3")
            a("v_add_u32 v14, s35, v2")
            for j in range(5):
                a(f"v_add_u32 v15, {16 * j}, v14")
                a("v_mul_u32_u24 v24, 0xcccd, v15")
                a("v_lshrrev_b32 v24, 20, v24")
                a("v_mul_u32_u24 v25, 20, v24")
                a("v_sub_u32 v25, v15, v25")
                a("v_mul_u32_u24 v24, 5376, v24")
                a("v_lshl_add_u32 v24, v25, 4, v24")
                a(f"v_add_u32 v{OFFJ + j}, v24, v3")
            for i in range(4):
                for j in range(5):
                    d = ACC + (i * 5 + j) * 4
                    t = 36 + ((i * 5 + j) % 4) * 2
                    a(f"v_cvt_pk_bf16_f32 v{t}, v{d}, v{d + 1}")
                    a(f"v_cvt_pk_bf16_f32 v{t + 1}, v{d + 2}, v{d + 3}")
                    a(f"ds_write_b64 v{OFFJ + j}, {vr(t, 2)} offset:{672 * i}")
            a("v_lshrrev_b32 v3, 4, v0")
            a("v_mul_u32_u24 v3, 5376, v3")
            a("v_mul_u32_u24 v14, 336, v2")
            a("v_add_u32 v3, v3, v14")
            for r in range(4):
                a(f"v_mov_b32 v{44 + r}, 0x3f803f80")
            a("v_cmp_gt_u32 vcc, 128, v0")
            a("s_and_saveexec_b64 s[50:51], vcc")
            a("ds_write_b128 v3, v[44:47] offset:320")
            a("s_mov_b64 exec, s[50:51]")
            a("s_movk_i32 s45, 5376")
            a("s_mul_i32 s46, s29, 196608")
            a("s_lshr_b32 s49, s27, 8")
            a("s_mul_i32 s49, s49, 24576")
            a("s_add_u32 s46, s46, s49")
            a("s_and_b32 s49, s27, 255")
            a("s_mul_i32 s49, s49, 42")
            a("s_add_u32 s46, s46, s49")
            a(f"s_add_u32 s46, s46, 0x{WS_KV + 12288:x}")
            a("s_mov_b32 s47, 196608")
    a.label("K1_COPY")
    a("s_waitcnt lgkmcnt(0)")
    a("s_barrier")
    a("v_lshlrev_b32 v2, 4, v1")
    a("s_lshl_b32 s10, s26, 1")
    a("s_mul_i32 s11, s10, s45")
    a("s_mul_i32 s48, s10, s47")
    a("s_add_u32 s46, s46, s48")
    a("v_add_u32 v3, s11, v2")
    a("v_add_u32 v14, s45, v3")
    a("s_add_u32 s48, s46, s47")
    a("s_add_u32 s49, s46, 4096")
    a("s_add_u32 s52, s48, 4096")
    for h in range(2):
        for i in range(6):
            a(f"ds_read_b128 {vr(28 + (h * 6 + i) * 4, 4)}, v{3 if h == 0 else 14} offset:{1024 * i}")
    a("v_add_u32 v15, 5120, v2")
    a("v_cmp_gt_u32 vcc, s45, v15")
    for h in range(2):
        for i in range(5):
            n_left = 11 - (h * 6 + i)
            a(f"s_waitcnt lgkmcnt({n_left})")
            so = (46 if h == 0 else 48) if i < 4 else (49 if h == 0 else 52)
            off = 1024 * i if i < 4 else 1024 * (i - 4)
            a(f"buffer_store_dwordx4 {vr(28 + (h * 6 + i) * 4, 4)}, v2, s[{SWS}:{SWS + 3}], s{so} offen offset:{off}")
    a("s_waitcnt lgkmcnt(0)")
    a("s_and_saveexec_b64 s[50:51], vcc")
    a(f"buffer_store_dwordx4 {vr(28 + 5 * 4, 4)}, v2, s[{SWS}:{SWS + 3}], s49 offen offset:1024")
    a(f"buffer_store_dwordx4 {vr(28 + 11 * 4, 4)}, v2, s[{SWS}:{SWS + 3}], s52 offen offset:1024")
    a("s_endpgm")

    a.label("K1_E")
    SK, SV, SSH = 12, 16, 44
    srd(a, SK, 36, XBYTES)
    srd(a, SV, 38, XBYTES)
    srd(a, SSH, 40, 640 * 8)
    a("s_sub_u32 s24, s2, 192")
    a("s_lshl_b32 s25, s24, 5")
    a("s_movk_i32 s27, 5120")
    a("s_movk_i32 s28, 1280")
    UB = 16
    for u in range(5):
        b = UB + u * 24
        a(f"v_add_u32 v2, {256 * u}, v0")
        a("v_mul_u32_u24 v3, 0xcccd, v2")
        a("v_lshrrev_b32 v3, 24, v3")
        a("v_mul_u32_u24 v4, 320, v3")
        a("v_sub_u32 v4, v2, v4")
        a("v_lshlrev_b32 v5, 3, v3")
        a("v_add_u32 v5, s25, v5")
        a("v_mul_lo_u32 v6, v5, s28")
        a("v_lshl_add_u32 v6, v4, 2, v6")
        a("v_subrev_u32 v7, 3840, v6")
        a("v_cmp_eq_u32 vcc, 0, v5")
        a(f"v_mov_b32 v8, 0x{OOB:x}")
        a("v_lshlrev_b32 v9, 4, v4")
        a("v_cndmask_b32 v7, v7, v8, vcc")
        a("v_mul_u32_u24 v10, 160, v4")
        a("v_sub_u32 v11, 3, v3")
        a(f"v_lshl_add_u32 v{b + 23}, v11, 4, v10")
        for r in range(3):
            a(f"buffer_load_dword v{b + r}, v7, s[{SK}:{SK + 3}], 0 offen offset:{1280 * r}")
        for r in range(8):
            so = "0" if r < 4 else "s27"
            a(f"buffer_load_dword v{b + 3 + r}, v6, s[{SK}:{SK + 3}], {so} offen offset:{1280 * (r % 4)}")
        for r in range(8):
            so = "0" if r < 4 else "s27"
            a(f"buffer_load_dword v{b + 11 + r}, v6, s[{SV}:{SV + 3}], {so} offen offset:{1280 * (r % 4)}")
    WB = 140
    for u in range(5):
        a(f"v_add_u32 v2, {256 * u}, v0")
        a("v_mul_u32_u24 v3, 0xcccd, v2")
        a("v_lshrrev_b32 v3, 24, v3")
        a("v_mul_u32_u24 v4, 320, v3")
        a("v_sub_u32 v4, v2, v4")
        a("v_lshlrev_b32 v9, 4, v4")
        a(f"buffer_load_dwordx4 {vr(WB + 4 * u, 4)}, v9, s[{SSH}:{SSH + 3}], 0 offen")
    a("s_waitcnt vmcnt(0)")
    T = 160
    a("s_mov_b32 s29, 0xffff0000")
    for u in range(5):
        b = UB + u * 24
        for ch in range(2):
            KF, WF, UO = T, T + 11, 4
            for r in range(11):
                if ch == 0:
                    a(f"v_lshlrev_b32 v{KF + r}, 16, v{b + r}")
                else:
                    a(f"v_and_b32 v{KF + r}, s29, v{b + r}")
            w = WB + 4 * u + 2 * ch
            a(f"v_lshlrev_b32 v{WF}, 16, v{w}")
            a(f"v_and_b32 v{WF + 1}, s29, v{w}")
            a(f"v_lshlrev_b32 v{WF + 2}, 16, v{w + 1}")
            a(f"v_and_b32 v{WF + 3}, s29, v{w + 1}")
            for r in range(8):
                a(f"v_mul_f32 v{UO + r}, v{WF + 3}, v{KF + r}")
                a(f"v_fmac_f32 v{UO + r}, v{WF + 2}, v{KF + r + 1}")
                a(f"v_fmac_f32 v{UO + r}, v{WF + 1}, v{KF + r + 2}")
                a(f"v_fmac_f32 v{UO + r}, v{WF}, v{KF + r + 3}")
                if ch == 0:
                    a(f"v_lshlrev_b32 v{T + 15}, 16, v{b + 11 + r}")
                else:
                    a(f"v_and_b32 v{T + 15}, s29, v{b + 11 + r}")
                a(f"v_mul_f32 v{UO + r}, v{UO + r}, v{T + 15}")
            for d in range(4):
                a(f"v_cvt_pk_bf16_f32 v{12 + d}, v{UO + 7 - 2 * d}, v{UO + 6 - 2 * d}")
            a(f"ds_write_b128 v{b + 23}, v[12:15] offset:{80 * ch}")
            a("s_nop 0")
    a("s_waitcnt lgkmcnt(0)")
    a("s_barrier")
    a("v_lshrrev_b32 v2, 2, v1")
    a("v_mul_u32_u24 v2, 80, v2")
    a("v_and_b32 v3, 3, v1")
    a("v_lshl_add_u32 v2, v3, 4, v2")
    a("s_mul_i32 s10, s26, 12800")
    a("v_add_u32 v2, s10, v2")
    a("v_lshlrev_b32 v3, 4, v1")
    a("s_sub_u32 s10, 63, s24")
    a("s_mul_i32 s10, s10, 40960")
    a("s_mul_i32 s11, s26, 10240")
    a("s_add_u32 s10, s10, s11")
    a(f"s_add_u32 s10, s10, 0x{WS_U:x}")
    a("s_add_u32 s11, s10, 4096")
    a("s_add_u32 s29, s10, 8192")
    for i in range(10):
        a(f"ds_read_b128 {vr(16 + 4 * i, 4)}, v2 offset:{1280 * i}")
    for i in range(10):
        a(f"s_waitcnt lgkmcnt({9 - i})")
        so = [10, 11, 29][i // 4]
        a(f"buffer_store_dwordx4 {vr(16 + 4 * i, 4)}, v3, s[{SWS}:{SWS + 3}], s{so} offen offset:{1024 * (i % 4)}")
    a.label("K1_END")
    a("s_endpgm")
    return name, 180


K2_SLOT = 24576
K2_CONV = 3 * K2_SLOT
K2_CW = 12928
K2_FLAG = K2_CONV + 4 * K2_CW
K2_LDS = K2_FLAG + 64


def gen_k2(a):
    name = "k2_kernel"
    kernel_head(a, name)
    SWS = 12
    a("s_cmp_ge_u32 s2, 256")
    a("s_cbranch_scc1 K2_END")
    a("s_load_dwordx2 s[8:9], s[0:1], 96")
    a("s_load_dwordx2 s[4:5], s[0:1], 0")
    a("s_load_dwordx4 s[36:39], s[0:1], 56")
    a("s_load_dwordx2 s[40:41], s[0:1], 72")
    a("v_and_b32 v1, 63, v0")
    a("v_lshrrev_b32 v2, 6, v0")
    a("s_nop 0")
    a("v_readfirstlane_b32 s26, v2")
    a("v_and_b32 v2, 31, v1")
    a("v_lshrrev_b32 v3, 5, v1")
    a("s_waitcnt lgkmcnt(0)")
    srd(a, SWS, 8, WS_SIZE)
    a("s_cmp_ge_u32 s26, 8")
    a("s_cbranch_scc1 K2_CONVPATH")
    a("s_and_b32 s24, s2, 7")
    a("s_lshl_b32 s24, s24, 2")
    a("s_lshr_b32 s10, s2, 3")
    a("s_and_b32 s10, s10, 3")
    a("s_add_u32 s24, s24, s10")
    a("s_lshr_b32 s25, s2, 5")
    VDMA, VK, VKH, VV = 4, 5, 6, 7
    QLO, QHI = 8, 12
    KB = [16, 24]
    VB = 32
    P = 40
    S = [48, 64]
    O = 80
    NM = 96
    TMP = 112
    a("s_mul_i32 s27, s24, 196608")
    a(f"s_add_u32 s27, s27, 0x{WS_KV:x}")
    a("s_mul_i32 s28, s26, 3072")
    a(f"v_lshlrev_b32 v{VDMA}, 4, v1")
    a(f"v_add_u32 v{VDMA}, s28, v{VDMA}")
    a("s_mov_b32 s44, 0")

    def dma(slot_sgpr_or_imm, soff):
        a(f"s_add_u32 m0, s28, {slot_sgpr_or_imm}")
        a("s_nop 0")
        for i in range(3):
            o = f" offset:{1024 * i}" if i else ""
            a(f"buffer_load_dwordx4 v{VDMA}, s[{SWS}:{SWS + 3}], {soff} offen{o} lds")

    dma(0, "s27")
    a("s_lshl_b32 s10, s24, 11")
    a("s_lshl_b32 s11, s25, 8")
    a("s_add_u32 s10, s10, s11")
    a("s_lshl_b32 s11, s26, 5")
    a("s_add_u32 s10, s10, s11")
    a("v_add_u32 v14, s10, v2")
    a("v_mul_u32_u24 v14, 48, v14")
    a("v_lshl_add_u32 v15, v3, 4, v14")
    a(f"buffer_load_dwordx4 {vr(QLO, 4)}, v15, s[{SWS}:{SWS + 3}], 0 offen")
    a("v_cmp_eq_u32 vcc, 0, v3")
    a(f"v_mov_b32 v15, 0x{OOB:x}")
    a("s_nop 0")
    a("v_cndmask_b32 v14, v15, v14, vcc")
    a(f"buffer_load_dwordx2 {vr(QHI, 2)}, v14, s[{SWS}:{SWS + 3}], 0 offen offset:32")
    a(f"s_add_u32 s29, s27, {K2_SLOT}")
    dma(K2_SLOT, "s29")
    a("v_and_b32 v14, 0x13, v2")
    a("v_and_b32 v15, 4, v2")
    a("v_lshl_or_b32 v14, v15, 1, v14")
    a("v_and_b32 v15, 8, v2")
    a("v_lshrrev_b32 v15, 1, v15")
    a("v_or_b32 v14, v14, v15")
    a("v_mul_u32_u24 v14, 48, v14")
    a(f"v_add_u32 v{TMP}, 32, v14")
    a(f"v_lshl_add_u32 v{TMP + 1}, v3, 4, v14")
    a("v_min_u32 v14, 20, v2")
    a("v_lshlrev_b32 v14, 4, v14")
    a("v_mul_u32_u24 v15, 336, v3")
    a(f"v_add3_u32 v{TMP + 2}, v14, v15, 0")
    a(f"v_add_u32 v{TMP + 2}, 12288, v{TMP + 2}")
    a(f"v_mov_b32 v14, {K2_FLAG}")
    a("v_mov_b32 v15, 0")
    a("ds_write_b32 v14, v15")

    def kread(buf, tile):
        return [f"ds_read_b128 {vr(KB[buf], 4)}, v{VK} offset:{tile * 1536}",
                f"ds_read_b64 {vr(KB[buf] + 4, 2)}, v{VKH} offset:{tile * 1536}"]

    def vread(tile):
        return [f"ds_read_b128 {vr(VB, 4)}, v{VV} offset:{tile * 1344}",
                f"ds_read_b128 {vr(VB + 4, 4)}, v{VV} offset:{tile * 1344 + 672}"]

    def qk1(sb, kb, c):
        return f"v_mfma_f32_32x32x16_bf16 {vr(S[sb], 16)}, {vr(KB[kb], 4)}, {vr(QLO, 4)}, {c}"

    def qk2(sb, kb):
        return f"v_mfma_f32_32x32x8_bf16 {vr(S[sb], 16)}, {vr(KB[kb] + 4, 2)}, {vr(QHI, 2)}, {vr(S[sb], 16)}"

    a(f"v_mov_b32 v{VK}, v{TMP + 1}")
    a(f"v_mov_b32 v{VKH}, v{TMP}")
    a(f"v_mov_b32 v{VV}, v{TMP + 2}")
    a("s_waitcnt vmcnt(3) lgkmcnt(0)")
    a("s_barrier")
    for r in kread(0, 0):
        a(r)
    a("s_waitcnt lgkmcnt(0)")
    a(qk1(0, 0, "0"))
    a(qk2(0, 0))
    a("s_nop 15")
    a("s_nop 3")
    s0 = S[0]
    a(f"v_max3_f32 v14, v{s0}, v{s0 + 1}, v{s0 + 2}")
    for r in range(3, 15, 2):
        a(f"v_max3_f32 v14, v14, v{s0 + r}, v{s0 + r + 1}")
    a(f"v_max_f32 v14, v14, v{s0 + 15}")
    a("v_mov_b32 v15, v14")
    a("s_nop 1")
    a("v_permlane32_swap_b32 v14, v15")
    a("s_nop 1")
    a("v_max_f32 v14, v14, v15")
    a.label("K2_RUN")
    for r in range(16):
        a(f"v_sub_f32 v{NM + r}, 0, v14")
    for r in range(16):
        a(f"v_mov_b32 v{O + r}, 0")
    for r in kread(0, 0) + kread(1, 1) + vread(0):
        a(r)
    a("s_waitcnt lgkmcnt(4)")
    a(qk1(0, 0, vr(NM, 16)))
    a(qk2(0, 0))
    a("s_mov_b32 s30, 0")
    a(f"s_mov_b32 s31, {2 * K2_SLOT}")
    a(f"s_add_u32 s29, s27, {2 * K2_SLOT}")
    a(f"s_mov_b32 s32, {K2_SLOT}")
    a("s_mov_b32 s33, 0")
    a("s_nop 7")
    a.raw(".p2align 6")
    a.label("K2_LOOP")
    for t in range(8):
        cur, nxt = t % 2, (t + 1) % 2
        sc = S[cur]

        def ex(r):
            return f"v_exp_f32 v{sc + r}, v{sc + r}"

        def cv(p):
            return f"v_cvt_pk_bf16_f32 v{P + p}, v{sc + 2 * p}, v{sc + 2 * p + 1}"

        a("s_waitcnt lgkmcnt(2)")
        a(qk1(nxt, nxt, vr(NM, 16)))
        a(ex(0)); a(ex(1)); a(ex(2)); a(cv(0)); a(ex(3))
        a(qk2(nxt, nxt))
        a(ex(4)); a(cv(1)); a(ex(5))
        if t == 6:
            a(f"v_add_u32 v{VK}, s32, v{VK}")
            a(f"v_add_u32 v{VKH}, s32, v{VKH}")
        kr = kread(cur, (t + 2) % 8)
        a(ex(6)); a(cv(2)); a(ex(7)); a(ex(8)); a(cv(3))
        a("s_waitcnt lgkmcnt(0)")
        a(ex(9))
        a(kr[0]); a(kr[1])
        a(f"v_mfma_f32_32x32x16_bf16 {vr(O, 16)}, {vr(VB, 4)}, {vr(P, 4)}, {vr(O, 16)}")
        a(ex(10)); a(cv(4)); a(ex(11)); a(ex(12)); a(cv(5)); a(ex(13)); a(ex(14)); a(cv(6)); a(ex(15))
        if t == 5:
            a("s_waitcnt vmcnt(0)")
            a("s_barrier")
            a("s_cmp_ge_u32 s30, 6")
            a("s_cbranch_scc1 K2_NODMA")
            dma("s31", "s29")
            a.label("K2_NODMA")
            a(f"s_add_u32 s29, s29, {K2_SLOT}")
            a(f"s_add_u32 s31, s31, {K2_SLOT}")
            a(f"s_cmp_ge_u32 s31, {3 * K2_SLOT}")
            a("s_cselect_b32 s31, 0, s31")
        else:
            a("s_nop 0")
        a(cv(7))
        if t == 7:
            a(f"v_add_u32 v{VV}, s32, v{VV}")
        else:
            a("s_nop 0")
        a("s_nop 0")
        a(f"v_mfma_f32_32x32x16_bf16 {vr(O, 16)}, {vr(VB + 4, 4)}, {vr(P + 4, 4)}, {vr(O, 16)}")
        for r in vread((t + 1) % 8):
            a(r)
    a("s_add_u32 s33, s33, 1")
    a("s_cmp_eq_u32 s33, 3")
    a("s_cselect_b32 s33, 0, s33")
    a("s_cmp_eq_u32 s33, 2")
    a(f"s_mov_b32 s32, {K2_SLOT}")
    a(f"s_cselect_b32 s32, {(-2 * K2_SLOT) & 0xffffffff}, s32")
    a("s_add_u32 s30, s30, 1")
    a("s_cmp_lt_u32 s30, 8")
    a("s_cbranch_scc1 K2_LOOP")
    a("s_waitcnt lgkmcnt(0)")
    a("s_nop 15")
    a(f"v_mov_b32 v14, v{O + 8}")
    a(f"v_mov_b32 v15, v{O + 8}")
    a("s_nop 1")
    a("v_permlane32_swap_b32 v14, v15")
    a("s_cmp_lg_u32 s44, 0")
    a("s_cbranch_scc1 K2_STORE")
    a("s_mov_b32 s10, 0x53800000")
    a("v_cmp_nge_f32 vcc, s10, v15")
    a(f"v_mov_b32 v{TMP + 3}, {K2_FLAG}")
    a(f"v_mov_b32 v{TMP + 4}, 1")
    a("s_and_saveexec_b64 s[46:47], vcc")
    a("s_cbranch_execz K2_NOFLAG")
    a(f"ds_write_b32 v{TMP + 3}, v{TMP + 4}")
    a.label("K2_NOFLAG")
    a("s_mov_b64 exec, s[46:47]")
    a("s_waitcnt lgkmcnt(0)")
    a("s_barrier")
    a(f"ds_read_b32 v{TMP + 4}, v{TMP + 3}")
    a("s_waitcnt lgkmcnt(0)")
    a(f"v_readfirstlane_b32 s10, v{TMP + 4}")
    a("s_cmp_eq_u32 s10, 0")
    a("s_cbranch_scc1 K2_STORE")
    a("s_mov_b32 s44, 1")
    a("v_mov_b32 v14, 0xff800000")
    a("s_mov_b32 s30, 0")
    a("s_mov_b32 s29, s27")
    a(f"v_mov_b32 v{VK}, v{TMP + 1}")
    a(f"v_mov_b32 v{VKH}, v{TMP}")
    a(f"v_mov_b32 v{VV}, v{TMP + 2}")
    a.label("K2_MAXLOOP")
    a("s_barrier")
    dma(0, "s29")
    a("s_waitcnt vmcnt(0)")
    a("s_barrier")
    for t in range(8):
        for r in kread(0, t):
            a(r)
        a("s_waitcnt lgkmcnt(0)")
        a(qk1(0, 0, "0"))
        a(qk2(0, 0))
        a("s_nop 15")
        a("s_nop 3")
        for r in range(0, 16, 2):
            a(f"v_max3_f32 v14, v14, v{s0 + r}, v{s0 + r + 1}")
    a(f"s_add_u32 s29, s29, {K2_SLOT}")
    a("s_add_u32 s30, s30, 1")
    a("s_cmp_lt_u32 s30, 8")
    a("s_cbranch_scc1 K2_MAXLOOP")
    a("v_mov_b32 v15, v14")
    a("s_nop 1")
    a("v_permlane32_swap_b32 v14, v15")
    a("s_nop 1")
    a("v_max_f32 v14, v14, v15")
    a("s_barrier")
    dma(0, "s27")
    a(f"s_add_u32 s29, s27, {K2_SLOT}")
    dma(K2_SLOT, "s29")
    a("s_waitcnt vmcnt(3)")
    a("s_barrier")
    a("s_branch K2_RUN")
    a.label("K2_STORE")
    a("v_rcp_f32 v15, v15")
    a("s_lshl_b32 s10, s25, 8")
    a("s_lshl_b32 s11, s26, 5")
    a("s_add_u32 s10, s10, s11")
    a("v_add_u32 v16, s10, v2")
    a("v_lshrrev_b32 v17, 4, v16")
    a("v_mul_u32_u24 v17, 20480, v17")
    a("v_and_b32 v16, 15, v16")
    a("v_lshl_add_u32 v17, v16, 4, v17")
    a(f"v_add_u32 v17, 0x{WS_O:x}, v17")
    a("s_mul_i32 s10, s24, 5")
    a("v_add_u32 v18, s10, v3")
    for pc in range(3):
        for r in range(4):
            a(f"v_mul_f32 v{O + 4 * pc + r}, v{O + 4 * pc + r}, v15")
        a(f"v_cvt_pk_bf16_f32 v{20 + 2 * pc}, v{O + 4 * pc}, v{O + 4 * pc + 1}")
        a(f"v_cvt_pk_bf16_f32 v{21 + 2 * pc}, v{O + 4 * pc + 2}, v{O + 4 * pc + 3}")
        a(f"v_add_u32 v19, {2 * pc}, v18")
        a("v_lshrrev_b32 v26, 3, v19")
        a("v_lshl_add_u32 v26, v26, 10, v17")
        a("v_and_b32 v27, 3, v19")
        a("v_lshl_add_u32 v26, v27, 8, v26")
        a("v_bfe_u32 v27, v19, 2, 1")
        a(f"v_lshl_add_u32 v{28 + pc}, v27, 3, v26")
    a("v_cmp_eq_u32 vcc, 0, v3")
    a(f"v_mov_b32 v27, 0x{OOB:x}")
    a("s_nop 0")
    a("v_cndmask_b32 v30, v27, v30, vcc")
    for pc in range(3):
        a(f"buffer_store_dwordx2 {vr(20 + 2 * pc, 2)}, v{28 + pc}, s[{SWS}:{SWS + 3}], 0 offen")
    a("s_endpgm")

    a.label("K2_CONVPATH")
    SX, SH, SG = 16, 20, 28
    srd(a, SX, 4, XBYTES)
    srd(a, SH, 36, XBYTES)
    srd(a, SG, 40, 1280)
    a("s_sub_u32 s26, s26, 8")
    a("s_lshl_b32 s24, s2, 2")
    a("s_add_u32 s24, s24, s26")
    a("s_lshl_b32 s10, s2, 3")
    a("s_lshl_b32 s11, s26, 1")
    a("s_add_u32 s25, s10, s11")
    a("s_mul_i32 s10, s25, 1280")
    a("s_add_u32 s11, s10, 1280")
    a("v_lshlrev_b32 v4, 4, v1")
    a("v_add_u32 v5, 1024, v4")
    a("v_cmp_gt_u32 vcc, 16, v1")
    a(f"v_mov_b32 v6, 0x{OOB:x}")
    a("s_nop 0")
    a("v_cndmask_b32 v5, v6, v5, vcc")
    G = 64
    a(f"buffer_load_dwordx4 {vr(G, 4)}, v4, s[{SG}:{SG + 3}], 0 offen")
    a(f"buffer_load_dwordx4 {vr(G + 4, 4)}, v5, s[{SG}:{SG + 3}], 0 offen")
    a(f"buffer_load_dwordx4 {vr(G + 8, 4)}, v4, s[{SX}:{SX + 3}], s10 offen")
    a(f"buffer_load_dwordx4 {vr(G + 12, 4)}, v5, s[{SX}:{SX + 3}], s10 offen")
    a(f"buffer_load_dwordx4 {vr(G + 16, 4)}, v4, s[{SX}:{SX + 3}], s11 offen")
    a(f"buffer_load_dwordx4 {vr(G + 20, 4)}, v5, s[{SX}:{SX + 3}], s11 offen")
    a("v_lshlrev_b32 v9, 1, v1")
    a("s_cmp_ge_u32 s2, 160")
    a("s_cbranch_scc1 K2_GATE")
    a(f"s_mul_i32 s27, s26, {K2_CW}")
    a(f"s_add_u32 s27, s27, {K2_CONV}")
    a("s_add_u32 s33, s27, 7680")
    a("s_add_u32 s34, s27, 12800")
    a("s_lshr_b32 s10, s24, 1")
    a("s_lshl_b32 s10, s10, 2")
    a("s_load_dword s35, s[38:39], s10")
    a("s_lshl_b32 s10, s24, 6")
    a(f"s_add_u32 s10, s10, 0x{WS_U:x}")
    a("s_mov_b32 s11, 40960")
    for i in range(5):
        a(f"v_add_u32 v6, {64 * i}, v1")
        a("v_mul_u32_u24 v7, 0xcccd, v6")
        a("v_lshrrev_b32 v7, 18, v7")
        a("v_mul_u32_u24 v8, 5, v7")
        a("v_sub_u32 v6, v6, v8")
        a("v_min_u32 v6, 3, v6")
        a("v_mul_lo_u32 v7, v7, s11")
        a("v_lshl_add_u32 v6, v6, 4, v7")
        a(f"s_add_u32 m0, s27, {1024 * i}")
        a("s_nop 0")
        a(f"buffer_load_dwordx4 v6, s[{SWS}:{SWS + 3}], s10 offen lds")
    VE = 9
    a("s_lshl_b32 s42, s24, 12")

    def edma(first):
        for i in range(5):
            a(f"s_add_u32 m0, s33, {1024 * i}")
            if first and i == 0:
                a(f"v_subrev_u32 v10, 64, v{VE}")
                a("v_add_u32 v10, s42, v10")
                a("v_cmp_gt_u32 vcc, 32, v1")
                a(f"v_mov_b32 v11, 0x{OOB:x}")
                a("s_nop 0")
                a("v_cndmask_b32 v10, v10, v11, vcc")
                a(f"buffer_load_dwordx4 v10, s[{SH}:{SH + 3}], 0 offen lds")
            else:
                a(f"s_add_u32 s43, s42, {128 * i - 64 & 0xffffffff}" if 128 * i - 64 < 0 else f"s_add_u32 s43, s42, {128 * i - 64}")
                a(f"buffer_load_dwordx4 v{VE}, s[{SH}:{SH + 3}], s43 offen lds")

    edma(True)
    a("v_mov_b32 v10, s42")
    a(f"buffer_load_dwordx4 v[12:15], v10, s[{SH}:{SH + 3}], 0 offen")
    for r in range(4):
        a(f"v_mov_b32 v{16 + r}, 0")
    a("v_add_u32 v10, s27, v4")
    a("ds_write_b128 v10, v[16:19] offset:5120")
    a("ds_write_b128 v10, v[16:19] offset:6144")
    a("v_cmp_gt_u32 vcc, 32, v1")
    a("s_and_saveexec_b64 s[46:47], vcc")
    a("ds_write_b128 v10, v[16:19] offset:7168")
    a("s_mov_b64 exec, s[46:47]")
    a("v_mov_b32 v10, s34")
    a("ds_write_b128 v10, v[16:19]")
    VA, VB0, VB1 = 5, 6, 7
    a("v_lshl_add_u32 v8, v3, 3, v2")
    a("v_add_u32 v8, 1, v8")
    a("v_lshlrev_b32 v8, 4, v8")
    a(f"v_add_u32 v{VA}, s33, v8")
    a("v_sub_u32 v8, 63, v2")
    a("v_mul_u32_u24 v8, 80, v8")
    a("v_add_u32 v8, s27, v8")
    a(f"v_lshl_add_u32 v{VB0}, v3, 4, v8")
    a(f"v_subrev_u32 v{VB1}, 2560, v{VB0}")
    a("v_lshlrev_b32 v11, 3, v3")
    a("v_sub_u32 v8, v8, v11")
    a("v_add_u32 v8, 8, v8")
    Y0, Y1 = 32, 48
    for r in range(32):
        a(f"v_mov_b32 v{Y0 + r}, 0")
    a.label("K2_GATE")
    a("s_cmp_ge_u32 s2, 160")
    a("s_cbranch_scc1 K2_GW0")
    a("s_waitcnt vmcnt(11)")
    a("s_branch K2_GW1")
    a.label("K2_GW0")
    a("s_waitcnt vmcnt(0)")
    a.label("K2_GW1")
    a("v_mov_b32 v20, 0")
    a("v_mov_b32 v21, 0")
    a("s_nop 1")
    for r in range(8):
        a(f"v_dot2_f32_bf16 v20, v{G + 8 + r}, v{G + r}, v20")
        a(f"v_dot2_f32_bf16 v21, v{G + 16 + r}, v{G + r}, v21")
    a("s_nop 3")
    for sh in (1, 2, 4, 8):
        a(f"v_add_f32_dpp v20, v20, v20 row_shr:{sh} row_mask:0xf bank_mask:0xf bound_ctrl:0")
        a(f"v_add_f32_dpp v21, v21, v21 row_shr:{sh} row_mask:0xf bank_mask:0xf bound_ctrl:0")
        a("s_nop 1")
    a("s_nop 1")
    for k, ln in enumerate((15, 31, 47, 63)):
        a(f"v_readlane_b32 s{48 + k}, v20, {ln}")
        a(f"v_readlane_b32 s{52 + k}, v21, {ln}")
    a("s_nop 3")
    a("v_mov_b32 v22, s48")
    a("v_mov_b32 v23, s52")
    for k in range(1, 4):
        a(f"v_add_f32 v22, s{48 + k}, v22")
        a(f"v_add_f32 v23, s{52 + k}, v23")
    a("v_cmp_eq_u32 vcc, 1, v1")
    a("s_nop 1")
    a("v_cndmask_b32 v22, v22, v23, vcc")
    a(f"v_mul_f32 v22, {f32hex(-math.log2(math.e))}, v22")
    a("v_exp_f32 v22, v22")
    a("s_nop 0")
    a("v_add_f32 v22, 1.0, v22")
    a("v_rcp_f32 v22, v22")
    a("s_lshl_b32 s10, s25, 2")
    a(f"s_add_u32 s10, s10, 0x{WS_G:x}")
    a("v_lshlrev_b32 v23, 2, v1")
    a("v_cmp_gt_u32 vcc, 2, v1")
    a("s_and_saveexec_b64 s[46:47], vcc")
    a(f"buffer_store_dword v22, v23, s[{SWS}:{SWS + 3}], s10 offen")
    a("s_mov_b64 exec, s[46:47]")
    a("s_cmp_ge_u32 s2, 160")
    a("s_cbranch_scc1 K2_END")
    a("s_barrier")
    a("s_waitcnt vmcnt(0) lgkmcnt(0)")
    a("v_mov_b32 v10, s34")
    a("ds_write_b128 v10, v[12:15] offset:16")
    a("v_subrev_u32 v11, 24, v1")
    a("v_max_i32 v11, 0, v11")
    a("v_lshl_add_u32 v11, v11, 1, v10")
    a("s_waitcnt lgkmcnt(0)")
    a("v_cmp_gt_u32 vcc, 32, v1")
    a("s_and_saveexec_b64 s[46:47], vcc")
    a("ds_read_b128 v[16:19], v11")
    a("v_add_u32 v10, s33, v4")
    a("s_waitcnt lgkmcnt(0)")
    a("ds_write_b128 v10, v[16:19]")
    a("s_mov_b64 exec, s[46:47]")
    a("s_waitcnt lgkmcnt(0)")
    FA = [64, 112]

    def seg_body(two):
        def rd(grp, st):
            base = FA[st]
            out = []
            for k in range(4):
                s = grp * 4 + k
                out.append(f"ds_read_b128 {vr(base + 4 * k, 4)}, v{VA} offset:{s * 256}")
                bo = (s // 2) * 80 + (s % 2) * 32
                out.append(f"ds_read_b128 {vr(base + 32 + 4 * k, 4)}, v{VB1} offset:{bo}")
                if two:
                    out.append(f"ds_read_b128 {vr(base + 16 + 4 * k, 4)}, v{VB0} offset:{bo}")
            return out

        def mm(st):
            base = FA[st]
            out = []
            for k in range(4):
                out.append(f"v_mfma_f32_32x32x16_bf16 {vr(Y1, 16)}, {vr(base + 4 * k, 4)}, {vr(base + 32 + 4 * k, 4)}, {vr(Y1, 16)}")
                if two:
                    out.append(f"v_mfma_f32_32x32x16_bf16 {vr(Y0, 16)}, {vr(base + 4 * k, 4)}, {vr(base + 16 + 4 * k, 4)}, {vr(Y0, 16)}")
            return out
        n = 12 if two else 8
        for r in rd(0, 0):
            a(r)
        for grp in range(4):
            if grp < 3:
                for r in rd(grp + 1, (grp + 1) % 2):
                    a(r)
                a(f"s_waitcnt lgkmcnt({n})")
            else:
                a("s_waitcnt lgkmcnt(0)")
                a("s_add_u32 s42, s42, 512")
                a("s_cmp_ge_u32 s30, 7")
                a(f"s_cbranch_scc1 K2_NOE{int(two)}")
                edma(False)
                a.label(f"K2_NOE{int(two)}")
            for m in mm(grp % 2):
                a(m)
        a(f"v_add_u32 v{VB0}, 640, v{VB0}")
        a(f"v_add_u32 v{VB1}, 640, v{VB1}")

    a("s_mov_b32 s30, 0")
    a.label("K2_SEG2")
    seg_body(True)
    a("s_barrier")
    a("s_waitcnt vmcnt(0)")
    a("s_add_u32 s30, s30, 1")
    a("s_cmp_lt_u32 s30, 4")
    a("s_cbranch_scc1 K2_SEG2")
    a.label("K2_SEG1")
    seg_body(False)
    a("s_add_u32 s30, s30, 1")
    a("s_cmp_ge_u32 s30, 8")
    a("s_cbranch_scc1 K2_CEPI")
    a("s_barrier")
    a("s_waitcnt vmcnt(0)")
    a("s_branch K2_SEG1")
    a.label("K2_CEPI")
    a("s_and_b32 s10, s24, 1")
    a("s_lshl_b32 s11, s35, 16")
    a("s_and_b32 s35, s35, 0xffff0000")
    a("s_cmp_eq_u32 s10, 0")
    a("s_cselect_b32 s35, s11, s35")
    a("v_subrev_u32 v9, 2560, v8")
    for n in range(2):
        for q in range(4):
            a(f"ds_read_b64 {vr(64 + (n * 4 + q) * 2, 2)}, v{8 + n} offset:{48 - 16 * q}")
    a("v_lshlrev_b32 v10, 6, v2")
    a("v_lshl_add_u32 v10, v3, 3, v10")
    a("s_lshl_b32 s10, s24, 12")
    a(f"s_add_u32 s10, s10, 0x{WS_Z:x}")
    a("s_mov_b32 s11, 0xffff0000")
    a("s_waitcnt lgkmcnt(0)")
    a("s_nop 7")
    for n in range(2):
        Y = Y0 if n == 0 else Y1
        for q in range(4):
            u = 64 + (n * 4 + q) * 2
            a(f"v_and_b32 v16, s11, v{u + 1}")
            a(f"v_lshlrev_b32 v17, 16, v{u + 1}")
            a(f"v_and_b32 v18, s11, v{u}")
            a(f"v_lshlrev_b32 v19, 16, v{u}")
            for r in range(4):
                a(f"v_fmac_f32 v{Y + 4 * q + r}, s35, v{16 + r}")
            d = 96 + (n * 4 + q) * 2
            a(f"v_cvt_pk_bf16_f32 v{d}, v{Y + 4 * q}, v{Y + 4 * q + 1}")
            a(f"v_cvt_pk_bf16_f32 v{d + 1}, v{Y + 4 * q + 2}, v{Y + 4 * q + 3}")
            a(f"buffer_store_dwordx2 {vr(d, 2)}, v10, s[{SWS}:{SWS + 3}], s10 offen offset:{2048 * n + 16 * q}")
    a.label("K2_END")
    a("s_endpgm")
    return name, 160


K3_X = 102400
K3_Z = K3_X + 10240 + 1024
K3_LDS = K3_Z + 10240


def gen_k3(a):
    name = "k3_kernel"
    kernel_head(a, name)
    SWS, SWO, SX, SO = 12, 16, 20, 28
    a("s_cmp_ge_u32 s2, 256")
    a("s_cbranch_scc1 K3_END")
    a("s_load_dwordx2 s[8:9], s[0:1], 96")
    a("s_load_dwordx2 s[4:5], s[0:1], 0")
    a("s_load_dwordx2 s[6:7], s[0:1], 16")
    a("s_load_dwordx2 s[10:11], s[0:1], 80")
    a("v_and_b32 v1, 63, v0")
    a("v_lshrrev_b32 v2, 6, v0")
    a("s_nop 0")
    a("v_readfirstlane_b32 s26, v2")
    a("s_and_b32 s24, s2, 7")
    a("s_lshl_b32 s24, s24, 2")
    a("s_lshr_b32 s3, s2, 3")
    a("s_and_b32 s3, s3, 3")
    a("s_add_u32 s24, s24, s3")
    a("s_lshr_b32 s25, s2, 5")
    a("s_waitcnt lgkmcnt(0)")
    srd(a, SWS, 8, WS_SIZE)
    srd(a, SWO, 6, WO_BYTES)
    srd(a, SX, 4, XBYTES)
    srd(a, SO, 10, XBYTES)
    VP = 4
    a("s_mul_i32 s3, s25, 160")
    a("s_movk_i32 s27, 1280")
    for i in range(5):
        a(f"v_add_u32 v2, {64 * i}, v1")
        a("v_mul_u32_u24 v3, 0xcccd, v2")
        a("v_lshrrev_b32 v3, 19, v3")
        a("v_mul_u32_u24 v9, 10, v3")
        a("v_sub_u32 v2, v2, v9")
        a("v_mul_lo_u32 v3, v3, s27")
        a("v_lshl_add_u32 v2, v2, 4, v3")
        a(f"v_add_u32 v{VP + i}, s3, v2")
    a("v_lshlrev_b32 v9, 4, v1")
    a("s_lshl_b32 s3, s24, 2")
    a("s_add_u32 s3, s3, s26")
    a("s_mul_i32 s32, s3, 20480")
    a(f"s_add_u32 s32, s32, 0x{WS_O:x}")
    OF = 32
    ACC = 112
    a("s_mul_i32 s33, s26, 40960")
    a("s_mul_i32 s34, s26, 5120")

    def ofrag(ks):
        a(f"s_add_u32 s35, s32, {(ks // 4) * 4096}")
        a(f"buffer_load_dwordx4 {vr(OF + 4 * ks, 4)}, v9, s[{SWS}:{SWS + 3}], s35 offen offset:{(ks % 4) * 1024}")

    for kc in range(5):
        for i in range(5):
            a(f"s_add_u32 m0, s34, {kc * 20480 + 1024 * i}")
            a(f"s_add_u32 s35, s33, {kc * 163840}")
            a(f"buffer_load_dwordx4 v{VP + i}, s[{SWO}:{SWO + 3}], s35 offen lds")
        for ks in range(4 * kc, 4 * kc + 4):
            ofrag(ks)
        if kc == 3:
            a("v_lshrrev_b32 v2, 3, v1")
            a("v_lshlrev_b32 v2, 12, v2")
            a("v_and_b32 v3, 7, v1")
            a("v_lshl_add_u32 v2, v3, 4, v2")
            a("s_mul_i32 s36, s25, 80")
            a("s_lshl_b32 s36, s36, 12")
            a("s_lshl_b32 s37, s24, 7")
            a("s_add_u32 s36, s36, s37")
            a(f"s_add_u32 s36, s36, 0x{WS_Z:x}")
            a("s_lshl_b32 s37, s26, 15")
            a("s_add_u32 s36, s36, s37")
            a("s_lshl_b32 s37, s26, 10")
            a(f"s_add_u32 s37, s37, {K3_Z}")
            for k in range(3):
                if k == 2:
                    a("s_cmp_lt_u32 s26, 2")
                    a("s_cselect_b32 s39, 2, 1")
                    a("s_lshl_b32 s38, s39, 17")
                    a("s_lshl_b32 s39, s39, 12")
                    a("s_add_u32 s38, s38, s36")
                    a("s_add_u32 m0, s37, s39")
                    a("s_nop 0")
                    a(f"buffer_load_dwordx4 v2, s[{SWS}:{SWS + 3}], s38 offen lds")
                else:
                    a(f"s_add_u32 s38, s36, {k * 4 * 32768}")
                    a(f"s_add_u32 m0, s37, {k * 4096}")
                    a("s_nop 0")
                    a(f"buffer_load_dwordx4 v2, s[{SWS}:{SWS + 3}], s38 offen lds")
    a("s_lshl_b32 s36, s24, 6")
    a("s_lshl_b32 s37, s26, 4")
    a("s_add_u32 s36, s36, s37")
    a("s_mul_i32 s40, s36, 1280")
    a("s_mul_i32 s41, s26, 2560")
    a(f"s_add_u32 s41, s41, {K3_X}")
    for i in range(3):
        a(f"s_add_u32 m0, s41, {1024 * i}")
        if i == 2:
            a("v_cmp_gt_u32 vcc, 32, v1")
            a("s_and_saveexec_b64 s[46:47], vcc")
        else:
            a("s_nop 0")
        a(f"buffer_load_dwordx4 v{VP + i}, s[{SX}:{SX + 3}], s40 offen lds")
        if i == 2:
            a("s_mov_b64 exec, s[46:47]")
    a("v_and_b32 v2, 15, v1")
    a("v_lshlrev_b32 v3, 2, v2")
    a("s_lshl_b32 s36, s36, 2")
    a(f"s_add_u32 s36, s36, 0x{WS_G:x}")
    a(f"buffer_load_dword v10, v3, s[{SWS}:{SWS + 3}], s36 offen")
    a("v_lshrrev_b32 v13, 4, v1")
    a("v_lshrrev_b32 v3, 2, v2")
    a("v_lshl_add_u32 v3, v13, 2, v3")
    a("v_and_b32 v14, 3, v1")
    a("v_mul_u32_u24 v11, 160, v3")
    a("v_lshl_add_u32 v11, v14, 3, v11")
    a("v_add_u32 v12, 51200, v11")
    a("v_lshlrev_b32 v15, 7, v3")
    a("v_lshl_add_u32 v15, v14, 3, v15")
    a("s_lshl_b32 s37, s26, 5")
    a(f"s_add_u32 s37, s37, {K3_Z}")
    a("v_add_u32 v15, s37, v15")
    a("v_mul_u32_u24 v16, 160, v2")
    a("v_lshl_add_u32 v16, v13, 3, v16")
    a("v_add_u32 v16, s41, v16")
    for r in range(20):
        a(f"v_mov_b32 v{ACC + r}, 0")
    WF = [132, 152]
    issued_after = []
    seq = []
    for kc in range(5):
        seq += [("c", kc)] * 9
        if kc == 3:
            seq += [("z", 0)] * 3
    seq += [("x", 0)] * 3 + [("g", 0)]
    total = len(seq)

    def allowed(kc):
        last = max(i for i, s in enumerate(seq) if s == ("c", kc))
        return total - 1 - last

    def wreads(ks, st):
        out = []
        b = 11 if ks < 10 else 12
        k2 = ks if ks < 10 else ks - 10
        for j in range(5):
            for T in range(2):
                out.append(f"ds_read_b64_tr_b16 {vr(WF[st] + 4 * j + 2 * T, 2)}, v{b} offset:{k2 * 5120 + T * 2560 + j * 32}")
        return out

    for kc in range(5):
        a(f"s_waitcnt vmcnt({allowed(kc)})")
        a("s_barrier")
        for r in wreads(4 * kc, 0):
            a(r)
        for k in range(4):
            ks = 4 * kc + k
            st = k % 2
            if k < 3:
                for r in wreads(ks + 1, 1 - st):
                    a(r)
                a("s_waitcnt lgkmcnt(10)")
            else:
                a("s_waitcnt lgkmcnt(0)")
            for j in range(5):
                d = ACC + 4 * j
                a(f"v_mfma_f32_16x16x32_bf16 {vr(d, 4)}, {vr(WF[st] + 4 * j, 4)}, {vr(OF + 4 * ks, 4)}, {vr(d, 4)}")
    a("s_waitcnt vmcnt(0)")
    for j in range(5):
        a(f"ds_read_b64 {vr(32 + 2 * j, 2)}, v16 offset:{32 * j}")
        a(f"ds_read_b64_tr_b16 {vr(44 + 2 * j, 2)}, v15 offset:{2048 * j}")
    a("v_sub_f32 v17, 1.0, v10")
    a("s_mov_b32 s42, 0xffff0000")
    a("s_waitcnt lgkmcnt(0)")
    for j in range(5):
        d = ACC + 4 * j
        for r in range(4):
            xs = 32 + 2 * j + r // 2
            zs = 44 + 2 * j + r // 2
            if r % 2 == 0:
                a(f"v_lshlrev_b32 v18, 16, v{xs}")
                a(f"v_lshlrev_b32 v19, 16, v{zs}")
            else:
                a(f"v_and_b32 v18, s42, v{xs}")
                a(f"v_and_b32 v19, s42, v{zs}")
            a("v_mul_f32 v18, v18, v19")
            a("v_mul_f32 v18, v18, v17")
            a(f"v_fma_f32 v{d + r}, v{d + r}, v10, v18")
        a(f"v_cvt_pk_bf16_f32 v{56 + 2 * j}, v{d}, v{d + 1}")
        a(f"v_cvt_pk_bf16_f32 v{57 + 2 * j}, v{d + 2}, v{d + 3}")
        a(f"ds_write_b64 v16, {vr(56 + 2 * j, 2)} offset:{32 * j}")
    a("v_add_u32 v18, s41, v9")
    a("s_waitcnt lgkmcnt(0)")
    for i in range(3):
        a(f"ds_read_b128 {vr(68 + 4 * i, 4)}, v18 offset:{1024 * i}")
    a("v_cmp_gt_u32 vcc, 32, v1")
    a("s_waitcnt lgkmcnt(0)")
    for i in range(2):
        a(f"buffer_store_dwordx4 {vr(68 + 4 * i, 4)}, v{VP + i}, s[{SO}:{SO + 3}], s40 offen")
    a("s_and_saveexec_b64 s[46:47], vcc")
    a(f"buffer_store_dwordx4 {vr(76, 4)}, v{VP + 2}, s[{SO}:{SO + 3}], s40 offen")
    a.label("K3_END")
    a("s_endpgm")
    return name, 172


def main():
    hdr = open("cdna_kernels/" + NAME + ".s.ref").read().split("\n")
    head = [l for l in hdr if l.startswith(";") and "@launch" not in l and "Override" not in l and "grid=ceil" not in l]
    a = Asm()
    descs = []
    for g in (gen_k1, gen_k2, gen_k3):
        nm, vg = g(a)
        descs.append(kernel_desc(nm, vg))
    out = "\n".join(head) + "\n"
    out += f"; @launch kernel=k1_kernel grid=(256,1,1) block=(256,1,1) lds={K1_LDS}\n"
    out += f"; @launch kernel=k2_kernel grid=(256,1,1) block=(768,1,1) lds={K2_LDS}\n"
    out += f"; @launch kernel=k3_kernel grid=(256,1,1) block=(256,1,1) lds={K3_LDS}\n"
    out += '.amdgcn_target "amdgcn-amd-amdhsa--gfx950"\n.text\n'
    out += a.text()
    out += '.section .rodata,"a"\n'
    for d in descs:
        out += ".p2align 6\n" + d
    path = sys.argv[1] if len(sys.argv) > 1 else "cdna_kernels/" + NAME + ".s"
    open(path, "w").write(out)
    print("wrote", path, len(out), "bytes")


if __name__ == "__main__":
    main()
```

```python
import struct, sys, math, os

NAME = "gated_mix__softmax_full_mha__ssm_conv_h3__prompt"
KNAME = NAME + "_kernel"

WS_Q = 0x0
WS_KV = 0x300000
WS_U = 0x900000
WS_Z = 0xC00000
WS_O = 0xF00000
WS_G = 0x1200000
WS_F1 = 0x1210000
WS_F2 = 0x1214000
WS_F3 = 0x1218000
WS_DIAG = 0x1280000
WS_SIZE = 0x1400000

XBYTES = 2048 * 640 * 2
WQKV_BYTES = 640 * 1920 * 2
WO_BYTES = 640 * 640 * 2
OOB = 0x7F000000
DIAG = int(os.environ.get("DIAG", "0"))
POLL_LIMIT = 30000

G_STAGE = 36864
SLOT = 24576
CONVB = 51200
CS = 4160
HB = 7680
CW = HB + 4 * CS + 64
QST = CONVB + 4 * CW
RES = 163584
LDS_TOTAL = 163840
L_WO = RES - 102400
L_X = 2 * SLOT
L_Z = 0
assert QST + 12288 <= RES and L_X + 10240 <= L_WO

SWS = 12


def f32hex(x):
    return "0x%08x" % struct.unpack("<I", struct.pack("<f", x))[0]


class Asm:
    def __init__(self):
        self.L = []
        self.uid = 0

    def __call__(self, s):
        self.L.append("    " + s)

    def label(self, s):
        self.L.append(s + ":")

    def raw(self, s):
        self.L.append(s)

    def newlabel(self, p):
        self.uid += 1
        return f"{p}_{self.uid}"

    def text(self):
        return "\n".join(self.L) + "\n"


def vr(a, n=1):
    return f"v{a}" if n == 1 else f"v[{a}:{a + n - 1}]"


def srd(a, d, base, nbytes):
    a(f"s_mov_b32 s{d}, s{base}")
    a(f"s_and_b32 s{d + 1}, s{base + 1}, 0xffff")
    a(f"s_mov_b32 s{d + 2}, 0x{nbytes:x}")
    a(f"s_mov_b32 s{d + 3}, 0x00020000")


def stamp(a, idx):
    if not DIAG:
        return
    a("s_waitcnt lgkmcnt(0)")
    a("s_memtime s[96:97]")
    a("s_memrealtime s[98:99]")
    a("s_waitcnt lgkmcnt(0)")
    a(f"s_mov_b32 s{80 + 2 * idx}, s96")
    a(f"s_mov_b32 s{81 + 2 * idx}, s98")


def stamp_flush(a):
    if not DIAG:
        return
    a("s_mov_b64 exec, 1")
    a("s_lshl_b32 s96, s2, 4")
    a("s_add_u32 s96, s96, s26")
    a("s_lshl_b32 s96, s96, 6")
    a(f"s_add_u32 s96, s96, 0x{WS_DIAG:x}")
    a("v_mov_b32 v2, 0")
    for i in range(16):
        a(f"v_mov_b32 v3, s{80 + i}")
        a(f"buffer_store_dword v3, v2, s[{SWS}:{SWS + 3}], s96 offen offset:{4 * i}")
        a("s_nop 1")


def poll(a, vaddrs, vtmp, scnt, preloaded=False):
    lp, done, chk = a.newlabel("POLL"), a.newlabel("POLLD"), a.newlabel("POLLC")
    a(f"s_mov_b32 s{scnt}, 0")
    if preloaded:
        a(f"s_branch {chk}")
    a.label(lp)
    for k, va in enumerate(vaddrs):
        a(f"buffer_load_dwordx2 {vr(vtmp + 2 * k, 2)}, v{va}, s[{SWS}:{SWS + 3}], 0 offen sc0 sc1")
    a("s_waitcnt vmcnt(0)")
    a.label(chk)
    a(f"v_cmp_ne_u64 vcc, s[56:57], {vr(vtmp, 2)}")
    for k in range(1, len(vaddrs)):
        a(f"v_cmp_ne_u64 s[58:59], s[56:57], {vr(vtmp + 2 * k, 2)}")
        a("s_or_b64 vcc, vcc, s[58:59]")
    a(f"s_add_u32 s{scnt}, s{scnt}, 1")
    a(f"s_cmp_gt_u32 s{scnt}, {POLL_LIMIT}")
    a(f"s_cbranch_scc1 {done}")
    a("s_cmp_lg_u64 vcc, 0")
    a(f"s_cbranch_scc1 {lp}")
    a.label(done)


def get_nonce(a, vt):
    lp, done = a.newlabel("NON"), a.newlabel("NOND")
    a("s_cmp_eq_u32 s2, 0")
    a(f"s_cbranch_scc1 {done}")
    srd(a, 16, 78, 256)
    a(f"v_mov_b32 v{vt}, 0")
    a("s_mov_b32 s20, 0")
    a.label(lp)
    a(f"buffer_load_dwordx2 {vr(vt + 2, 2)}, v{vt}, s[16:19], 0 offen sc0 sc1")
    a("s_waitcnt vmcnt(0)")
    a(f"v_readfirstlane_b32 s56, v{vt + 2}")
    a(f"v_readfirstlane_b32 s57, v{vt + 3}")
    a("s_add_u32 s20, s20, 1")
    a(f"s_cmp_gt_u32 s20, {POLL_LIMIT}")
    a(f"s_cbranch_scc1 {done}")
    a("s_not_b32 s21, s56")
    a("s_cmp_lg_u32 s21, s57")
    a(f"s_cbranch_scc1 {lp}")
    a.label(done)
    a(f"v_mov_b32 v{vt}, {RES}")
    a(f"v_mov_b32 v{vt + 2}, s56")
    a(f"v_mov_b32 v{vt + 3}, s57")
    a(f"ds_write_b64 v{vt}, {vr(vt + 2, 2)}")
    a("s_waitcnt lgkmcnt(0)")


def nonce_check_or_poll(a, vt, sdbg):
    lp, chk, done = a.newlabel("NON"), a.newlabel("NONC"), a.newlabel("NOND")
    a("s_mov_b32 s58, 0")
    a(f"s_branch {chk}")
    a.label(lp)
    a(f"buffer_load_dwordx2 {vr(vt + 2, 2)}, v{vt}, s[{sdbg}:{sdbg + 3}], 0 offen sc0 sc1")
    a("s_waitcnt vmcnt(0)")
    a.label(chk)
    a(f"v_readfirstlane_b32 s56, v{vt + 2}")
    a(f"v_readfirstlane_b32 s57, v{vt + 3}")
    a("s_add_u32 s58, s58, 1")
    a(f"s_cmp_gt_u32 s58, {POLL_LIMIT}")
    a(f"s_cbranch_scc1 {done}")
    a("s_not_b32 s59, s56")
    a("s_cmp_lg_u32 s59, s57")
    a(f"s_cbranch_scc1 {lp}")
    a.label(done)


def nonce_to_lds(a, vt):
    a(f"v_mov_b32 v{vt}, {RES}")
    a(f"v_mov_b32 v{vt + 2}, s56")
    a(f"v_mov_b32 v{vt + 3}, s57")
    a(f"ds_write_b64 v{vt}, {vr(vt + 2, 2)}")
    a("s_waitcnt lgkmcnt(0)")


def read_nonce(a, vt):
    a(f"v_mov_b32 v{vt}, {RES}")
    a(f"ds_read_b64 {vr(vt + 2, 2)}, v{vt}")
    a("s_waitcnt lgkmcnt(0)")
    a(f"v_readfirstlane_b32 s56, v{vt + 2}")
    a(f"v_readfirstlane_b32 s57, v{vt + 3}")


def write_flag(a, base, sslot, vt):
    a(f"s_lshl_b32 s58, s{sslot}, 6")
    a(f"s_add_u32 s58, s58, 0x{base:x}")
    a(f"v_mov_b32 v{vt}, s58")
    a(f"v_mov_b32 v{vt + 2}, s56")
    a(f"v_mov_b32 v{vt + 3}, s57")
    a("s_mov_b64 exec, 1")
    a(f"buffer_store_dwordx2 {vr(vt + 2, 2)}, v{vt}, s[{SWS}:{SWS + 3}], 0 offen sc0 sc1")
    a("s_mov_b64 exec, -1")


SH = 20
HREG = 124


def h_load(a, sch):
    srd(a, SH, 70, XBYTES)
    a(f"s_lshl_b32 s17, s{sch}, 12")
    a(f"v_lshlrev_b32 v{HREG + 24}, 4, v1")
    for i in range(4):
        a(f"buffer_load_dwordx4 {vr(HREG + 4 * i, 4)}, v{HREG + 24}, s[{SH}:{SH + 3}], s17 offen offset:{1024 * i}")
    for i in range(4):
        a(f"buffer_load_dwordx2 {vr(HREG + 16 + 2 * i, 2)}, v{HREG + 24}, s[{SH}:{SH + 3}], s17 offen offset:{1024 * i + 16}")


def u_dma(a, sch, subase, vt, st0):
    a(f"s_lshl_b32 s{st0}, s{sch}, 6")
    a(f"s_add_u32 s{st0}, s{st0}, 0x{WS_U:x}")
    a(f"s_mov_b32 s{st0 + 1}, 40960")
    for i in range(5):
        a(f"v_add_u32 v{vt}, {64 * i}, v1")
        a(f"v_mul_u32_u24 v{vt + 1}, 0xcccd, v{vt}")
        a(f"v_lshrrev_b32 v{vt + 1}, 18, v{vt + 1}")
        a(f"v_mul_u32_u24 v{vt + 2}, 5, v{vt + 1}")
        a(f"v_sub_u32 v{vt}, v{vt}, v{vt + 2}")
        a(f"v_min_u32 v{vt}, 3, v{vt}")
        a(f"v_mul_lo_u32 v{vt + 1}, v{vt + 1}, s{st0 + 1}")
        a(f"v_lshl_add_u32 v{vt}, v{vt}, 4, v{vt + 1}")
        a(f"s_add_u32 m0, s{subase}, {1024 * i}")
        a("s_nop 0")
        a(f"buffer_load_dwordx4 v{vt}, s[{SWS}:{SWS + 3}], s{st0} offen sc1 lds")


def job_params(a, swave, gemm):
    a("s_lshl_b32 s50, s2, 2")
    a(f"s_add_u32 s50, s50, s{swave}")
    a("s_sub_u32 s51, s50, 640")
    a("s_lshl_b32 s51, s51, 1")
    a("s_sub_u32 s52, s50, 384")
    a("s_cmp_lt_u32 s50, 896")
    a("s_cselect_b32 s51, s51, s52")
    a("s_cselect_b32 s52, 2, 1")
    a("s_cmp_lt_u32 s50, 640")
    a("s_cselect_b32 s50, s50, s51")
    a("s_cselect_b32 s51, 1, 0")
    a("s_cselect_b32 s52, 1, s52")


def conv_run(a):
    VA, VBB, VU = 4, 5, 6
    Y = 32
    FR = [96, 104, 112, 48]
    T1, T2, T3 = 64, 68, 72

    def build(d, n, vw, off):
        dd = [d, d + 1, d + 2, d + 3, n, n + 1]
        for i in range(4):
            a(f"v_alignbit_b32 v{T1 + i}, v{dd[i + 1]}, v{dd[i]}, 16")
            a(f"v_mov_b32 v{T2 + i}, v{dd[i + 1]}")
            a(f"v_alignbit_b32 v{T3 + i}, v{dd[i + 2]}, v{dd[i + 1]}, 16")
        a(f"ds_write_b128 v{vw}, {vr(d, 4)} offset:{off}")
        a(f"ds_write_b128 v{vw}, {vr(T1, 4)} offset:{off + CS}")
        a(f"ds_write_b128 v{vw}, {vr(T2, 4)} offset:{off + 2 * CS}")
        a(f"ds_write_b128 v{vw}, {vr(T3, 4)} offset:{off + 3 * CS}")

    a(f"s_mul_i32 s16, s26, {CW}")
    a(f"s_add_u32 s16, s16, {CONVB}")
    a("v_and_b32 v2, 31, v1")
    a("v_lshrrev_b32 v3, 5, v1")
    a("v_lshlrev_b32 v9, 4, v1")
    a("v_add_u32 v9, s16, v9")
    for r in range(4):
        a(f"v_mov_b32 v{12 + r}, 0")
    a("ds_write_b128 v9, v[12:15] offset:5120")
    a("ds_write_b128 v9, v[12:15] offset:6144")
    a("s_mov_b32 exec_hi, 0")
    a("ds_write_b128 v9, v[12:15] offset:7168")
    a("s_mov_b64 exec, -1")
    a("s_mov_b32 s55, 0")
    a.label("CV_JOB")
    a("s_lshr_b32 s17, s50, 1")
    a("s_lshl_b32 s17, s17, 2")
    a("s_load_dword s19, s[72:73], s17")
    a(f"s_add_u32 s17, s16, {HB}")
    a("v_add_u32 v10, 1, v2")
    a("v_and_b32 v11, 3, v10")
    a(f"v_mul_u32_u24 v11, {CS}, v11")
    a("v_lshrrev_b32 v10, 2, v10")
    a("v_lshl_add_u32 v10, v10, 3, v11")
    a("v_lshl_add_u32 v10, v3, 4, v10")
    a(f"v_add_u32 v{VA}, s17, v10")
    a("s_cmp_eq_u32 s51, 1")
    a("s_cselect_b32 s18, 31, 63")
    a("s_cselect_b32 s53, 8, 4")
    a("v_sub_u32 v10, s18, v2")
    a("v_mul_u32_u24 v10, 80, v10")
    a("v_add_u32 v10, s16, v10")
    a(f"v_lshl_add_u32 v{VBB}, v3, 4, v10")
    a("v_lshlrev_b32 v11, 3, v3")
    a("v_sub_u32 v10, v10, v11")
    a(f"v_add_u32 v{VU}, 8, v10")
    for r in range(16):
        a(f"v_mov_b32 v{Y + r}, 0")
    a("s_waitcnt vmcnt(5)")
    a("s_cmp_lg_u32 s55, 0")
    a("s_cbranch_scc1 CV_HW")
    a("s_waitcnt vmcnt(0)")
    a.label("CV_HW")
    a(f"v_readfirstlane_b32 s17, v{HREG}")
    a(f"v_readfirstlane_b32 s18, v{HREG + 1}")
    a("v_cmp_eq_u32 vcc, 3, v1")
    a("v_mov_b32 v16, s17")
    a("v_mov_b32 v17, s18")
    a("v_cndmask_b32 v16, 0, v16, vcc")
    a("v_cndmask_b32 v17, 0, v17, vcc")
    a("s_mov_b64 exec, 15")
    build(12, 16, 9, HB)
    a("s_mov_b64 exec, -1")
    for i in range(4):
        build(HREG + 4 * i, HREG + 16 + 2 * i, 9, HB + 64 + 1024 * i)
    a("s_cmp_lt_u32 s52, 2")
    a("s_cbranch_scc1 CV_NOH")
    a("s_add_u32 s18, s50, 1")
    h_load(a, 18)
    a.label("CV_NOH")
    a("s_cmp_lg_u32 s55, 0")
    a("s_cbranch_scc1 CV_UOWN")
    a("s_lshl_b32 s17, s26, 2")
    a(f"s_add_u32 s17, s17, {RES + 32}")
    a("v_mov_b32 v10, s17")
    a("s_mov_b32 s17, 0")
    a.label("CV_UW")
    a("ds_read_b32 v11, v10")
    a("s_waitcnt lgkmcnt(0)")
    a("v_readfirstlane_b32 s18, v11")
    a("s_add_u32 s17, s17, 1")
    a(f"s_cmp_gt_u32 s17, {POLL_LIMIT * 8}")
    a("s_cbranch_scc1 CV_GO")
    a("s_cmp_eq_u32 s18, 0")
    a("s_cbranch_scc1 CV_UW")
    a("s_branch CV_GO")
    a.label("CV_UOWN")
    a("s_waitcnt vmcnt(0)")
    a.label("CV_GO")
    stamp(a, 1)

    def rd(s):
        st = s % 4
        bo = (s // 2) * 80 + (s % 2) * 32
        return [f"ds_read_b64 {vr(FR[st], 2)}, v{VA} offset:{s * 32}",
                f"ds_read_b64 {vr(FR[st] + 2, 2)}, v{VA} offset:{s * 32 + 8}",
                f"ds_read_b128 {vr(FR[st] + 4, 4)}, v{VBB} offset:{bo}"]
    for s in range(3):
        for r in rd(s):
            a(r)
    a.label("CV_SEG")
    for s in range(16):
        for r in rd(s + 3):
            a(r)
        a("s_waitcnt lgkmcnt(9)")
        st = s % 4
        a(f"v_mfma_f32_32x32x16_bf16 {vr(Y, 16)}, {vr(FR[st], 4)}, {vr(FR[st] + 4, 4)}, {vr(Y, 16)}")
    a(f"v_add_u32 v{VBB}, 640, v{VBB}")
    a(f"v_add_u32 v{VA}, 512, v{VA}")
    a("s_sub_u32 s53, s53, 1")
    a("s_cmp_lg_u32 s53, 0")
    a("s_cbranch_scc1 CV_SEG")
    for q in range(4):
        a(f"ds_read_b64 {vr(64 + 2 * q, 2)}, v{VU} offset:{48 - 16 * q}")
    a("s_and_b32 s17, s50, 1")
    a("s_lshl_b32 s18, s19, 16")
    a("s_and_b32 s19, s19, 0xffff0000")
    a("s_cmp_eq_u32 s17, 0")
    a("s_cselect_b32 s19, s18, s19")
    a("v_lshlrev_b32 v11, 6, v2")
    a("v_lshl_add_u32 v11, v3, 3, v11")
    a("s_lshl_b32 s17, s50, 12")
    a("s_lshl_b32 s18, s51, 11")
    a("s_add_u32 s17, s17, s18")
    a(f"s_add_u32 s17, s17, 0x{WS_Z:x}")
    a("s_mov_b32 s18, 0xffff0000")
    a("s_waitcnt lgkmcnt(0)")
    a("s_nop 4")
    for q in range(4):
        u = 64 + 2 * q
        a(f"v_and_b32 v16, s18, v{u + 1}")
        a(f"v_lshlrev_b32 v17, 16, v{u + 1}")
        a(f"v_and_b32 v18, s18, v{u}")
        a(f"v_lshlrev_b32 v19, 16, v{u}")
        for r in range(4):
            a(f"v_fmac_f32 v{Y + 4 * q + r}, s19, v{16 + r}")
        d = 72 + 2 * q
        a(f"v_cvt_pk_bf16_f32 v{d}, v{Y + 4 * q}, v{Y + 4 * q + 1}")
        a(f"v_cvt_pk_bf16_f32 v{d + 1}, v{Y + 4 * q + 2}, v{Y + 4 * q + 3}")
        a(f"buffer_store_dwordx2 {vr(d, 2)}, v11, s[{SWS}:{SWS + 3}], s17 offen offset:{16 * q} sc1")
    a("s_sub_u32 s52, s52, 1")
    a("s_cmp_eq_u32 s52, 0")
    a("s_cbranch_scc1 CV_DONE")
    a("s_add_u32 s50, s50, 1")
    a("s_mov_b32 s55, 1")
    u_dma(a, 50, 16, 20, 17)
    a("s_branch CV_JOB")
    a.label("CV_DONE")


def gen(a):
    a.raw(f".globl {KNAME}")
    a.raw(".p2align 8")
    a.raw(f".type {KNAME},@function")
    a.label(KNAME)
    a("s_cmp_ge_u32 s2, 256")
    a("s_cbranch_scc1 L_END")
    a("s_load_dwordx4 s[4:7], s[0:1], 0")
    a("s_load_dwordx2 s[8:9], s[0:1], 96")
    a("s_load_dwordx2 s[60:61], s[0:1], 16")
    a("s_load_dwordx8 s[64:71], s[0:1], 32")
    a("s_load_dwordx4 s[72:75], s[0:1], 64")
    a("s_load_dwordx4 s[76:79], s[0:1], 80")
    a("v_and_b32 v1, 63, v0")
    a("v_lshrrev_b32 v2, 6, v0")
    a("s_nop 0")
    a("v_readfirstlane_b32 s26, v2")
    a("s_mov_b32 s56, 0")
    a("s_mov_b32 s57, 0")
    if DIAG:
        for i in range(16):
            a(f"s_mov_b32 s{80 + i}, 0")
    a("s_waitcnt lgkmcnt(0)")
    srd(a, SWS, 8, WS_SIZE)
    stamp(a, 0)
    a("s_cmp_lg_u32 s2, 0")
    a("s_cbranch_scc1 L_NOPUB")
    a("s_cmp_lg_u32 s26, 8")
    a("s_cbranch_scc1 L_NOPUB")
    a("s_memrealtime s[56:57]")
    srd(a, 16, 78, 256)
    a("s_waitcnt lgkmcnt(0)")
    a("s_or_b32 s56, s56, 1")
    a("s_not_b32 s57, s56")
    a("v_mov_b32 v2, 0")
    a("v_mov_b32 v4, s56")
    a("v_mov_b32 v5, s57")
    a("s_mov_b64 exec, 1")
    a("buffer_store_dwordx2 v[4:5], v2, s[16:19], 0 offen sc0 sc1")
    a("s_mov_b64 exec, -1")
    a.label("L_NOPUB")
    a(f"v_mov_b32 v2, {RES + 8}")
    a("v_mov_b32 v4, 0")
    a("v_mov_b32 v5, 0")
    a("ds_write_b64 v2, v[4:5]")
    a("ds_write_b64 v2, v[4:5] offset:8")
    a("ds_write_b64 v2, v[4:5] offset:24")
    a("ds_write_b64 v2, v[4:5] offset:32")
    a("s_cmp_ge_u32 s2, 192")
    a("s_cbranch_scc1 P1_E")
    a("s_and_b32 s3, s2, 7")
    a("s_lshr_b32 s10, s2, 3")
    a("s_and_b32 s24, s3, 3")
    a("s_lshl_b32 s24, s24, 2")
    a("s_and_b32 s11, s10, 3")
    a("s_add_u32 s24, s24, s11")
    a("s_lshr_b32 s25, s3, 2")
    a("s_mul_i32 s25, s25, 6")
    a("s_lshr_b32 s10, s10, 2")
    a("s_add_u32 s25, s25, s10")
    a("s_lshl_b32 s27, s24, 7")
    a("s_lshr_b32 s28, s25, 2")
    a("s_and_b32 s29, s25, 3")
    a("s_lshl_b32 s29, s29, 3")
    a("s_lshl_b32 s55, s25, 4")
    a("s_add_u32 s55, s55, s24")
    a("s_cmp_lt_u32 s26, 8")
    a("s_cbranch_scc1 P1_COMP")
    SX, SW = 16, 20
    srd(a, SX, 4, XBYTES)
    srd(a, SW, 6, WQKV_BYTES)
    a("s_mul_i32 s34, s11, 3")
    a("s_lshl_b32 s10, s10, 1")
    a("s_add_u32 s34, s34, s10")
    a("s_cmp_ge_u32 s34, 10")
    a("s_cselect_b32 s10, 10, 0")
    a("s_sub_u32 s34, s34, s10")
    a("s_sub_u32 s35, s26, 8")
    VXO, VWO = 4, 8
    a("v_lshrrev_b32 v2, 3, v1")
    a("v_and_b32 v3, 7, v1")
    a("v_lshrrev_b32 v13, 4, v1")
    a("s_lshl_b32 s10, s35, 5")
    a("s_add_u32 s10, s10, s27")
    a("v_add_u32 v2, s10, v2")
    a("s_movk_i32 s11, 1280")
    a("v_mul_lo_u32 v2, v2, s11")
    a("v_xor_b32 v14, v3, v13")
    a("v_xor_b32 v15, 4, v14")
    a("v_lshlrev_b32 v14, 4, v14")
    a("v_lshlrev_b32 v15, 4, v15")
    for i in range(4):
        a(f"v_add_u32 v{VXO + i}, {i * 8 * 1280 - 1024 * i}, v2")
        a(f"v_add_u32 v{VXO + i}, v{VXO + i}, v{14 + (i & 1)}")
    a("s_mul_i32 s10, s25, 320")
    a("s_mul_i32 s11, s35, 61440")
    a("s_add_u32 s10, s10, s11")
    a("s_movk_i32 s11, 3840")
    for i in range(5):
        a(f"v_add_u32 v2, {64 * i}, v1")
        a("v_mul_u32_u24 v3, 0xcccd, v2")
        a("v_lshrrev_b32 v3, 20, v3")
        a("v_mul_u32_u24 v14, 20, v3")
        a("v_sub_u32 v2, v2, v14")
        a("v_lshrrev_b32 v14, 3, v3")
        a("v_and_b32 v14, 1, v14")
        a("v_lshlrev_b32 v14, 1, v14")
        a("v_xor_b32 v2, v2, v14")
        a("v_lshlrev_b32 v2, 4, v2")
        a("v_mul_lo_u32 v3, v3, s11")
        a("v_add3_u32 v2, v2, v3, s10")
        comp = 1024 * i if i < 4 else 0
        if comp:
            a(f"v_subrev_u32 v{VWO + i}, {comp}, v2")
        else:
            a(f"v_mov_b32 v{VWO + i}, v2")
    a("s_lshl_b32 s42, s35, 12")
    a("s_mul_i32 s43, s35, 5120")
    a("s_add_u32 s43, s43, 16384")
    a("s_mov_b32 s32, 0")
    a("s_mov_b32 s33, 0")

    def issue_stage():
        a("s_lshl_b32 s30, s34, 7")
        a("s_mul_i32 s31, s34, 245760")
        a("s_add_u32 m0, s32, s42")
        a("s_add_u32 s34, s34, 1")
        for i in range(4):
            o = f" offset:{1024 * i}" if i else ""
            a(f"buffer_load_dwordx4 v{VXO + i}, s[{SX}:{SX + 3}], s30 offen{o} lds")
        a("s_add_u32 m0, s32, s43")
        a("s_cmp_ge_u32 s34, 10")
        for i in range(4):
            o = f" offset:{1024 * i}" if i else ""
            a(f"buffer_load_dwordx4 v{VWO + i}, s[{SW}:{SW + 3}], s31 offen{o} lds")
        a("s_cselect_b32 s34, 0, s34")
        a("s_add_u32 m0, m0, 4096")
        a(f"s_add_u32 s32, s32, {G_STAGE}")
        a(f"buffer_load_dwordx4 v{VWO + 4}, s[{SW}:{SW + 3}], s31 offen lds")
        a(f"s_cmp_ge_u32 s32, {4 * G_STAGE}")
        a("s_cselect_b32 s32, 0, s32")

    srd(a, 36, 78, 256)
    a("v_mov_b32 v16, 0")
    a("v_lshlrev_b32 v20, 6, v1")
    a(f"v_add_u32 v20, 0x{WS_F1 + 192 * 64:x}, v20")
    issue_stage()
    issue_stage()
    a("s_waitcnt vmcnt(9) lgkmcnt(0)")
    a("s_barrier")
    stamp(a, 1)
    issue_stage()
    issue_stage()
    a("buffer_load_dwordx2 v[18:19], v16, s[36:39], 0 offen sc0 sc1")
    a("s_mov_b32 s33, 4")
    a.label("P1_LLOOP")
    a("s_waitcnt vmcnt(18)")
    a("s_barrier")
    issue_stage()
    a("s_add_u32 s33, s33, 1")
    a("s_cmp_lt_u32 s33, 10")
    a("s_cbranch_scc1 P1_LLOOP")
    a("s_waitcnt vmcnt(18)")
    a("s_barrier")
    nonce_check_or_poll(a, 16, 36)
    a("s_cmp_lg_u32 s26, 8")
    a("s_cbranch_scc1 P1_LNON")
    nonce_to_lds(a, 16)
    a.label("P1_LNON")
    a("s_waitcnt vmcnt(9)")
    a("s_barrier")
    a("s_waitcnt vmcnt(0)")
    a("s_barrier")
    job_params(a, 35, True)
    a("s_barrier")
    stamp(a, 2)
    a(f"buffer_load_dwordx2 v[22:23], v20, s[{SWS}:{SWS + 3}], 0 offen sc0 sc1")
    a("s_barrier")
    a("s_barrier")
    a("s_waitcnt vmcnt(0)")
    a.label("P1_HU")
    poll(a, [20], 22, 10, preloaded=True)
    a("s_sub_u32 s35, s26, 8")
    a(f"s_mul_i32 s16, s35, {CW}")
    a(f"s_add_u32 s16, s16, {CONVB}")
    u_dma(a, 50, 16, 4, 17)
    a("s_lshl_b32 s17, s35, 2")
    a(f"s_add_u32 s17, s17, {RES + 32}")
    a("v_mov_b32 v4, s17")
    a("v_mov_b32 v5, 1")
    a("s_waitcnt vmcnt(0)")
    a("ds_write_b32 v4, v5")
    stamp(a, 3)
    a("s_branch P2_COMMON")

    a.label("P1_COMP")
    VXB0, VXB1, VWE0, VWO0 = 16, 17, 18, 19
    VXC0, VXC1, VWEC, VWOC = 20, 21, 22, 23
    X0, W0, X1, W1, ACC = 28, 36, 56, 64, 84
    a("v_lshrrev_b32 v13, 4, v1")
    a("s_and_b32 s10, s26, 3")
    a("s_lshr_b32 s11, s26, 2")
    a("v_and_b32 v2, 15, v1")
    a("v_lshrrev_b32 v3, 1, v2")
    a("v_xor_b32 v3, v3, v13")
    a("s_lshl_b32 s35, s10, 5")
    a("v_add_u32 v14, s35, v2")
    a("v_lshlrev_b32 v14, 7, v14")
    a(f"v_lshl_add_u32 v{VXB0}, v3, 4, v14")
    a("v_xor_b32 v3, 4, v3")
    a(f"v_lshl_add_u32 v{VXB1}, v3, 4, v14")
    a("v_lshrrev_b32 v3, 2, v2")
    a("v_lshl_add_u32 v3, v13, 3, v3")
    a("v_mul_u32_u24 v3, 320, v3")
    a("v_and_b32 v14, 3, v1")
    a("v_lshl_add_u32 v3, v14, 3, v3")
    a("s_mul_i32 s35, s11, 160")
    a("s_add_u32 s35, s35, 16384")
    a("v_add_u32 v3, s35, v3")
    a("v_and_b32 v14, 1, v13")
    a("v_lshlrev_b32 v14, 5, v14")
    a("v_add_u32 v15, v3, v14")
    a("v_sub_u32 v14, v3, v14")
    a("s_cmp_eq_u32 s11, 0")
    a("s_cselect_b64 vcc, -1, 0")
    a("s_nop 1")
    a(f"v_cndmask_b32 v{VWE0}, v14, v15, vcc")
    a(f"v_cndmask_b32 v{VWO0}, v15, v14, vcc")
    for r in range(40):
        a(f"v_mov_b32 v{ACC + r}, 0")

    def reads(ks, XS, WS_):
        xb = VXC0 if ks == 0 else VXC1
        x = [f"ds_read_b128 {vr(XS + 4 * i, 4)}, v{xb} offset:{i * 2048}" for i in range(2)]
        w = []
        for j in range(5):
            wb = VWEC if j % 2 == 0 else VWOC
            for T in range(2):
                w.append(f"ds_read_b64_tr_b16 {vr(WS_ + 4 * j + 2 * T, 2)}, v{wb} offset:{ks * 10240 + T * 1280 + j * 32}")
        return [x[0], w[0], w[1], x[1]] + w[2:]

    def mfmas(XS, WS_, vtype):
        m = []
        for j in range(5):
            for i in range(2):
                d = ACC + (i * 5 + j) * 4
                if vtype:
                    m.append(f"v_mfma_f32_16x16x32_bf16 {vr(d, 4)}, {vr(XS + 4 * i, 4)}, {vr(WS_ + 4 * j, 4)}, {vr(d, 4)}")
                else:
                    m.append(f"v_mfma_f32_16x16x32_bf16 {vr(d, 4)}, {vr(WS_ + 4 * j, 4)}, {vr(XS + 4 * i, 4)}, {vr(d, 4)}")
        return m

    def set_bases():
        a(f"v_add_u32 v{VXC0}, s33, v{VXB0}")
        a(f"v_add_u32 v{VXC1}, s33, v{VXB1}")
        a(f"v_add_u32 v{VWEC}, s33, v{VWE0}")
        a(f"v_add_u32 v{VWOC}, s33, v{VWO0}")

    def interleave(m, r):
        k = 0
        for i, mm in enumerate(m):
            a(mm)
            n = 2 if i < 2 else 1
            for _ in range(n):
                if k < len(r):
                    a(r[k]); k += 1
        while k < len(r):
            a(r[k]); k += 1

    a("s_mov_b32 s33, 0")
    a("s_mov_b32 s34, 0")
    set_bases()
    job_params(a, 26, True)
    a("s_cmp_ge_u32 s26, 4")
    a("s_cbranch_scc1 P1_NOH")
    h_load(a, 50)
    a.label("P1_NOH")
    a("s_waitcnt lgkmcnt(0)")
    a("s_barrier")
    stamp(a, 1)
    for r in reads(0, X0, W0):
        a(r)
    a("s_cmp_eq_u32 s28, 2")
    a("s_cbranch_scc1 P1_LOOP_V")
    for vtype in (0, 1):
        lbl = "P1_LOOP_V" if vtype else "P1_LOOP_QK"
        a.raw(".p2align 6")
        a.label(lbl)
        a("s_waitcnt lgkmcnt(0)")
        interleave(mfmas(X0, W0, vtype), reads(1, X1, W1))
        a(f"s_add_u32 s33, s33, {G_STAGE}")
        a(f"s_cmp_ge_u32 s33, {4 * G_STAGE}")
        a("s_cselect_b32 s33, 0, s33")
        a("s_waitcnt lgkmcnt(0)")
        a("s_barrier")
        set_bases()
        interleave(mfmas(X1, W1, vtype), reads(0, X0, W0))
        a("s_add_u32 s34, s34, 1")
        a("s_cmp_lt_u32 s34, 10")
        a(f"s_cbranch_scc1 {lbl}")
        a("s_waitcnt lgkmcnt(0)")
        a("s_barrier")
        stamp(a, 2)

        a("s_mul_i32 s35, s11, 80")
        OFFJ = 28
        if not vtype:
            a("s_lshl_b32 s44, s10, 5")
            a("v_add_u32 v3, s44, v2")
            a("v_mul_u32_u24 v3, 48, v3")
            a("v_lshlrev_b32 v14, 2, v13")
            a("v_add_u32 v14, s35, v14")
            for j in range(5):
                a(f"v_add_u32 v15, {16 * j}, v14")
                a("v_mul_u32_u24 v24, 0xcccd, v15")
                a("v_lshrrev_b32 v24, 20, v24")
                a("v_mul_u32_u24 v25, 20, v24")
                a("v_sub_u32 v25, v15, v25")
                a("v_mul_u32_u24 v24, 6144, v24")
                a("v_lshl_add_u32 v24, v25, 1, v24")
                a(f"v_add_u32 v{OFFJ + j}, v24, v3")
            qs = math.log2(math.e) / math.sqrt(20.0)
            a(f"s_mov_b32 s44, {f32hex(qs)}")
            a("s_cmp_eq_u32 s28, 0")
            a("s_cselect_b32 s44, s44, 1.0")
            for i in range(2):
                for j in range(5):
                    d = ACC + (i * 5 + j) * 4
                    t = 36 + ((i * 5 + j) % 4) * 2
                    for r in range(4):
                        a(f"v_mul_f32 v{d + r}, s44, v{d + r}")
                    a(f"v_cvt_pk_bf16_f32 v{t}, v{d}, v{d + 1}")
                    a(f"v_cvt_pk_bf16_f32 v{t + 1}, v{d + 2}, v{d + 3}")
                    a(f"ds_write_b64 v{OFFJ + j}, {vr(t, 2)} offset:{768 * i}")
            a("s_movk_i32 s45, 6144")
            a("s_mul_i32 s46, s29, 98304")
            a("s_mul_i32 s48, s27, 48")
            a("s_add_u32 s46, s46, s48")
            a(f"s_add_u32 s46, s46, 0x{WS_Q:x}")
            a("s_mul_i32 s48, s29, 196608")
            a("s_lshr_b32 s49, s27, 8")
            a("s_mul_i32 s49, s49, 24576")
            a("s_add_u32 s48, s48, s49")
            a("s_and_b32 s49, s27, 255")
            a("s_mul_i32 s49, s49, 48")
            a("s_add_u32 s48, s48, s49")
            a(f"s_add_u32 s48, s48, 0x{WS_KV:x}")
            a("s_cmp_eq_u32 s28, 0")
            a("s_cselect_b32 s46, s46, s48")
            a("s_mov_b32 s48, 196608")
            a("s_cselect_b32 s47, 98304, s48")
            a("s_branch P1_COPY")
        else:
            a("v_lshrrev_b32 v3, 1, v13")
            a("s_lshl_b32 s44, s10, 2")
            a("v_add_u32 v3, s44, v3")
            a("v_mul_u32_u24 v3, 336, v3")
            a("v_and_b32 v14, 1, v13")
            a("v_lshl_add_u32 v3, v14, 3, v3")
            a("v_add_u32 v14, s35, v2")
            for j in range(5):
                a(f"v_add_u32 v15, {16 * j}, v14")
                a("v_mul_u32_u24 v24, 0xcccd, v15")
                a("v_lshrrev_b32 v24, 20, v24")
                a("v_mul_u32_u24 v25, 20, v24")
                a("v_sub_u32 v25, v15, v25")
                a("v_mul_u32_u24 v24, 5376, v24")
                a("v_lshl_add_u32 v24, v25, 4, v24")
                a(f"v_add_u32 v{OFFJ + j}, v24, v3")
            for i in range(2):
                for j in range(5):
                    d = ACC + (i * 5 + j) * 4
                    t = 36 + ((i * 5 + j) % 4) * 2
                    a(f"v_cvt_pk_bf16_f32 v{t}, v{d}, v{d + 1}")
                    a(f"v_cvt_pk_bf16_f32 v{t + 1}, v{d + 2}, v{d + 3}")
                    a(f"ds_write_b64 v{OFFJ + j}, {vr(t, 2)} offset:{672 * i}")
            a("s_mul_i32 s44, s26, 5376")
            a("v_mul_u32_u24 v14, 336, v1")
            a("v_add_u32 v3, s44, v14")
            for r in range(4):
                a(f"v_mov_b32 v{44 + r}, 0x3f803f80")
            a("s_mov_b64 exec, 0xffff")
            a("ds_write_b128 v3, v[44:47] offset:320")
            a("s_mov_b64 exec, -1")
            a("s_movk_i32 s45, 5376")
            a("s_mul_i32 s46, s29, 196608")
            a("s_lshr_b32 s49, s27, 8")
            a("s_mul_i32 s49, s49, 24576")
            a("s_add_u32 s46, s46, s49")
            a("s_and_b32 s49, s27, 255")
            a("s_mul_i32 s49, s49, 42")
            a("s_add_u32 s46, s46, s49")
            a(f"s_add_u32 s46, s46, 0x{WS_KV + 12288:x}")
            a("s_mov_b32 s47, 196608")
    a.label("P1_COPY")
    a("s_waitcnt lgkmcnt(0)")
    a("s_barrier")
    a("s_cmp_lt_u32 s26, 4")
    a("s_cbranch_scc1 P15_CONV")
    a("v_lshlrev_b32 v2, 4, v1")
    a("s_sub_u32 s10, s26, 4")
    a("s_lshl_b32 s10, s10, 1")
    a("s_mul_i32 s11, s10, s45")
    a("s_mul_i32 s48, s10, s47")
    a("s_add_u32 s46, s46, s48")
    a("v_add_u32 v3, s11, v2")
    a("v_add_u32 v14, s45, v3")
    a("s_add_u32 s48, s46, s47")
    a("s_add_u32 s49, s46, 4096")
    a("s_add_u32 s53, s48, 4096")
    for h in range(2):
        for i in range(6):
            a(f"ds_read_b128 {vr(28 + (h * 6 + i) * 4, 4)}, v{3 if h == 0 else 14} offset:{1024 * i}")
    a("v_add_u32 v15, 5120, v2")
    a("v_cmp_gt_u32 vcc, s45, v15")
    for h in range(2):
        for i in range(5):
            a(f"s_waitcnt lgkmcnt({11 - (h * 6 + i)})")
            so = (46 if h == 0 else 48) if i < 4 else (49 if h == 0 else 53)
            a(f"buffer_store_dwordx4 {vr(28 + (h * 6 + i) * 4, 4)}, v2, s[{SWS}:{SWS + 3}], s{so} offen offset:{1024 * (i % 4)} sc1")
    a("s_waitcnt lgkmcnt(0)")
    a("s_and_saveexec_b64 s[50:51], vcc")
    a(f"buffer_store_dwordx4 {vr(28 + 5 * 4, 4)}, v2, s[{SWS}:{SWS + 3}], s49 offen offset:1024 sc1")
    a(f"buffer_store_dwordx4 {vr(28 + 11 * 4, 4)}, v2, s[{SWS}:{SWS + 3}], s53 offen offset:1024 sc1")
    a("s_mov_b64 exec, s[50:51]")
    a("s_branch P1_SIGNAL")

    a.label("P1_E")
    SK, SV, SSH = 16, 20, 44
    a("s_sub_u32 s24, s2, 192")
    a("s_mov_b32 s55, s2")
    a("s_cmp_ge_u32 s26, 10")
    a("s_cbranch_scc1 P1_E_B1")
    srd(a, SK, 64, XBYTES)
    srd(a, SV, 66, XBYTES)
    srd(a, SSH, 68, 640 * 8)
    a("s_lshl_b32 s25, s24, 5")
    a("s_movk_i32 s27, 5120")
    a("s_movk_i32 s28, 1280")
    KR, VR_, WB, T = 16, 38, 56, 64
    a("v_mul_u32_u24 v3, 0xcccd, v0")
    a("v_lshrrev_b32 v3, 23, v3")
    a("v_mul_u32_u24 v4, 160, v3")
    a("v_sub_u32 v4, v0, v4")
    a("v_lshlrev_b32 v5, 3, v3")
    a("v_add_u32 v5, s25, v5")
    a("v_mul_lo_u32 v6, v5, s28")
    a("v_lshl_add_u32 v6, v4, 3, v6")
    a("v_subrev_u32 v7, 3840, v6")
    a("v_cmp_eq_u32 vcc, 0, v5")
    a(f"v_mov_b32 v8, 0x{OOB:x}")
    a("v_lshlrev_b32 v9, 5, v4")
    a("v_cndmask_b32 v7, v7, v8, vcc")
    a("v_mul_u32_u24 v10, 320, v4")
    a("v_sub_u32 v11, 3, v3")
    a("v_lshl_add_u32 v54, v11, 4, v10")
    for r in range(3):
        a(f"buffer_load_dwordx2 {vr(KR + 2 * r, 2)}, v7, s[{SK}:{SK + 3}], 0 offen offset:{1280 * r}")
    for r in range(8):
        so = "0" if r < 4 else "s27"
        a(f"buffer_load_dwordx2 {vr(KR + 6 + 2 * r, 2)}, v6, s[{SK}:{SK + 3}], {so} offen offset:{1280 * (r % 4)}")
    for r in range(8):
        so = "0" if r < 4 else "s27"
        a(f"buffer_load_dwordx2 {vr(VR_ + 2 * r, 2)}, v6, s[{SV}:{SV + 3}], {so} offen offset:{1280 * (r % 4)}")
    a(f"buffer_load_dwordx4 {vr(WB, 4)}, v9, s[{SSH}:{SSH + 3}], 0 offen")
    a(f"buffer_load_dwordx4 {vr(WB + 4, 4)}, v9, s[{SSH}:{SSH + 3}], 0 offen offset:16")
    stamp(a, 1)
    a("s_mov_b32 s29, 0xffff0000")
    job_params(a, 26, False)
    a("s_waitcnt vmcnt(0)")
    a("s_cmp_ge_u32 s26, 4")
    a("s_cbranch_scc1 P1_E_NOH")
    h_load(a, 50)
    a.label("P1_E_NOH")
    for ch in range(4):
        KF, WF, UO = T, T + 11, 4
        dw, hi = ch // 2, ch % 2
        for r in range(11):
            if hi == 0:
                a(f"v_lshlrev_b32 v{KF + r}, 16, v{KR + 2 * r + dw}")
            else:
                a(f"v_and_b32 v{KF + r}, s29, v{KR + 2 * r + dw}")
        w = WB + 2 * ch
        a(f"v_lshlrev_b32 v{WF}, 16, v{w}")
        a(f"v_and_b32 v{WF + 1}, s29, v{w}")
        a(f"v_lshlrev_b32 v{WF + 2}, 16, v{w + 1}")
        a(f"v_and_b32 v{WF + 3}, s29, v{w + 1}")
        for r in range(8):
            a(f"v_mul_f32 v{UO + r}, v{WF + 3}, v{KF + r}")
            a(f"v_fmac_f32 v{UO + r}, v{WF + 2}, v{KF + r + 1}")
            a(f"v_fmac_f32 v{UO + r}, v{WF + 1}, v{KF + r + 2}")
            a(f"v_fmac_f32 v{UO + r}, v{WF}, v{KF + r + 3}")
            if hi == 0:
                a(f"v_lshlrev_b32 v{T + 15}, 16, v{VR_ + 2 * r + dw}")
            else:
                a(f"v_and_b32 v{T + 15}, s29, v{VR_ + 2 * r + dw}")
            a(f"v_mul_f32 v{UO + r}, v{UO + r}, v{T + 15}")
        for d in range(4):
            a(f"v_cvt_pk_bf16_f32 v{12 + d}, v{UO + 7 - 2 * d}, v{UO + 6 - 2 * d}")
        a(f"ds_write_b128 v54, v[12:15] offset:{80 * ch}")
        a("s_nop 0")
    a("s_waitcnt lgkmcnt(0)")
    a.label("P1_E_B1")
    a("s_cmp_lt_u32 s26, 8")
    a("s_cbranch_scc1 P1_E_NON")
    srd(a, 36, 78, 256)
    a("v_mov_b32 v16, 0")
    a("v_mov_b32 v18, 0")
    a("v_mov_b32 v19, 0")
    nonce_check_or_poll(a, 16, 36)
    nonce_to_lds(a, 16)
    a.label("P1_E_NON")
    a("s_barrier")
    stamp(a, 2)
    a("s_cmp_lt_u32 s26, 4")
    a("s_cbranch_scc1 P15_CONV")
    a("s_cmp_lt_u32 s26, 8")
    a("s_cbranch_scc1 P1_E_COPY")
    a("s_sub_u32 s35, s26, 8")
    job_params(a, 35, False)
    a("v_lshlrev_b32 v20, 6, v1")
    a(f"v_add_u32 v20, 0x{WS_F1 + 192 * 64:x}, v20")
    a("v_mov_b32 v22, 0")
    a("v_mov_b32 v23, 0")
    a("s_branch P1_HU")
    a.label("P1_E_COPY")
    a("v_lshrrev_b32 v2, 2, v1")
    a("v_mul_u32_u24 v2, 80, v2")
    a("v_and_b32 v3, 3, v1")
    a("v_lshl_add_u32 v2, v3, 4, v2")
    a("s_sub_u32 s11, s26, 4")
    a("s_mul_i32 s10, s11, 12800")
    a("v_add_u32 v2, s10, v2")
    a("v_lshlrev_b32 v3, 4, v1")
    a("s_sub_u32 s10, 63, s24")
    a("s_mul_i32 s10, s10, 40960")
    a("s_mul_i32 s11, s11, 10240")
    a("s_add_u32 s10, s10, s11")
    a(f"s_add_u32 s10, s10, 0x{WS_U:x}")
    a("s_add_u32 s11, s10, 4096")
    a("s_add_u32 s29, s10, 8192")
    for i in range(10):
        a(f"ds_read_b128 {vr(16 + 4 * i, 4)}, v2 offset:{1280 * i}")
    for i in range(10):
        a(f"s_waitcnt lgkmcnt({9 - i})")
        so = [10, 11, 29][i // 4]
        a(f"buffer_store_dwordx4 {vr(16 + 4 * i, 4)}, v3, s[{SWS}:{SWS + 3}], s{so} offen offset:{1024 * (i % 4)} sc1")
    a.label("P1_SIGNAL")
    read_nonce(a, 4)
    a(f"v_mov_b32 v4, {RES + 16}")
    a("v_mov_b32 v5, 1")
    a("s_waitcnt vmcnt(0)")
    a("s_mov_b64 exec, 1")
    a("ds_add_rtn_u32 v6, v4, v5")
    a("s_waitcnt lgkmcnt(0)")
    a("v_readfirstlane_b32 s10, v6")
    a("s_mov_b64 exec, -1")
    a("s_cmp_lg_u32 s10, 3")
    a("s_cbranch_scc1 P1_NOSIG")
    write_flag(a, WS_F1, 55, 4)
    a.label("P1_NOSIG")
    stamp(a, 3)
    a("s_branch P2_COMMON")

    a.label("P15_CONV")
    conv_run(a)
    read_nonce(a, 16)
    stamp(a, 3)

    a.label("P2_COMMON")
    a("v_and_b32 v2, 31, v1")
    a("v_lshrrev_b32 v3, 5, v1")
    a("s_and_b32 s24, s2, 7")
    a("s_lshl_b32 s24, s24, 2")
    a("s_lshr_b32 s10, s2, 3")
    a("s_and_b32 s10, s10, 3")
    a("s_add_u32 s24, s24, s10")
    a("s_lshr_b32 s25, s2, 5")
    a("s_mul_i32 s27, s24, 196608")
    a(f"s_add_u32 s27, s27, 0x{WS_KV:x}")
    a("s_cmp_ge_u32 s26, 8")
    a("s_cbranch_scc1 P2_HELP")

    VK, VKH, VV = 5, 6, 7
    QLO, QHI = 8, 12
    KB = [16, 24]
    VB, P = 32, 40
    S = [48, 64]
    O, NM, TMP = 80, 96, 112
    a("v_and_b32 v14, 0x13, v2")
    a("v_and_b32 v15, 4, v2")
    a("v_lshl_or_b32 v14, v15, 1, v14")
    a("v_and_b32 v15, 8, v2")
    a("v_lshrrev_b32 v15, 1, v15")
    a("v_or_b32 v14, v14, v15")
    a("v_mul_u32_u24 v14, 48, v14")
    a(f"v_add_u32 v{TMP}, 32, v14")
    a(f"v_lshl_add_u32 v{TMP + 1}, v3, 4, v14")
    a("v_min_u32 v14, 20, v2")
    a("v_lshlrev_b32 v14, 4, v14")
    a("v_mul_u32_u24 v15, 336, v3")
    a(f"v_add_u32 v{TMP + 2}, v14, v15")
    a(f"v_add_u32 v{TMP + 2}, 12288, v{TMP + 2}")
    a(f"v_mov_b32 v{VK}, v{TMP + 1}")
    a(f"v_mov_b32 v{VKH}, v{TMP}")
    a(f"v_mov_b32 v{VV}, v{TMP + 2}")
    a("s_lshl_b32 s10, s26, 5")
    a("v_add_u32 v14, s10, v2")
    a("v_mul_u32_u24 v14, 48, v14")
    a(f"v_add_u32 v14, {QST}, v14")
    a("v_lshl_add_u32 v15, v3, 4, v14")
    a(f"v_mov_b32 v{TMP + 3}, {RES + 8}")
    for r in range(16):
        a(f"v_mov_b32 v{O + r}, 0")
    for r in range(4):
        a(f"v_mov_b32 v{P + 4 + r}, 0")
        a(f"v_mov_b32 v{VB + 4 + r}, 0")

    def kread(buf, tile):
        return [f"ds_read_b128 {vr(KB[buf], 4)}, v{VK} offset:{tile * 1536}",
                f"ds_read_b64 {vr(KB[buf] + 4, 2)}, v{VKH} offset:{tile * 1536}"]

    def qk1(sb, kb, c):
        return f"v_mfma_f32_32x32x16_bf16 {vr(S[sb], 16)}, {vr(KB[kb], 4)}, {vr(QLO, 4)}, {c}"

    def qk2(sb, kb):
        return f"v_mfma_f32_32x32x8_bf16 {vr(S[sb], 16)}, {vr(KB[kb] + 4, 2)}, {vr(QHI, 2)}, {vr(S[sb], 16)}"

    pv1 = f"v_mfma_f32_32x32x16_bf16 {vr(O, 16)}, {vr(VB, 4)}, {vr(P, 4)}, {vr(O, 16)}"
    pv2 = f"v_mfma_f32_32x32x16_bf16 {vr(O, 16)}, {vr(VB + 4, 4)}, {vr(P + 4, 4)}, {vr(O, 16)}"
    a("v_cmp_eq_u32 vcc, 0, v3")
    a("s_waitcnt lgkmcnt(0)")
    a("s_barrier")
    stamp(a, 4)
    a(f"ds_read_b128 {vr(QLO, 4)}, v15")
    a(f"ds_read_b64 {vr(QHI, 2)}, v14 offset:32")
    for r in kread(0, 0) + kread(1, 1):
        a(r)
    a(f"ds_read_b128 {vr(VB, 4)}, v{VV}")
    a("s_waitcnt lgkmcnt(3)")
    a(f"v_cndmask_b32 v{QHI}, 0, v{QHI}, vcc")
    a(f"v_cndmask_b32 v{QHI + 1}, 0, v{QHI + 1}, vcc")
    a(qk1(0, 0, "0"))
    a("s_nop 0")
    a(qk2(0, 0))
    a("s_nop 15")
    a("s_nop 3")
    s0 = S[0]
    a(f"v_max3_f32 v14, v{s0}, v{s0 + 1}, v{s0 + 2}")
    for r in range(3, 15, 2):
        a(f"v_max3_f32 v14, v14, v{s0 + r}, v{s0 + r + 1}")
    a(f"v_max_f32 v14, v14, v{s0 + 15}")
    a("v_mov_b32 v15, v14")
    a("s_nop 1")
    a("v_permlane32_swap_b32 v14, v15")
    a("s_nop 1")
    a("v_max_f32 v14, v14, v15")
    for r in range(16):
        a(f"v_sub_f32 v{NM + r}, 0, v14")
    for r in range(16):
        a(f"v_sub_f32 v{s0 + r}, v{s0 + r}, v14")
    a("s_mov_b32 s30, 0")
    a(f"s_mov_b32 s32, {SLOT}")
    a("s_mov_b32 s33, 0")
    a.raw(".p2align 6")
    a.label("P2_LOOP")
    for t in range(8):
        cur, nxt = t % 2, (t + 1) % 2
        sc = S[cur]

        def ex(r):
            return f"v_exp_f32 v{sc + r}, v{sc + r}"

        def cv(p):
            return f"v_cvt_pk_bf16_f32 v{P + p}, v{sc + 2 * p}, v{sc + 2 * p + 1}"

        a("s_waitcnt lgkmcnt(1)")
        a(qk1(nxt, nxt, vr(NM, 16)))
        a(ex(0)); a(ex(1)); a(ex(2)); a(ex(3)); a(cv(0))
        a(pv2)
        a(f"ds_read_b128 {vr(VB + 4, 4)}, v{VV} offset:{t * 1344 + 672}")
        a(ex(4)); a(cv(1)); a(ex(5)); a(ex(6)); a(ex(7)); a(cv(2))
        a(qk2(nxt, nxt))
        if t == 6:
            a(f"v_add_u32 v{VK}, s32, v{VK}")
            a(f"v_add_u32 v{VKH}, s32, v{VKH}")
        for r in kread(cur, (t + 2) % 8):
            a(r)
        a(ex(8)); a(cv(3)); a(ex(9)); a(ex(10))
        if t == 5:
            a("s_waitcnt vmcnt(0)")
            a("s_barrier")
        a(ex(11)); a(cv(4))
        a("s_waitcnt lgkmcnt(3)")
        a(pv1)
        if t == 7:
            a(f"v_add_u32 v{VV}, s32, v{VV}")
        a(f"ds_read_b128 {vr(VB, 4)}, v{VV} offset:{((t + 1) % 8) * 1344}")
        a(ex(12)); a(cv(5)); a(ex(13)); a(ex(14)); a(ex(15)); a(cv(6)); a(cv(7))
    a("s_add_u32 s33, s33, 1")
    a("s_cmp_eq_u32 s33, 3")
    a("s_cselect_b32 s33, 0, s33")
    a("s_cmp_eq_u32 s33, 2")
    a(f"s_mov_b32 s32, {SLOT}")
    a(f"s_cselect_b32 s32, {(-2 * SLOT) & 0xffffffff}, s32")
    a("s_add_u32 s30, s30, 1")
    a("s_cmp_lt_u32 s30, 8")
    a("s_cbranch_scc1 P2_LOOP")
    a("s_waitcnt lgkmcnt(0)")
    a(pv2)
    stamp(a, 5)
    a("s_nop 15")
    a(f"v_mov_b32 v14, v{O + 8}")
    a(f"v_mov_b32 v15, v{O + 8}")
    a("s_nop 1")
    a("v_permlane32_swap_b32 v14, v15")
    a("s_mov_b32 s10, 0x53800000")
    a(f"v_mov_b32 v{TMP + 4}, 1")
    a("v_cmp_nge_f32 vcc, s10, v15")
    a("s_and_saveexec_b64 s[46:47], vcc")
    a("s_cbranch_execz P2_NOFLAG")
    a(f"ds_write_b32 v{TMP + 3}, v{TMP + 4}")
    a.label("P2_NOFLAG")
    a("s_mov_b64 exec, s[46:47]")
    a("s_waitcnt lgkmcnt(0)")
    a("s_barrier")
    a(f"ds_read_b32 v{TMP + 4}, v{TMP + 3}")
    a("s_waitcnt lgkmcnt(0)")
    a(f"v_readfirstlane_b32 s10, v{TMP + 4}")
    a("s_cmp_eq_u32 s10, 0")
    a("s_cbranch_scc1 P2_STORE")
    a(f"v_add_u32 v{VK}, {SLOT}, v{TMP + 1}")
    a(f"v_add_u32 v{VKH}, {SLOT}, v{TMP}")
    a(f"v_add_u32 v{VV}, {SLOT}, v{TMP + 2}")
    a("s_mul_i32 s28, s26, 3072")
    a("v_lshlrev_b32 v4, 4, v1")
    a("v_add_u32 v4, s28, v4")
    a("v_mov_b32 v14, 0xff800000")
    for r in range(16):
        a(f"v_mov_b32 v{O + r}, 0")
    a("s_mov_b32 s31, 0")
    a.label("P2_SPASS")
    a("s_mov_b32 s30, 0")
    a("s_mov_b32 s29, s27")
    a.label("P2_SCHUNK")
    a("s_barrier")
    a(f"s_add_u32 m0, s28, {SLOT}")
    a("s_nop 0")
    for i in range(3):
        o = f" offset:{1024 * i}" if i else ""
        a(f"buffer_load_dwordx4 v4, s[{SWS}:{SWS + 3}], s29 offen{o} sc1 lds")
    a("s_waitcnt vmcnt(0)")
    a("s_barrier")
    a(f"v_mov_b32 v{TMP + 5}, v{VK}")
    a(f"v_mov_b32 v{TMP + 6}, v{VKH}")
    a(f"v_mov_b32 v{TMP + 7}, v{VV}")
    a("s_mov_b32 s33, 0")
    a.label("P2_STILE")
    a(f"ds_read_b128 {vr(KB[0], 4)}, v{TMP + 5}")
    a(f"ds_read_b64 {vr(KB[0] + 4, 2)}, v{TMP + 6}")
    a(f"ds_read_b128 {vr(VB, 4)}, v{TMP + 7}")
    a(f"ds_read_b128 {vr(VB + 4, 4)}, v{TMP + 7} offset:672")
    a("s_waitcnt lgkmcnt(0)")
    a(qk1(0, 0, "0"))
    a(qk2(0, 0))
    a("s_nop 15")
    a("s_nop 3")
    a("s_cmp_lg_u32 s31, 0")
    a("s_cbranch_scc1 P2_SEXP")
    for r in range(0, 16, 2):
        a(f"v_max3_f32 v14, v14, v{s0 + r}, v{s0 + r + 1}")
    a("s_branch P2_SNEXT")
    a.label("P2_SEXP")
    for r in range(16):
        a(f"v_sub_f32 v{s0 + r}, v{s0 + r}, v14")
    for r in range(16):
        a(f"v_exp_f32 v{s0 + r}, v{s0 + r}")
    a("s_nop 0")
    for p in range(8):
        a(f"v_cvt_pk_bf16_f32 v{P + p}, v{s0 + 2 * p}, v{s0 + 2 * p + 1}")
    a("s_nop 1")
    a(pv1)
    a(pv2)
    a.label("P2_SNEXT")
    a(f"v_add_u32 v{TMP + 5}, 1536, v{TMP + 5}")
    a(f"v_add_u32 v{TMP + 6}, 1536, v{TMP + 6}")
    a(f"v_add_u32 v{TMP + 7}, 1344, v{TMP + 7}")
    a("s_add_u32 s33, s33, 1")
    a("s_cmp_lt_u32 s33, 8")
    a("s_cbranch_scc1 P2_STILE")
    a(f"s_add_u32 s29, s29, {SLOT}")
    a("s_add_u32 s30, s30, 1")
    a("s_cmp_lt_u32 s30, 8")
    a("s_cbranch_scc1 P2_SCHUNK")
    a("s_cmp_lg_u32 s31, 0")
    a("s_cbranch_scc1 P2_SDONE")
    a("v_mov_b32 v15, v14")
    a("s_nop 1")
    a("v_permlane32_swap_b32 v14, v15")
    a("s_nop 1")
    a("v_max_f32 v14, v14, v15")
    a("s_mov_b32 s31, 1")
    a("s_branch P2_SPASS")
    a.label("P2_SDONE")
    a("s_nop 15")
    a(f"v_mov_b32 v14, v{O + 8}")
    a(f"v_mov_b32 v15, v{O + 8}")
    a("s_nop 1")
    a("v_permlane32_swap_b32 v14, v15")
    a("s_nop 1")
    a.label("P2_STORE")
    a("v_rcp_f32 v15, v15")
    a("s_lshl_b32 s10, s25, 8")
    a("s_lshl_b32 s11, s26, 5")
    a("s_add_u32 s10, s10, s11")
    a("v_add_u32 v16, s10, v2")
    a("v_lshrrev_b32 v17, 4, v16")
    a("v_mul_u32_u24 v17, 20480, v17")
    a("v_and_b32 v16, 15, v16")
    a("v_lshl_add_u32 v17, v16, 4, v17")
    a(f"v_add_u32 v17, 0x{WS_O:x}, v17")
    a("s_mul_i32 s10, s24, 5")
    a("v_add_u32 v18, s10, v3")
    for pc in range(3):
        for r in range(4):
            a(f"v_mul_f32 v{O + 4 * pc + r}, v{O + 4 * pc + r}, v15")
        a(f"v_cvt_pk_bf16_f32 v{20 + 2 * pc}, v{O + 4 * pc}, v{O + 4 * pc + 1}")
        a(f"v_cvt_pk_bf16_f32 v{21 + 2 * pc}, v{O + 4 * pc + 2}, v{O + 4 * pc + 3}")
        a(f"v_add_u32 v19, {2 * pc}, v18")
        a("v_lshrrev_b32 v26, 3, v19")
        a("v_lshl_add_u32 v26, v26, 10, v17")
        a("v_and_b32 v27, 3, v19")
        a("v_lshl_add_u32 v26, v27, 8, v26")
        a("v_bfe_u32 v27, v19, 2, 1")
        a(f"v_lshl_add_u32 v{28 + pc}, v27, 3, v26")
    a("v_cmp_eq_u32 vcc, 0, v3")
    a(f"v_mov_b32 v27, 0x{OOB:x}")
    a("s_nop 0")
    a("v_cndmask_b32 v30, v27, v30, vcc")
    for pc in range(3):
        a(f"buffer_store_dwordx2 {vr(20 + 2 * pc, 2)}, v{28 + pc}, s[{SWS}:{SWS + 3}], 0 offen sc1")
    a("s_cmp_ge_u32 s26, 4")
    a("s_cbranch_scc1 P2_DONE_HI")

    SO = 16
    srd(a, SO, 76, XBYTES)
    OF, ACC3 = 32, 112
    WF = [132, 8]
    a("s_lshr_b32 s10, s24, 2")
    a("v_lshlrev_b32 v4, 3, v2")
    a("v_add_u32 v4, s10, v4")
    a("v_lshlrev_b32 v4, 6, v4")
    a(f"v_add_u32 v4, 0x{WS_F2:x}, v4")
    a("v_lshlrev_b32 v5, 4, v1")
    a("s_lshl_b32 s3, s24, 2")
    a("s_add_u32 s3, s3, s26")
    a("s_mul_i32 s32, s3, 20480")
    a(f"s_add_u32 s32, s32, 0x{WS_O:x}")
    a("s_lshl_b32 s36, s3, 4")
    a("s_mul_i32 s40, s36, 1280")
    a("s_mul_i32 s41, s26, 2560")
    a(f"s_add_u32 s41, s41, {L_X}")
    a("v_and_b32 v2, 15, v1")
    a("v_lshrrev_b32 v3, 4, v1")
    a("v_lshrrev_b32 v6, 2, v2")
    a("v_lshl_add_u32 v6, v3, 2, v6")
    a("v_and_b32 v7, 3, v1")
    a("v_mul_u32_u24 v28, 160, v6")
    a("v_lshl_add_u32 v28, v7, 3, v28")
    a(f"v_add_u32 v28, {L_WO}, v28")
    a("v_add_u32 v29, 51200, v28")
    a("v_lshlrev_b32 v30, 7, v6")
    a("v_lshl_add_u32 v30, v7, 3, v30")
    a("s_lshl_b32 s37, s26, 5")
    a(f"s_add_u32 s37, s37, {L_Z}")
    a("v_add_u32 v30, s37, v30")
    a("v_mul_u32_u24 v31, 160, v2")
    a("v_lshl_add_u32 v31, v3, 3, v31")
    a("v_add_u32 v31, s41, v31")
    a("v_lshlrev_b32 v7, 2, v2")
    a("s_lshl_b32 s36, s36, 2")
    a(f"s_add_u32 s36, s36, 0x{WS_G:x}")
    for r in range(20):
        a(f"v_mov_b32 v{ACC3 + r}, 0")
    a("s_waitcnt vmcnt(0)")
    a("s_barrier")
    stamp(a, 6)
    a("s_cmp_lg_u32 s26, 0")
    a("s_cbranch_scc1 P3_NOF")
    a("s_lshl_b32 s10, s24, 3")
    a("s_add_u32 s10, s10, s25")
    write_flag(a, WS_F2, 10, 152)
    a.label("P3_NOF")
    a(f"buffer_load_dword v6, v7, s[{SWS}:{SWS + 3}], s36 offen sc1")

    def wreads(ks, st):
        out = []
        b = 28 if ks < 10 else 29
        k2 = ks if ks < 10 else ks - 10
        for j in range(5):
            for T in range(2):
                out.append(f"ds_read_b64_tr_b16 {vr(WF[st] + 4 * j + 2 * T, 2)}, v{b} offset:{k2 * 5120 + T * 2560 + j * 32}")
        return out

    for r in wreads(0, 0):
        a(r)
    poll(a, [4], 152, 20)
    for ks in range(20):
        if ks % 4 == 0:
            a(f"s_add_u32 s35, s32, {(ks // 4) * 4096}")
        a(f"buffer_load_dwordx4 {vr(OF + 4 * ks, 4)}, v5, s[{SWS}:{SWS + 3}], s35 offen offset:{(ks % 4) * 1024} sc1")
    a("s_mul_i32 s3, s25, 160")
    a("s_movk_i32 s10, 1280")
    for i in range(3):
        a(f"v_add_u32 v155, {64 * i}, v1")
        a("v_mul_u32_u24 v156, 0xcccd, v155")
        a("v_lshrrev_b32 v156, 19, v156")
        a("v_mul_u32_u24 v157, 10, v156")
        a("v_sub_u32 v155, v155, v157")
        a("v_mul_lo_u32 v156, v156, s10")
        a("v_lshl_add_u32 v155, v155, 4, v156")
        a(f"v_add_u32 v{152 + i}, s3, v155")
    for ks in range(20):
        st = ks % 2
        if ks < 19:
            for r in wreads(ks + 1, 1 - st):
                a(r)
            a(f"s_waitcnt vmcnt({19 - ks}) lgkmcnt(10)")
        else:
            a("s_waitcnt vmcnt(0) lgkmcnt(0)")
        for j in range(5):
            d = ACC3 + 4 * j
            a(f"v_mfma_f32_16x16x32_bf16 {vr(d, 4)}, {vr(WF[st] + 4 * j, 4)}, {vr(OF + 4 * ks, 4)}, {vr(d, 4)}")
    for j in range(5):
        a(f"ds_read_b64 {vr(32 + 2 * j, 2)}, v31 offset:{32 * j}")
        a(f"ds_read_b64_tr_b16 {vr(44 + 2 * j, 2)}, v30 offset:{2048 * j}")
    a("v_sub_f32 v17, 1.0, v6")
    a("s_mov_b32 s42, 0xffff0000")
    a("s_waitcnt lgkmcnt(0)")
    for j in range(5):
        d = ACC3 + 4 * j
        for r in range(4):
            xs = 32 + 2 * j + r // 2
            zs = 44 + 2 * j + r // 2
            if r % 2 == 0:
                a(f"v_lshlrev_b32 v18, 16, v{xs}")
                a(f"v_lshlrev_b32 v19, 16, v{zs}")
            else:
                a(f"v_and_b32 v18, s42, v{xs}")
                a(f"v_and_b32 v19, s42, v{zs}")
            a("v_mul_f32 v18, v18, v19")
            a("v_mul_f32 v18, v18, v17")
            a(f"v_fma_f32 v{d + r}, v{d + r}, v6, v18")
        a(f"v_cvt_pk_bf16_f32 v{56 + 2 * j}, v{d}, v{d + 1}")
        a(f"v_cvt_pk_bf16_f32 v{57 + 2 * j}, v{d + 2}, v{d + 3}")
        a(f"ds_write_b64 v31, {vr(56 + 2 * j, 2)} offset:{32 * j}")
    a("v_add_u32 v18, s41, v5")
    a("s_waitcnt lgkmcnt(0)")
    for i in range(3):
        a(f"ds_read_b128 {vr(68 + 4 * i, 4)}, v18 offset:{1024 * i}")
    a("s_waitcnt lgkmcnt(0)")
    for i in range(2):
        a(f"buffer_store_dwordx4 {vr(68 + 4 * i, 4)}, v{152 + i}, s[{SO}:{SO + 3}], s40 offen")
    a("s_mov_b32 exec_hi, 0")
    a(f"buffer_store_dwordx4 {vr(76, 4)}, v154, s[{SO}:{SO + 3}], s40 offen")
    if DIAG:
        a("s_waitcnt vmcnt(0)")
    stamp(a, 7)
    stamp_flush(a)
    a("s_endpgm")
    a.label("P2_DONE_HI")
    a("s_waitcnt vmcnt(0)")
    a("s_barrier")
    stamp(a, 6)
    stamp_flush(a)
    a("s_endpgm")

    a.label("P2_HELP")
    SX, SG, SWO = 16, 28, 36
    if os.environ.get("HPRIO", "3") != "0":
        a("s_setprio " + os.environ.get("HPRIO", "3"))
    srd(a, SX, 4, XBYTES)
    srd(a, SG, 74, 1280)
    srd(a, SWO, 60, WO_BYTES)
    a("s_sub_u32 s34, s26, 8")
    a("v_lshlrev_b32 v4, 4, v1")
    a("s_lshl_b32 s10, s2, 3")
    a("s_lshl_b32 s11, s34, 1")
    a("s_add_u32 s35, s10, s11")
    a("s_mul_i32 s10, s35, 1280")
    a("s_add_u32 s11, s10, 1280")
    a("v_add_u32 v5, 1024, v4")
    a("v_cmp_gt_u32 vcc, 16, v1")
    a(f"v_mov_b32 v6, 0x{OOB:x}")
    a("s_nop 0")
    a("v_cndmask_b32 v5, v6, v5, vcc")
    G = 64
    a(f"buffer_load_dwordx4 {vr(G, 4)}, v4, s[{SG}:{SG + 3}], 0 offen")
    a(f"buffer_load_dwordx4 {vr(G + 4, 4)}, v5, s[{SG}:{SG + 3}], 0 offen")
    a(f"buffer_load_dwordx4 {vr(G + 8, 4)}, v4, s[{SX}:{SX + 3}], s10 offen")
    a(f"buffer_load_dwordx4 {vr(G + 12, 4)}, v5, s[{SX}:{SX + 3}], s10 offen")
    a(f"buffer_load_dwordx4 {vr(G + 16, 4)}, v4, s[{SX}:{SX + 3}], s11 offen")
    a(f"buffer_load_dwordx4 {vr(G + 20, 4)}, v5, s[{SX}:{SX + 3}], s11 offen")
    a("s_lshr_b32 s10, s24, 3")
    a("v_and_b32 v5, 15, v1")
    a("v_bfe_u32 v6, v1, 4, 1")
    a("v_lshlrev_b32 v6, 6, v6")
    a("v_add3_u32 v5, v5, v6, 64")
    a("v_and_b32 v6, 1, v1")
    a("s_lshl_b32 s11, s25, 1")
    a("v_add_u32 v6, s11, v6")
    a("v_cmp_gt_u32 vcc, 32, v1")
    a("s_lshl_b32 s10, s10, 4")
    a("s_nop 0")
    a("v_cndmask_b32 v5, v6, v5, vcc")
    a("v_add_u32 v5, s10, v5")
    a("v_lshlrev_b32 v5, 6, v5")
    a(f"v_add_u32 v5, 0x{WS_F1:x}, v5")
    VD = 10
    a("s_mul_i32 s40, s34, 6144")
    a(f"v_add_u32 v{VD}, s40, v4")
    a("s_mov_b32 s41, s25")
    a("s_mov_b32 s42, 0")

    def kv_dma():
        a("s_mul_i32 s43, s41, 24576")
        a("s_add_u32 s43, s43, s27")
        a("s_add_u32 m0, s42, s40")
        a("s_add_u32 s41, s41, 1")
        for i in range(4):
            o = f" offset:{1024 * i}" if i else ""
            a(f"buffer_load_dwordx4 v{VD}, s[{SWS}:{SWS + 3}], s43 offen{o} sc1 lds")
        a("s_add_u32 m0, m0, 4096")
        a("s_add_u32 s43, s43, 4096")
        a("s_and_b32 s41, s41, 7")
        for i in range(2):
            o = f" offset:{1024 * i}" if i else ""
            a(f"buffer_load_dwordx4 v{VD}, s[{SWS}:{SWS + 3}], s43 offen{o} sc1 lds")
        a(f"s_add_u32 s42, s42, {SLOT}")
        a(f"s_cmp_ge_u32 s42, {3 * SLOT}")
        a("s_cselect_b32 s42, 0, s42")

    VP = 24
    a("s_mul_i32 s3, s25, 160")
    a("s_movk_i32 s10, 1280")
    for i in range(5):
        a(f"v_add_u32 v7, {64 * i}, v1")
        a("v_mul_u32_u24 v8, 0xcccd, v7")
        a("v_lshrrev_b32 v8, 19, v8")
        a("v_mul_u32_u24 v11, 10, v8")
        a("v_sub_u32 v7, v7, v11")
        a("v_mul_lo_u32 v8, v8, s10")
        a("v_lshl_add_u32 v7, v7, 4, v8")
        a(f"v_add_u32 v{VP + i}, s3, v7")
    a("v_mov_b32 v20, 0")
    a("v_mov_b32 v21, 0")
    a("s_waitcnt vmcnt(0)")
    for r in range(8):
        a(f"v_dot2_f32_bf16 v20, v{G + 8 + r}, v{G + r}, v20")
        a(f"v_dot2_f32_bf16 v21, v{G + 16 + r}, v{G + r}, v21")
    a("s_nop 3")
    for sh in (1, 2, 4, 8):
        a(f"v_add_f32_dpp v20, v20, v20 row_shr:{sh} row_mask:0xf bank_mask:0xf bound_ctrl:0")
        a(f"v_add_f32_dpp v21, v21, v21 row_shr:{sh} row_mask:0xf bank_mask:0xf bound_ctrl:0")
        a("s_nop 1")
    a("s_nop 1")
    a("v_readlane_b32 s10, v20, 15")
    a("v_readlane_b32 s11, v20, 31")
    a("v_readlane_b32 s49, v20, 47")
    a("v_readlane_b32 s50, v20, 63")
    a("v_readlane_b32 s51, v21, 15")
    a("v_readlane_b32 s52, v21, 31")
    a("v_readlane_b32 s53, v21, 47")
    a("v_readlane_b32 s54, v21, 63")
    a("s_nop 3")
    a("v_mov_b32 v22, s10")
    a("v_mov_b32 v23, s51")
    a("v_add_f32 v22, s11, v22")
    a("v_add_f32 v23, s52, v23")
    a("v_add_f32 v22, s49, v22")
    a("v_add_f32 v23, s53, v23")
    a("v_add_f32 v22, s50, v22")
    a("v_add_f32 v23, s54, v23")
    a("v_cmp_eq_u32 vcc, 1, v1")
    a("s_nop 1")
    a("v_cndmask_b32 v22, v22, v23, vcc")
    a(f"v_mul_f32 v22, {f32hex(-math.log2(math.e))}, v22")
    a("v_exp_f32 v22, v22")
    a("s_nop 0")
    a("v_add_f32 v22, 1.0, v22")
    a("v_rcp_f32 v22, v22")
    a("s_lshl_b32 s10, s35, 2")
    a(f"s_add_u32 s10, s10, 0x{WS_G:x}")
    a("v_lshlrev_b32 v23, 2, v1")
    a("s_mov_b64 exec, 3")
    a(f"buffer_store_dword v22, v23, s[{SWS}:{SWS + 3}], s10 offen sc1")
    a("s_mov_b64 exec, -1")
    a("s_lshl_b32 s44, s24, 11")
    a("s_lshl_b32 s11, s25, 8")
    a("s_add_u32 s44, s44, s11")
    a("s_mul_i32 s44, s44, 48")
    a("s_mul_i32 s45, s34, 3072")
    a("s_add_u32 s44, s44, s45")
    a(f"v_mov_b32 v6, {RES + 16}")
    a("s_mov_b32 s10, 0")
    a.label("P2H_CW")
    a("ds_read_b32 v7, v6")
    a("s_waitcnt lgkmcnt(0)")
    a("v_readfirstlane_b32 s11, v7")
    a("s_add_u32 s10, s10, 1")
    a(f"s_cmp_gt_u32 s10, {POLL_LIMIT * 8}")
    a("s_cbranch_scc1 P2H_CWD")
    a("s_cmp_lt_u32 s11, 4")
    a("s_cbranch_scc1 P2H_CW")
    a.label("P2H_CWD")
    poll(a, [5], 20, 10)
    stamp(a, 4)
    a(f"s_add_u32 m0, s45, {QST}")
    a("s_nop 0")
    for i in range(3):
        o = f" offset:{1024 * i}" if i else ""
        a(f"buffer_load_dwordx4 v4, s[{SWS}:{SWS + 3}], s44 offen{o} sc1 lds")
    kv_dma()
    kv_dma()
    a("s_waitcnt vmcnt(6)")
    a("s_barrier")
    a("s_waitcnt vmcnt(0)")
    a("s_barrier")
    a("s_cmp_lg_u32 s26, 8")
    a("s_cbranch_scc1 P2H_NOF3")
    write_flag(a, WS_F3, 2, 12)
    a.label("P2H_NOF3")

    def wo_rep(srep):
        a(f"s_mul_i32 s10, s{srep}, 40960")
        a(f"s_mul_i32 s11, s{srep}, 5120")
        a(f"s_add_u32 s11, s11, {L_WO}")
        for i in range(5):
            a(f"s_add_u32 m0, s11, {1024 * i}")
            a("s_nop 0")
            a(f"buffer_load_dwordx4 v{VP + i}, s[{SWO}:{SWO + 3}], s10 offen lds")

    a("s_add_u32 s44, s34, 4")
    a.label("P2H_WO")
    kv_dma()
    wo_rep(44)
    a("s_waitcnt vmcnt(5)")
    a("s_barrier")
    a("s_add_u32 s44, s44, 4")
    a("s_cmp_lt_u32 s44, 20")
    a("s_cbranch_scc1 P2H_WO")
    stamp(a, 5)
    kv_dma()
    a("v_lshlrev_b32 v5, 6, v1")
    a(f"v_add_u32 v5, 0x{WS_F3:x}, v5")
    a("v_add_u32 v6, 4096, v5")
    a("v_add_u32 v7, 8192, v5")
    a("v_add_u32 v8, 12288, v5")
    a("s_waitcnt vmcnt(0)")
    a("s_barrier")
    kv_dma()
    poll(a, [5, 6, 7, 8], 12, 10)
    a("s_barrier")
    wo_rep(34)
    a("s_lshl_b32 s10, s24, 6")
    a("s_lshl_b32 s11, s34, 4")
    a("s_add_u32 s10, s10, s11")
    a("s_mul_i32 s10, s10, 1280")
    a("s_mul_i32 s11, s34, 2560")
    a(f"s_add_u32 s11, s11, {L_X}")
    for i in range(3):
        a(f"s_add_u32 m0, s11, {1024 * i}")
        if i == 2:
            a("s_mov_b32 exec_hi, 0")
        else:
            a("s_nop 0")
        a(f"buffer_load_dwordx4 v{VP + i}, s[{SX}:{SX + 3}], s10 offen lds")
    a("s_mov_b64 exec, -1")
    a("v_lshrrev_b32 v7, 3, v1")
    a("v_lshlrev_b32 v7, 12, v7")
    a("v_and_b32 v8, 7, v1")
    a("v_lshl_add_u32 v7, v8, 4, v7")
    a("s_mul_i32 s10, s25, 80")
    a("s_lshl_b32 s10, s10, 12")
    a("s_lshl_b32 s11, s24, 7")
    a("s_add_u32 s10, s10, s11")
    a(f"s_add_u32 s10, s10, 0x{WS_Z:x}")
    a("s_lshl_b32 s11, s34, 15")
    a("s_add_u32 s10, s10, s11")
    a("s_lshl_b32 s11, s34, 10")
    a(f"s_add_u32 s11, s11, {L_Z}")
    a("s_barrier")
    for k in range(3):
        if k == 2:
            a("s_cmp_lt_u32 s34, 2")
            a("s_cselect_b32 s44, 2, 1")
            a("s_lshl_b32 s43, s44, 17")
            a("s_lshl_b32 s44, s44, 12")
            a("s_add_u32 s43, s43, s10")
            a("s_add_u32 m0, s11, s44")
        else:
            a(f"s_add_u32 s43, s10, {k * 131072}")
            a(f"s_add_u32 m0, s11, {k * 4096}")
        a("s_nop 0")
        a(f"buffer_load_dwordx4 v7, s[{SWS}:{SWS + 3}], s43 offen sc1 lds")
    a(f"v_mov_b32 v5, {RES + 8}")
    a("s_barrier")
    a("ds_read_b32 v6, v5")
    a("s_waitcnt lgkmcnt(0)")
    a("v_readfirstlane_b32 s10, v6")
    a("s_cmp_eq_u32 s10, 0")
    a("s_cbranch_scc1 P2H_END")
    a("s_mov_b32 s10, 0")
    a.label("P2H_SLOWB")
    a("s_barrier")
    a("s_add_u32 s10, s10, 1")
    a("s_cmp_lt_u32 s10, 32")
    a("s_cbranch_scc1 P2H_SLOWB")
    a.label("P2H_END")
    a("s_waitcnt vmcnt(0)")
    a("s_barrier")
    stamp(a, 6)
    stamp_flush(a)
    a.label("L_END")
    a("s_endpgm")


def main():
    hdr = open("cdna_kernels/" + NAME + ".s.ref").read().split("\n")
    head = [l for l in hdr if l.startswith(";") and "@launch" not in l and "Override" not in l and "grid=ceil" not in l]
    a = Asm()
    gen(a)
    out = "\n".join(head) + "\n"
    if os.environ.get("ASLIST", "0") == "1":
        out += f"; @launch kernel={KNAME} grid=(256,1,1) block=(768,1,1) lds={LDS_TOTAL}\n"
    else:
        out += f"; @launch grid=(256,1,1) block=(768,1,1) lds={LDS_TOTAL}\n"
    out += '.amdgcn_target "amdgcn-amd-amdhsa--gfx950"\n.text\n'
    out += a.text()
    out += '.section .rodata,"a"\n.p2align 6\n'
    out += f""".amdhsa_kernel {KNAME}
  .amdhsa_next_free_vgpr 160
  .amdhsa_next_free_sgpr 102
  .amdhsa_accum_offset 160
  .amdhsa_group_segment_fixed_size 0
  .amdhsa_kernarg_size 104
  .amdhsa_user_sgpr_count 2
  .amdhsa_user_sgpr_kernarg_segment_ptr 1
  .amdhsa_system_sgpr_workgroup_id_x 1
.end_amdhsa_kernel
"""
    path = sys.argv[1] if len(sys.argv) > 1 else "cdna_kernels/" + NAME + ".s"
    open(path, "w").write(out)
    print("wrote", path, len(out), "bytes")


if __name__ == "__main__":
    main()
```

```python
import struct, sys, math, os

NAME = "gated_mix__softmax_full_mha__ssm_conv_h3__prompt"
KNAME = NAME + "_kernel"

WS_Q = 0x0
WS_KV = 0x300000
WS_U = 0x900000
WS_Z = 0xC00000
WS_O = 0xF00000
WS_G = 0x1200000
WS_F1 = 0x1210000
WS_F2 = 0x1214000
WS_F3 = 0x1218000
WS_DIAG = 0x1280000
WS_SIZE = 0x1400000

XBYTES = 2048 * 640 * 2
WQKV_BYTES = 640 * 1920 * 2
WO_BYTES = 640 * 640 * 2
OOB = 0x7F000000
DIAG = int(os.environ.get("DIAG", "0"))
POLL_LIMIT = 30000

G_STAGE = 36864
SLOT = 24576
CONVB = 51200
CS = 4160
HB = 7680
CW = HB + 4 * CS + 64
QST = CONVB + 4 * CW
RES = 163584
LDS_TOTAL = 163840
L_WO = RES - 102400
L_X = 2 * SLOT
L_Z = 0
assert QST + 12288 <= RES and L_X + 10240 <= L_WO

SWS = 12


def f32hex(x):
    return "0x%08x" % struct.unpack("<I", struct.pack("<f", x))[0]


class Asm:
    def __init__(self):
        self.L = []
        self.uid = 0

    def __call__(self, s):
        self.L.append("    " + s)

    def label(self, s):
        self.L.append(s + ":")

    def raw(self, s):
        self.L.append(s)

    def newlabel(self, p):
        self.uid += 1
        return f"{p}_{self.uid}"

    def text(self):
        return "\n".join(self.L) + "\n"


def vr(a, n=1):
    return f"v{a}" if n == 1 else f"v[{a}:{a + n - 1}]"


def srd(a, d, base, nbytes):
    a(f"s_mov_b32 s{d}, s{base}")
    a(f"s_and_b32 s{d + 1}, s{base + 1}, 0xffff")
    a(f"s_mov_b32 s{d + 2}, 0x{nbytes:x}")
    a(f"s_mov_b32 s{d + 3}, 0x00020000")


def stamp(a, idx):
    if not DIAG:
        return
    a("s_waitcnt lgkmcnt(0)")
    a("s_memtime s[96:97]")
    a("s_memrealtime s[98:99]")
    a("s_waitcnt lgkmcnt(0)")
    a(f"s_mov_b32 s{80 + 2 * idx}, s96")
    a(f"s_mov_b32 s{81 + 2 * idx}, s98")


def stamp_flush(a):
    if not DIAG:
        return
    a("s_mov_b64 exec, 1")
    if DIAG == 2:
        sel = {(37, 0): [(0, 2), (2, 3), (1, 4), (3, 5), (4, 6), (5, 7), (6, 8), (7, 9)], (37, 4): [(1, 10), (3, 11)],
               (37, 8): [(3, 12), (4, 13)], (200, 4): [(2, 14), (3, 15)]}
        srd(a, 16, 78, 256)
        a("v_mov_b32 v2, 0")
        a("s_lshl_b32 s96, s2, 4")
        a("s_add_u32 s96, s96, s26")
        for (wg, wv), lst in sel.items():
            lb = a.newlabel("DG")
            a(f"s_cmp_lg_u32 s96, {wg * 16 + wv}")
            a(f"s_cbranch_scc1 {lb}")
            for st, word in lst:
                a(f"v_mov_b32 v3, s{81 + 2 * st}")
                a(f"buffer_store_dword v3, v2, s[16:19], 0 offen offset:{4 * word}")
                a("s_nop 1")
            a.label(lb)
        return
    a("s_lshl_b32 s96, s2, 4")
    a("s_add_u32 s96, s96, s26")
    a("s_lshl_b32 s96, s96, 6")
    a(f"s_add_u32 s96, s96, 0x{WS_DIAG:x}")
    a("v_mov_b32 v2, 0")
    for i in range(16):
        a(f"v_mov_b32 v3, s{80 + i}")
        a(f"buffer_store_dword v3, v2, s[{SWS}:{SWS + 3}], s96 offen offset:{4 * i}")
        a("s_nop 1")


def poll(a, vaddrs, vtmp, scnt, preloaded=False):
    lp, done, chk = a.newlabel("POLL"), a.newlabel("POLLD"), a.newlabel("POLLC")
    a(f"s_mov_b32 s{scnt}, 0")
    if preloaded:
        a(f"s_branch {chk}")
    a.label(lp)
    for k, va in enumerate(vaddrs):
        a(f"buffer_load_dwordx2 {vr(vtmp + 2 * k, 2)}, v{va}, s[{SWS}:{SWS + 3}], 0 offen sc0 sc1")
    a("s_waitcnt vmcnt(0)")
    a.label(chk)
    a(f"v_cmp_ne_u64 vcc, s[56:57], {vr(vtmp, 2)}")
    for k in range(1, len(vaddrs)):
        a(f"v_cmp_ne_u64 s[58:59], s[56:57], {vr(vtmp + 2 * k, 2)}")
        a("s_or_b64 vcc, vcc, s[58:59]")
    a(f"s_add_u32 s{scnt}, s{scnt}, 1")
    a(f"s_cmp_gt_u32 s{scnt}, {POLL_LIMIT}")
    a(f"s_cbranch_scc1 {done}")
    a("s_cmp_lg_u64 vcc, 0")
    a(f"s_cbranch_scc1 {lp}")
    a.label(done)


def get_nonce(a, vt):
    lp, done = a.newlabel("NON"), a.newlabel("NOND")
    a("s_cmp_eq_u32 s2, 0")
    a(f"s_cbranch_scc1 {done}")
    srd(a, 16, 78, 256)
    a(f"v_mov_b32 v{vt}, 0")
    a("s_mov_b32 s20, 0")
    a.label(lp)
    a(f"buffer_load_dwordx2 {vr(vt + 2, 2)}, v{vt}, s[16:19], 0 offen sc0 sc1")
    a("s_waitcnt vmcnt(0)")
    a(f"v_readfirstlane_b32 s56, v{vt + 2}")
    a(f"v_readfirstlane_b32 s57, v{vt + 3}")
    a("s_add_u32 s20, s20, 1")
    a(f"s_cmp_gt_u32 s20, {POLL_LIMIT}")
    a(f"s_cbranch_scc1 {done}")
    a("s_not_b32 s21, s56")
    a("s_cmp_lg_u32 s21, s57")
    a(f"s_cbranch_scc1 {lp}")
    a.label(done)
    a(f"v_mov_b32 v{vt}, {RES}")
    a(f"v_mov_b32 v{vt + 2}, s56")
    a(f"v_mov_b32 v{vt + 3}, s57")
    a(f"ds_write_b64 v{vt}, {vr(vt + 2, 2)}")
    a("s_waitcnt lgkmcnt(0)")


def nonce_check_or_poll(a, vt, sdbg):
    lp, chk, done = a.newlabel("NON"), a.newlabel("NONC"), a.newlabel("NOND")
    a("s_mov_b32 s58, 0")
    a(f"s_branch {chk}")
    a.label(lp)
    a(f"buffer_load_dwordx2 {vr(vt + 2, 2)}, v{vt}, s[{sdbg}:{sdbg + 3}], 0 offen sc0 sc1")
    a("s_waitcnt vmcnt(0)")
    a.label(chk)
    a(f"v_readfirstlane_b32 s56, v{vt + 2}")
    a(f"v_readfirstlane_b32 s57, v{vt + 3}")
    a("s_add_u32 s58, s58, 1")
    a(f"s_cmp_gt_u32 s58, {POLL_LIMIT}")
    a(f"s_cbranch_scc1 {done}")
    a("s_not_b32 s59, s56")
    a("s_cmp_lg_u32 s59, s57")
    a(f"s_cbranch_scc1 {lp}")
    a.label(done)


def nonce_to_lds(a, vt):
    a(f"v_mov_b32 v{vt}, {RES}")
    a(f"v_mov_b32 v{vt + 2}, s56")
    a(f"v_mov_b32 v{vt + 3}, s57")
    a(f"ds_write_b64 v{vt}, {vr(vt + 2, 2)}")
    a("s_waitcnt lgkmcnt(0)")


def read_nonce(a, vt):
    a(f"v_mov_b32 v{vt}, {RES}")
    a(f"ds_read_b64 {vr(vt + 2, 2)}, v{vt}")
    a("s_waitcnt lgkmcnt(0)")
    a(f"v_readfirstlane_b32 s56, v{vt + 2}")
    a(f"v_readfirstlane_b32 s57, v{vt + 3}")


def write_flag(a, base, sslot, vt):
    a(f"s_lshl_b32 s58, s{sslot}, 6")
    a(f"s_add_u32 s58, s58, 0x{base:x}")
    a(f"v_mov_b32 v{vt}, s58")
    a(f"v_mov_b32 v{vt + 2}, s56")
    a(f"v_mov_b32 v{vt + 3}, s57")
    a("s_mov_b64 exec, 1")
    a(f"buffer_store_dwordx2 {vr(vt + 2, 2)}, v{vt}, s[{SWS}:{SWS + 3}], 0 offen sc0 sc1")
    a("s_mov_b64 exec, -1")


SH = 20
HREG = 124


def h_load(a, sch):
    srd(a, SH, 70, XBYTES)
    a(f"s_lshl_b32 s17, s{sch}, 12")
    a(f"v_lshlrev_b32 v{HREG + 24}, 4, v1")
    for i in range(4):
        a(f"buffer_load_dwordx4 {vr(HREG + 4 * i, 4)}, v{HREG + 24}, s[{SH}:{SH + 3}], s17 offen offset:{1024 * i}")
    for i in range(4):
        a(f"buffer_load_dwordx2 {vr(HREG + 16 + 2 * i, 2)}, v{HREG + 24}, s[{SH}:{SH + 3}], s17 offen offset:{1024 * i + 16}")


def u_dma(a, sch, subase, vt, st0):
    a(f"s_lshl_b32 s{st0}, s{sch}, 6")
    a(f"s_add_u32 s{st0}, s{st0}, 0x{WS_U:x}")
    a(f"s_mov_b32 s{st0 + 1}, 40960")
    for i in range(5):
        a(f"v_add_u32 v{vt}, {64 * i}, v1")
        a(f"v_mul_u32_u24 v{vt + 1}, 0xcccd, v{vt}")
        a(f"v_lshrrev_b32 v{vt + 1}, 18, v{vt + 1}")
        a(f"v_mul_u32_u24 v{vt + 2}, 5, v{vt + 1}")
        a(f"v_sub_u32 v{vt}, v{vt}, v{vt + 2}")
        a(f"v_min_u32 v{vt}, 3, v{vt}")
        a(f"v_mul_lo_u32 v{vt + 1}, v{vt + 1}, s{st0 + 1}")
        a(f"v_lshl_add_u32 v{vt}, v{vt}, 4, v{vt + 1}")
        a(f"s_add_u32 m0, s{subase}, {1024 * i}")
        a("s_nop 0")
        a(f"buffer_load_dwordx4 v{vt}, s[{SWS}:{SWS + 3}], s{st0} offen sc1 lds")


def job_params(a, swave, gemm):
    a("s_lshl_b32 s50, s2, 2")
    a(f"s_add_u32 s50, s50, s{swave}")
    a("s_sub_u32 s51, s50, 640")
    a("s_lshl_b32 s51, s51, 1")
    a("s_sub_u32 s52, s50, 384")
    a("s_cmp_lt_u32 s50, 896")
    a("s_cselect_b32 s51, s51, s52")
    a("s_cselect_b32 s52, 2, 1")
    a("s_cmp_lt_u32 s50, 640")
    a("s_cselect_b32 s50, s50, s51")
    a("s_cselect_b32 s51, 1, 0")
    a("s_cselect_b32 s52, 1, s52")


def conv_run(a):
    VA, VBB, VU = 4, 5, 6
    Y = 32
    FR = [96, 104, 112, 48]
    T1, T2, T3 = 64, 68, 72

    def build(d, n, vw, off):
        dd = [d, d + 1, d + 2, d + 3, n, n + 1]
        for i in range(4):
            a(f"v_alignbit_b32 v{T1 + i}, v{dd[i + 1]}, v{dd[i]}, 16")
            a(f"v_mov_b32 v{T2 + i}, v{dd[i + 1]}")
            a(f"v_alignbit_b32 v{T3 + i}, v{dd[i + 2]}, v{dd[i + 1]}, 16")
        a(f"ds_write_b128 v{vw}, {vr(d, 4)} offset:{off}")
        a(f"ds_write_b128 v{vw}, {vr(T1, 4)} offset:{off + CS}")
        a(f"ds_write_b128 v{vw}, {vr(T2, 4)} offset:{off + 2 * CS}")
        a(f"ds_write_b128 v{vw}, {vr(T3, 4)} offset:{off + 3 * CS}")

    a(f"s_mul_i32 s16, s26, {CW}")
    a(f"s_add_u32 s16, s16, {CONVB}")
    a("v_and_b32 v2, 31, v1")
    a("v_lshrrev_b32 v3, 5, v1")
    a("v_lshlrev_b32 v9, 4, v1")
    a("v_add_u32 v9, s16, v9")
    for r in range(4):
        a(f"v_mov_b32 v{12 + r}, 0")
    a("ds_write_b128 v9, v[12:15] offset:5120")
    a("ds_write_b128 v9, v[12:15] offset:6144")
    a("s_mov_b32 exec_hi, 0")
    a("ds_write_b128 v9, v[12:15] offset:7168")
    a("s_mov_b64 exec, -1")
    a("s_mov_b32 s55, 0")
    a.label("CV_JOB")
    a("s_lshr_b32 s17, s50, 1")
    a("s_lshl_b32 s17, s17, 2")
    a("s_load_dword s19, s[72:73], s17")
    a(f"s_add_u32 s17, s16, {HB}")
    a("v_add_u32 v10, 1, v2")
    a("v_and_b32 v11, 3, v10")
    a(f"v_mul_u32_u24 v11, {CS}, v11")
    a("v_lshrrev_b32 v10, 2, v10")
    a("v_lshl_add_u32 v10, v10, 3, v11")
    a("v_lshl_add_u32 v10, v3, 4, v10")
    a(f"v_add_u32 v{VA}, s17, v10")
    a("s_cmp_eq_u32 s51, 1")
    a("s_cselect_b32 s18, 31, 63")
    a("s_cselect_b32 s53, 8, 4")
    a("v_sub_u32 v10, s18, v2")
    a("v_mul_u32_u24 v10, 80, v10")
    a("v_add_u32 v10, s16, v10")
    a(f"v_lshl_add_u32 v{VBB}, v3, 4, v10")
    a("v_lshlrev_b32 v11, 3, v3")
    a("v_sub_u32 v10, v10, v11")
    a(f"v_add_u32 v{VU}, 8, v10")
    for r in range(16):
        a(f"v_mov_b32 v{Y + r}, 0")
    a("s_waitcnt vmcnt(5)")
    a("s_cmp_lg_u32 s55, 0")
    a("s_cbranch_scc1 CV_HW")
    a("s_waitcnt vmcnt(0)")
    a.label("CV_HW")
    a(f"v_readfirstlane_b32 s17, v{HREG}")
    a(f"v_readfirstlane_b32 s18, v{HREG + 1}")
    a("v_cmp_eq_u32 vcc, 3, v1")
    a("v_mov_b32 v16, s17")
    a("v_mov_b32 v17, s18")
    a("v_cndmask_b32 v16, 0, v16, vcc")
    a("v_cndmask_b32 v17, 0, v17, vcc")
    a("s_mov_b64 exec, 15")
    build(12, 16, 9, HB)
    a("s_mov_b64 exec, -1")
    for i in range(4):
        build(HREG + 4 * i, HREG + 16 + 2 * i, 9, HB + 64 + 1024 * i)
    a("s_cmp_lt_u32 s52, 2")
    a("s_cbranch_scc1 CV_NOH")
    a("s_add_u32 s18, s50, 1")
    h_load(a, 18)
    a.label("CV_NOH")
    a("s_cmp_lg_u32 s55, 0")
    a("s_cbranch_scc1 CV_UOWN")
    a("s_lshl_b32 s17, s26, 2")
    a(f"s_add_u32 s17, s17, {RES + 32}")
    a("v_mov_b32 v10, s17")
    a("s_mov_b32 s17, 0")
    a.label("CV_UW")
    a("ds_read_b32 v11, v10")
    a("s_waitcnt lgkmcnt(0)")
    a("v_readfirstlane_b32 s18, v11")
    a("s_add_u32 s17, s17, 1")
    a(f"s_cmp_gt_u32 s17, {POLL_LIMIT * 8}")
    a("s_cbranch_scc1 CV_GO")
    a("s_cmp_eq_u32 s18, 0")
    a("s_cbranch_scc1 CV_UW")
    a("s_branch CV_GO")
    a.label("CV_UOWN")
    a("s_waitcnt vmcnt(0)")
    a.label("CV_GO")
    stamp(a, 1)

    def rd(s):
        st = s % 4
        bo = (s // 2) * 80 + (s % 2) * 32
        return [f"ds_read_b64 {vr(FR[st], 2)}, v{VA} offset:{s * 32}",
                f"ds_read_b64 {vr(FR[st] + 2, 2)}, v{VA} offset:{s * 32 + 8}",
                f"ds_read_b128 {vr(FR[st] + 4, 4)}, v{VBB} offset:{bo}"]
    for s in range(3):
        for r in rd(s):
            a(r)
    a.label("CV_SEG")
    for s in range(16):
        for r in rd(s + 3):
            a(r)
        a("s_waitcnt lgkmcnt(9)")
        st = s % 4
        a(f"v_mfma_f32_32x32x16_bf16 {vr(Y, 16)}, {vr(FR[st], 4)}, {vr(FR[st] + 4, 4)}, {vr(Y, 16)}")
    a(f"v_add_u32 v{VBB}, 640, v{VBB}")
    a(f"v_add_u32 v{VA}, 512, v{VA}")
    a("s_sub_u32 s53, s53, 1")
    a("s_cmp_lg_u32 s53, 0")
    a("s_cbranch_scc1 CV_SEG")
    for q in range(4):
        a(f"ds_read_b64 {vr(64 + 2 * q, 2)}, v{VU} offset:{48 - 16 * q}")
    a("s_and_b32 s17, s50, 1")
    a("s_lshl_b32 s18, s19, 16")
    a("s_and_b32 s19, s19, 0xffff0000")
    a("s_cmp_eq_u32 s17, 0")
    a("s_cselect_b32 s19, s18, s19")
    a("v_lshlrev_b32 v11, 6, v2")
    a("v_lshl_add_u32 v11, v3, 3, v11")
    a("s_lshl_b32 s17, s50, 12")
    a("s_lshl_b32 s18, s51, 11")
    a("s_add_u32 s17, s17, s18")
    a(f"s_add_u32 s17, s17, 0x{WS_Z:x}")
    a("s_mov_b32 s18, 0xffff0000")
    a("s_waitcnt lgkmcnt(0)")
    a("s_nop 4")
    for q in range(4):
        u = 64 + 2 * q
        a(f"v_and_b32 v16, s18, v{u + 1}")
        a(f"v_lshlrev_b32 v17, 16, v{u + 1}")
        a(f"v_and_b32 v18, s18, v{u}")
        a(f"v_lshlrev_b32 v19, 16, v{u}")
        for r in range(4):
            a(f"v_fmac_f32 v{Y + 4 * q + r}, s19, v{16 + r}")
        d = 72 + 2 * q
        a(f"v_cvt_pk_bf16_f32 v{d}, v{Y + 4 * q}, v{Y + 4 * q + 1}")
        a(f"v_cvt_pk_bf16_f32 v{d + 1}, v{Y + 4 * q + 2}, v{Y + 4 * q + 3}")
        a(f"buffer_store_dwordx2 {vr(d, 2)}, v11, s[{SWS}:{SWS + 3}], s17 offen offset:{16 * q} sc1")
    a("s_sub_u32 s52, s52, 1")
    a("s_cmp_eq_u32 s52, 0")
    a("s_cbranch_scc1 CV_DONE")
    a("s_add_u32 s50, s50, 1")
    a("s_mov_b32 s55, 1")
    u_dma(a, 50, 16, 20, 17)
    a("s_branch CV_JOB")
    a.label("CV_DONE")


def gen(a):
    a.raw(f".globl {KNAME}")
    a.raw(".p2align 8")
    a.raw(f".type {KNAME},@function")
    a.label(KNAME)
    a("s_cmp_ge_u32 s2, 256")
    a("s_cbranch_scc1 L_END")
    a("s_load_dwordx4 s[4:7], s[0:1], 0")
    a("s_load_dwordx2 s[8:9], s[0:1], 96")
    a("s_load_dwordx2 s[60:61], s[0:1], 16")
    a("s_load_dwordx8 s[64:71], s[0:1], 32")
    a("s_load_dwordx4 s[72:75], s[0:1], 64")
    a("s_load_dwordx4 s[76:79], s[0:1], 80")
    a("v_and_b32 v1, 63, v0")
    a("v_lshrrev_b32 v2, 6, v0")
    a("s_nop 0")
    a("v_readfirstlane_b32 s26, v2")
    a("s_mov_b32 s56, 0")
    a("s_mov_b32 s57, 0")
    if DIAG:
        for i in range(16):
            a(f"s_mov_b32 s{80 + i}, 0")
    a("s_waitcnt lgkmcnt(0)")
    srd(a, SWS, 8, WS_SIZE)
    stamp(a, 0)
    a("s_cmp_lg_u32 s2, 0")
    a("s_cbranch_scc1 L_NOPUB")
    a("s_cmp_lg_u32 s26, 8")
    a("s_cbranch_scc1 L_NOPUB")
    a("s_memrealtime s[56:57]")
    srd(a, 16, 78, 256)
    a("s_waitcnt lgkmcnt(0)")
    a("s_or_b32 s56, s56, 1")
    a("s_not_b32 s57, s56")
    a("v_mov_b32 v2, 0")
    a("v_mov_b32 v4, s56")
    a("v_mov_b32 v5, s57")
    a("s_mov_b64 exec, 1")
    a("buffer_store_dwordx2 v[4:5], v2, s[16:19], 0 offen sc0 sc1")
    a("s_mov_b64 exec, -1")
    a.label("L_NOPUB")
    a(f"v_mov_b32 v2, {RES + 8}")
    a("v_mov_b32 v4, 0")
    a("v_mov_b32 v5, 0")
    a("ds_write_b64 v2, v[4:5]")
    a("ds_write_b64 v2, v[4:5] offset:8")
    a("ds_write_b64 v2, v[4:5] offset:24")
    a("ds_write_b64 v2, v[4:5] offset:32")
    a("s_cmp_ge_u32 s2, 192")
    a("s_cbranch_scc1 P1_E")
    a("s_and_b32 s3, s2, 7")
    a("s_lshr_b32 s10, s2, 3")
    a("s_and_b32 s24, s3, 3")
    a("s_lshl_b32 s24, s24, 2")
    a("s_and_b32 s11, s10, 3")
    a("s_add_u32 s24, s24, s11")
    a("s_lshr_b32 s25, s3, 2")
    a("s_mul_i32 s25, s25, 6")
    a("s_lshr_b32 s10, s10, 2")
    a("s_add_u32 s25, s25, s10")
    a("s_lshl_b32 s27, s24, 7")
    a("s_lshr_b32 s28, s25, 2")
    a("s_and_b32 s29, s25, 3")
    a("s_lshl_b32 s29, s29, 3")
    a("s_lshl_b32 s55, s25, 4")
    a("s_add_u32 s55, s55, s24")
    a("s_cmp_lt_u32 s26, 8")
    a("s_cbranch_scc1 P1_COMP")
    SX, SW = 16, 20
    srd(a, SX, 4, XBYTES)
    srd(a, SW, 6, WQKV_BYTES)
    a("s_mul_i32 s34, s11, 3")
    a("s_lshl_b32 s10, s10, 1")
    a("s_add_u32 s34, s34, s10")
    a("s_cmp_ge_u32 s34, 10")
    a("s_cselect_b32 s10, 10, 0")
    a("s_sub_u32 s34, s34, s10")
    a("s_sub_u32 s35, s26, 8")
    VXO, VWO = 4, 8
    a("v_lshrrev_b32 v2, 3, v1")
    a("v_and_b32 v3, 7, v1")
    a("v_lshrrev_b32 v13, 4, v1")
    a("s_lshl_b32 s10, s35, 5")
    a("s_add_u32 s10, s10, s27")
    a("v_add_u32 v2, s10, v2")
    a("s_movk_i32 s11, 1280")
    a("v_mul_lo_u32 v2, v2, s11")
    a("v_xor_b32 v14, v3, v13")
    a("v_xor_b32 v15, 4, v14")
    a("v_lshlrev_b32 v14, 4, v14")
    a("v_lshlrev_b32 v15, 4, v15")
    for i in range(4):
        a(f"v_add_u32 v{VXO + i}, {i * 8 * 1280 - 1024 * i}, v2")
        a(f"v_add_u32 v{VXO + i}, v{VXO + i}, v{14 + (i & 1)}")
    a("s_mul_i32 s10, s25, 320")
    a("s_mul_i32 s11, s35, 61440")
    a("s_add_u32 s10, s10, s11")
    a("s_movk_i32 s11, 3840")
    for i in range(5):
        a(f"v_add_u32 v2, {64 * i}, v1")
        a("v_mul_u32_u24 v3, 0xcccd, v2")
        a("v_lshrrev_b32 v3, 20, v3")
        a("v_mul_u32_u24 v14, 20, v3")
        a("v_sub_u32 v2, v2, v14")
        a("v_lshrrev_b32 v14, 3, v3")
        a("v_and_b32 v14, 1, v14")
        a("v_lshlrev_b32 v14, 1, v14")
        a("v_xor_b32 v2, v2, v14")
        a("v_lshlrev_b32 v2, 4, v2")
        a("v_mul_lo_u32 v3, v3, s11")
        a("v_add3_u32 v2, v2, v3, s10")
        comp = 1024 * i if i < 4 else 0
        if comp:
            a(f"v_subrev_u32 v{VWO + i}, {comp}, v2")
        else:
            a(f"v_mov_b32 v{VWO + i}, v2")
    a("s_lshl_b32 s42, s35, 12")
    a("s_mul_i32 s43, s35, 5120")
    a("s_add_u32 s43, s43, 16384")
    a("s_mov_b32 s32, 0")
    a("s_mov_b32 s33, 0")

    def issue_stage():
        a("s_lshl_b32 s30, s34, 7")
        a("s_mul_i32 s31, s34, 245760")
        a("s_add_u32 m0, s32, s42")
        a("s_add_u32 s34, s34, 1")
        for i in range(4):
            o = f" offset:{1024 * i}" if i else ""
            a(f"buffer_load_dwordx4 v{VXO + i}, s[{SX}:{SX + 3}], s30 offen{o} lds")
        a("s_add_u32 m0, s32, s43")
        a("s_cmp_ge_u32 s34, 10")
        for i in range(4):
            o = f" offset:{1024 * i}" if i else ""
            a(f"buffer_load_dwordx4 v{VWO + i}, s[{SW}:{SW + 3}], s31 offen{o} lds")
        a("s_cselect_b32 s34, 0, s34")
        a("s_add_u32 m0, m0, 4096")
        a(f"s_add_u32 s32, s32, {G_STAGE}")
        a(f"buffer_load_dwordx4 v{VWO + 4}, s[{SW}:{SW + 3}], s31 offen lds")
        a(f"s_cmp_ge_u32 s32, {4 * G_STAGE}")
        a("s_cselect_b32 s32, 0, s32")

    srd(a, 36, 78, 256)
    a("v_mov_b32 v16, 0")
    a("v_lshlrev_b32 v20, 6, v1")
    a(f"v_add_u32 v20, 0x{WS_F1 + 192 * 64:x}, v20")
    issue_stage()
    issue_stage()
    a("s_waitcnt vmcnt(9) lgkmcnt(0)")
    a("s_barrier")
    stamp(a, 1)
    issue_stage()
    issue_stage()
    a("buffer_load_dwordx2 v[18:19], v16, s[36:39], 0 offen sc0 sc1")
    a("s_mov_b32 s33, 4")
    a.label("P1_LLOOP")
    a("s_waitcnt vmcnt(18)")
    a("s_barrier")
    issue_stage()
    a("s_add_u32 s33, s33, 1")
    a("s_cmp_lt_u32 s33, 10")
    a("s_cbranch_scc1 P1_LLOOP")
    a("s_waitcnt vmcnt(18)")
    a("s_barrier")
    nonce_check_or_poll(a, 16, 36)
    a("s_cmp_lg_u32 s26, 8")
    a("s_cbranch_scc1 P1_LNON")
    nonce_to_lds(a, 16)
    a.label("P1_LNON")
    a("s_waitcnt vmcnt(9)")
    a("s_barrier")
    a("s_waitcnt vmcnt(0)")
    a("s_barrier")
    job_params(a, 35, True)
    a("s_barrier")
    stamp(a, 2)
    a(f"buffer_load_dwordx2 v[22:23], v20, s[{SWS}:{SWS + 3}], 0 offen sc0 sc1")
    a("s_barrier")
    a("s_barrier")
    a("s_waitcnt vmcnt(0)")
    a.label("P1_HU")
    poll(a, [20], 22, 10, preloaded=True)
    a("s_sub_u32 s35, s26, 8")
    a(f"s_mul_i32 s16, s35, {CW}")
    a(f"s_add_u32 s16, s16, {CONVB}")
    u_dma(a, 50, 16, 4, 17)
    a("s_lshl_b32 s17, s35, 2")
    a(f"s_add_u32 s17, s17, {RES + 32}")
    a("v_mov_b32 v4, s17")
    a("v_mov_b32 v5, 1")
    a("s_waitcnt vmcnt(0)")
    a("ds_write_b32 v4, v5")
    stamp(a, 3)
    a("s_branch P2_COMMON")

    a.label("P1_COMP")
    VXB0, VXB1, VWE0, VWO0 = 16, 17, 18, 19
    VXC0, VXC1, VWEC, VWOC = 20, 21, 22, 23
    X0, W0, X1, W1, ACC = 28, 36, 56, 64, 84
    a("v_lshrrev_b32 v13, 4, v1")
    a("s_and_b32 s10, s26, 3")
    a("s_lshr_b32 s11, s26, 2")
    a("v_and_b32 v2, 15, v1")
    a("v_lshrrev_b32 v3, 1, v2")
    a("v_xor_b32 v3, v3, v13")
    a("s_lshl_b32 s35, s10, 5")
    a("v_add_u32 v14, s35, v2")
    a("v_lshlrev_b32 v14, 7, v14")
    a(f"v_lshl_add_u32 v{VXB0}, v3, 4, v14")
    a("v_xor_b32 v3, 4, v3")
    a(f"v_lshl_add_u32 v{VXB1}, v3, 4, v14")
    a("v_lshrrev_b32 v3, 2, v2")
    a("v_lshl_add_u32 v3, v13, 3, v3")
    a("v_mul_u32_u24 v3, 320, v3")
    a("v_and_b32 v14, 3, v1")
    a("v_lshl_add_u32 v3, v14, 3, v3")
    a("s_mul_i32 s35, s11, 160")
    a("s_add_u32 s35, s35, 16384")
    a("v_add_u32 v3, s35, v3")
    a("v_and_b32 v14, 1, v13")
    a("v_lshlrev_b32 v14, 5, v14")
    a("v_add_u32 v15, v3, v14")
    a("v_sub_u32 v14, v3, v14")
    a("s_cmp_eq_u32 s11, 0")
    a("s_cselect_b64 vcc, -1, 0")
    a("s_nop 1")
    a(f"v_cndmask_b32 v{VWE0}, v14, v15, vcc")
    a(f"v_cndmask_b32 v{VWO0}, v15, v14, vcc")
    for r in range(40):
        a(f"v_mov_b32 v{ACC + r}, 0")

    def reads(ks, XS, WS_):
        xb = VXC0 if ks == 0 else VXC1
        x = [f"ds_read_b128 {vr(XS + 4 * i, 4)}, v{xb} offset:{i * 2048}" for i in range(2)]
        w = []
        for j in range(5):
            wb = VWEC if j % 2 == 0 else VWOC
            for T in range(2):
                w.append(f"ds_read_b64_tr_b16 {vr(WS_ + 4 * j + 2 * T, 2)}, v{wb} offset:{ks * 10240 + T * 1280 + j * 32}")
        return [x[0], w[0], w[1], x[1]] + w[2:]

    def mfmas(XS, WS_, vtype):
        m = []
        for j in range(5):
            for i in range(2):
                d = ACC + (i * 5 + j) * 4
                if vtype:
                    m.append(f"v_mfma_f32_16x16x32_bf16 {vr(d, 4)}, {vr(XS + 4 * i, 4)}, {vr(WS_ + 4 * j, 4)}, {vr(d, 4)}")
                else:
                    m.append(f"v_mfma_f32_16x16x32_bf16 {vr(d, 4)}, {vr(WS_ + 4 * j, 4)}, {vr(XS + 4 * i, 4)}, {vr(d, 4)}")
        return m

    def set_bases():
        a(f"v_add_u32 v{VXC0}, s33, v{VXB0}")
        a(f"v_add_u32 v{VXC1}, s33, v{VXB1}")
        a(f"v_add_u32 v{VWEC}, s33, v{VWE0}")
        a(f"v_add_u32 v{VWOC}, s33, v{VWO0}")

    def interleave(m, r):
        k = 0
        for i, mm in enumerate(m):
            a(mm)
            n = 2 if i < 2 else 1
            for _ in range(n):
                if k < len(r):
                    a(r[k]); k += 1
        while k < len(r):
            a(r[k]); k += 1

    a("s_mov_b32 s33, 0")
    a("s_mov_b32 s34, 0")
    set_bases()
    job_params(a, 26, True)
    a("s_cmp_ge_u32 s26, 4")
    a("s_cbranch_scc1 P1_NOH")
    h_load(a, 50)
    a.label("P1_NOH")
    a("s_waitcnt lgkmcnt(0)")
    a("s_barrier")
    stamp(a, 1)
    for r in reads(0, X0, W0):
        a(r)
    a("s_cmp_eq_u32 s28, 2")
    a("s_cbranch_scc1 P1_LOOP_V")
    for vtype in (0, 1):
        lbl = "P1_LOOP_V" if vtype else "P1_LOOP_QK"
        a.raw(".p2align 6")
        a.label(lbl)
        a("s_waitcnt lgkmcnt(0)")
        interleave(mfmas(X0, W0, vtype), reads(1, X1, W1))
        a(f"s_add_u32 s33, s33, {G_STAGE}")
        a(f"s_cmp_ge_u32 s33, {4 * G_STAGE}")
        a("s_cselect_b32 s33, 0, s33")
        a("s_waitcnt lgkmcnt(0)")
        a("s_barrier")
        set_bases()
        interleave(mfmas(X1, W1, vtype), reads(0, X0, W0))
        a("s_add_u32 s34, s34, 1")
        a("s_cmp_lt_u32 s34, 10")
        a(f"s_cbranch_scc1 {lbl}")
        a("s_waitcnt lgkmcnt(0)")
        a("s_barrier")
        stamp(a, 2)

        a("s_mul_i32 s35, s11, 80")
        OFFJ = 28
        if not vtype:
            a("s_lshl_b32 s44, s10, 5")
            a("v_add_u32 v3, s44, v2")
            a("v_mul_u32_u24 v3, 48, v3")
            a("v_lshlrev_b32 v14, 2, v13")
            a("v_add_u32 v14, s35, v14")
            for j in range(5):
                a(f"v_add_u32 v15, {16 * j}, v14")
                a("v_mul_u32_u24 v24, 0xcccd, v15")
                a("v_lshrrev_b32 v24, 20, v24")
                a("v_mul_u32_u24 v25, 20, v24")
                a("v_sub_u32 v25, v15, v25")
                a("v_mul_u32_u24 v24, 6144, v24")
                a("v_lshl_add_u32 v24, v25, 1, v24")
                a(f"v_add_u32 v{OFFJ + j}, v24, v3")
            qs = math.log2(math.e) / math.sqrt(20.0)
            a(f"s_mov_b32 s44, {f32hex(qs)}")
            a("s_cmp_eq_u32 s28, 0")
            a("s_cselect_b32 s44, s44, 1.0")
            for i in range(2):
                for j in range(5):
                    d = ACC + (i * 5 + j) * 4
                    t = 36 + ((i * 5 + j) % 4) * 2
                    for r in range(4):
                        a(f"v_mul_f32 v{d + r}, s44, v{d + r}")
                    a(f"v_cvt_pk_bf16_f32 v{t}, v{d}, v{d + 1}")
                    a(f"v_cvt_pk_bf16_f32 v{t + 1}, v{d + 2}, v{d + 3}")
                    a(f"ds_write_b64 v{OFFJ + j}, {vr(t, 2)} offset:{768 * i}")
            a("s_movk_i32 s45, 6144")
            a("s_mul_i32 s46, s29, 98304")
            a("s_mul_i32 s48, s27, 48")
            a("s_add_u32 s46, s46, s48")
            a(f"s_add_u32 s46, s46, 0x{WS_Q:x}")
            a("s_mul_i32 s48, s29, 196608")
            a("s_lshr_b32 s49, s27, 8")
            a("s_mul_i32 s49, s49, 24576")
            a("s_add_u32 s48, s48, s49")
            a("s_and_b32 s49, s27, 255")
            a("s_mul_i32 s49, s49, 48")
            a("s_add_u32 s48, s48, s49")
            a(f"s_add_u32 s48, s48, 0x{WS_KV:x}")
            a("s_cmp_eq_u32 s28, 0")
            a("s_cselect_b32 s46, s46, s48")
            a("s_mov_b32 s48, 196608")
            a("s_cselect_b32 s47, 98304, s48")
            a("s_branch P1_COPY")
        else:
            a("v_lshrrev_b32 v3, 1, v13")
            a("s_lshl_b32 s44, s10, 2")
            a("v_add_u32 v3, s44, v3")
            a("v_mul_u32_u24 v3, 336, v3")
            a("v_and_b32 v14, 1, v13")
            a("v_lshl_add_u32 v3, v14, 3, v3")
            a("v_add_u32 v14, s35, v2")
            for j in range(5):
                a(f"v_add_u32 v15, {16 * j}, v14")
                a("v_mul_u32_u24 v24, 0xcccd, v15")
                a("v_lshrrev_b32 v24, 20, v24")
                a("v_mul_u32_u24 v25, 20, v24")
                a("v_sub_u32 v25, v15, v25")
                a("v_mul_u32_u24 v24, 5376, v24")
                a("v_lshl_add_u32 v24, v25, 4, v24")
                a(f"v_add_u32 v{OFFJ + j}, v24, v3")
            for i in range(2):
                for j in range(5):
                    d = ACC + (i * 5 + j) * 4
                    t = 36 + ((i * 5 + j) % 4) * 2
                    a(f"v_cvt_pk_bf16_f32 v{t}, v{d}, v{d + 1}")
                    a(f"v_cvt_pk_bf16_f32 v{t + 1}, v{d + 2}, v{d + 3}")
                    a(f"ds_write_b64 v{OFFJ + j}, {vr(t, 2)} offset:{672 * i}")
            a("s_mul_i32 s44, s26, 5376")
            a("v_mul_u32_u24 v14, 336, v1")
            a("v_add_u32 v3, s44, v14")
            for r in range(4):
                a(f"v_mov_b32 v{44 + r}, 0x3f803f80")
            a("s_mov_b64 exec, 0xffff")
            a("ds_write_b128 v3, v[44:47] offset:320")
            a("s_mov_b64 exec, -1")
            a("s_movk_i32 s45, 5376")
            a("s_mul_i32 s46, s29, 196608")
            a("s_lshr_b32 s49, s27, 8")
            a("s_mul_i32 s49, s49, 24576")
            a("s_add_u32 s46, s46, s49")
            a("s_and_b32 s49, s27, 255")
            a("s_mul_i32 s49, s49, 42")
            a("s_add_u32 s46, s46, s49")
            a(f"s_add_u32 s46, s46, 0x{WS_KV + 12288:x}")
            a("s_mov_b32 s47, 196608")
    a.label("P1_COPY")
    a("s_waitcnt lgkmcnt(0)")
    a("s_barrier")
    a("s_cmp_lt_u32 s26, 4")
    a("s_cbranch_scc1 P15_CONV")
    a("v_lshlrev_b32 v2, 4, v1")
    a("s_sub_u32 s10, s26, 4")
    a("s_lshl_b32 s10, s10, 1")
    a("s_mul_i32 s11, s10, s45")
    a("s_mul_i32 s48, s10, s47")
    a("s_add_u32 s46, s46, s48")
    a("v_add_u32 v3, s11, v2")
    a("v_add_u32 v14, s45, v3")
    a("s_add_u32 s48, s46, s47")
    a("s_add_u32 s49, s46, 4096")
    a("s_add_u32 s53, s48, 4096")
    for h in range(2):
        for i in range(6):
            a(f"ds_read_b128 {vr(28 + (h * 6 + i) * 4, 4)}, v{3 if h == 0 else 14} offset:{1024 * i}")
    a("v_add_u32 v15, 5120, v2")
    a("v_cmp_gt_u32 vcc, s45, v15")
    for h in range(2):
        for i in range(5):
            a(f"s_waitcnt lgkmcnt({11 - (h * 6 + i)})")
            so = (46 if h == 0 else 48) if i < 4 else (49 if h == 0 else 53)
            a(f"buffer_store_dwordx4 {vr(28 + (h * 6 + i) * 4, 4)}, v2, s[{SWS}:{SWS + 3}], s{so} offen offset:{1024 * (i % 4)} sc1")
    a("s_waitcnt lgkmcnt(0)")
    a("s_and_saveexec_b64 s[50:51], vcc")
    a(f"buffer_store_dwordx4 {vr(28 + 5 * 4, 4)}, v2, s[{SWS}:{SWS + 3}], s49 offen offset:1024 sc1")
    a(f"buffer_store_dwordx4 {vr(28 + 11 * 4, 4)}, v2, s[{SWS}:{SWS + 3}], s53 offen offset:1024 sc1")
    a("s_mov_b64 exec, s[50:51]")
    a("s_branch P1_SIGNAL")

    a.label("P1_E")
    SK, SV, SSH = 16, 20, 44
    a("s_sub_u32 s24, s2, 192")
    a("s_mov_b32 s55, s2")
    a("s_cmp_ge_u32 s26, 10")
    a("s_cbranch_scc1 P1_E_B1")
    srd(a, SK, 64, XBYTES)
    srd(a, SV, 66, XBYTES)
    srd(a, SSH, 68, 640 * 8)
    a("s_lshl_b32 s25, s24, 5")
    a("s_movk_i32 s27, 5120")
    a("s_movk_i32 s28, 1280")
    KR, VR_, WB, T = 16, 38, 56, 64
    a("v_mul_u32_u24 v3, 0xcccd, v0")
    a("v_lshrrev_b32 v3, 23, v3")
    a("v_mul_u32_u24 v4, 160, v3")
    a("v_sub_u32 v4, v0, v4")
    a("v_lshlrev_b32 v5, 3, v3")
    a("v_add_u32 v5, s25, v5")
    a("v_mul_lo_u32 v6, v5, s28")
    a("v_lshl_add_u32 v6, v4, 3, v6")
    a("v_subrev_u32 v7, 3840, v6")
    a("v_cmp_eq_u32 vcc, 0, v5")
    a(f"v_mov_b32 v8, 0x{OOB:x}")
    a("v_lshlrev_b32 v9, 5, v4")
    a("v_cndmask_b32 v7, v7, v8, vcc")
    a("v_mul_u32_u24 v10, 320, v4")
    a("v_sub_u32 v11, 3, v3")
    a("v_lshl_add_u32 v54, v11, 4, v10")
    for r in range(3):
        a(f"buffer_load_dwordx2 {vr(KR + 2 * r, 2)}, v7, s[{SK}:{SK + 3}], 0 offen offset:{1280 * r}")
    for r in range(8):
        so = "0" if r < 4 else "s27"
        a(f"buffer_load_dwordx2 {vr(KR + 6 + 2 * r, 2)}, v6, s[{SK}:{SK + 3}], {so} offen offset:{1280 * (r % 4)}")
    for r in range(8):
        so = "0" if r < 4 else "s27"
        a(f"buffer_load_dwordx2 {vr(VR_ + 2 * r, 2)}, v6, s[{SV}:{SV + 3}], {so} offen offset:{1280 * (r % 4)}")
    a(f"buffer_load_dwordx4 {vr(WB, 4)}, v9, s[{SSH}:{SSH + 3}], 0 offen")
    a(f"buffer_load_dwordx4 {vr(WB + 4, 4)}, v9, s[{SSH}:{SSH + 3}], 0 offen offset:16")
    stamp(a, 1)
    a("s_mov_b32 s29, 0xffff0000")
    job_params(a, 26, False)
    a("s_waitcnt vmcnt(0)")
    a("s_cmp_ge_u32 s26, 4")
    a("s_cbranch_scc1 P1_E_NOH")
    h_load(a, 50)
    a.label("P1_E_NOH")
    for ch in range(4):
        KF, WF, UO = T, T + 11, 4
        dw, hi = ch // 2, ch % 2
        for r in range(11):
            if hi == 0:
                a(f"v_lshlrev_b32 v{KF + r}, 16, v{KR + 2 * r + dw}")
            else:
                a(f"v_and_b32 v{KF + r}, s29, v{KR + 2 * r + dw}")
        w = WB + 2 * ch
        a(f"v_lshlrev_b32 v{WF}, 16, v{w}")
        a(f"v_and_b32 v{WF + 1}, s29, v{w}")
        a(f"v_lshlrev_b32 v{WF + 2}, 16, v{w + 1}")
        a(f"v_and_b32 v{WF + 3}, s29, v{w + 1}")
        for r in range(8):
            a(f"v_mul_f32 v{UO + r}, v{WF + 3}, v{KF + r}")
            a(f"v_fmac_f32 v{UO + r}, v{WF + 2}, v{KF + r + 1}")
            a(f"v_fmac_f32 v{UO + r}, v{WF + 1}, v{KF + r + 2}")
            a(f"v_fmac_f32 v{UO + r}, v{WF}, v{KF + r + 3}")
            if hi == 0:
                a(f"v_lshlrev_b32 v{T + 15}, 16, v{VR_ + 2 * r + dw}")
            else:
                a(f"v_and_b32 v{T + 15}, s29, v{VR_ + 2 * r + dw}")
            a(f"v_mul_f32 v{UO + r}, v{UO + r}, v{T + 15}")
        for d in range(4):
            a(f"v_cvt_pk_bf16_f32 v{12 + d}, v{UO + 7 - 2 * d}, v{UO + 6 - 2 * d}")
        a(f"ds_write_b128 v54, v[12:15] offset:{80 * ch}")
        a("s_nop 0")
    a("s_waitcnt lgkmcnt(0)")
    a.label("P1_E_B1")
    a("s_cmp_lt_u32 s26, 8")
    a("s_cbranch_scc1 P1_E_NON")
    srd(a, 36, 78, 256)
    a("v_mov_b32 v16, 0")
    a("v_mov_b32 v18, 0")
    a("v_mov_b32 v19, 0")
    nonce_check_or_poll(a, 16, 36)
    nonce_to_lds(a, 16)
    a.label("P1_E_NON")
    a("s_barrier")
    stamp(a, 2)
    a("s_cmp_lt_u32 s26, 4")
    a("s_cbranch_scc1 P15_CONV")
    a("s_cmp_lt_u32 s26, 8")
    a("s_cbranch_scc1 P1_E_COPY")
    a("s_sub_u32 s35, s26, 8")
    job_params(a, 35, False)
    a("v_lshlrev_b32 v20, 6, v1")
    a(f"v_add_u32 v20, 0x{WS_F1 + 192 * 64:x}, v20")
    a("v_mov_b32 v22, 0")
    a("v_mov_b32 v23, 0")
    a("s_branch P1_HU")
    a.label("P1_E_COPY")
    a("v_lshrrev_b32 v2, 2, v1")
    a("v_mul_u32_u24 v2, 80, v2")
    a("v_and_b32 v3, 3, v1")
    a("v_lshl_add_u32 v2, v3, 4, v2")
    a("s_sub_u32 s11, s26, 4")
    a("s_mul_i32 s10, s11, 12800")
    a("v_add_u32 v2, s10, v2")
    a("v_lshlrev_b32 v3, 4, v1")
    a("s_sub_u32 s10, 63, s24")
    a("s_mul_i32 s10, s10, 40960")
    a("s_mul_i32 s11, s11, 10240")
    a("s_add_u32 s10, s10, s11")
    a(f"s_add_u32 s10, s10, 0x{WS_U:x}")
    a("s_add_u32 s11, s10, 4096")
    a("s_add_u32 s29, s10, 8192")
    for i in range(10):
        a(f"ds_read_b128 {vr(16 + 4 * i, 4)}, v2 offset:{1280 * i}")
    for i in range(10):
        a(f"s_waitcnt lgkmcnt({9 - i})")
        so = [10, 11, 29][i // 4]
        a(f"buffer_store_dwordx4 {vr(16 + 4 * i, 4)}, v3, s[{SWS}:{SWS + 3}], s{so} offen offset:{1024 * (i % 4)} sc1")
    a.label("P1_SIGNAL")
    read_nonce(a, 4)
    a(f"v_mov_b32 v4, {RES + 16}")
    a("v_mov_b32 v5, 1")
    a("s_waitcnt vmcnt(0)")
    a("s_mov_b64 exec, 1")
    a("ds_add_rtn_u32 v6, v4, v5")
    a("s_waitcnt lgkmcnt(0)")
    a("v_readfirstlane_b32 s10, v6")
    a("s_mov_b64 exec, -1")
    a("s_cmp_lg_u32 s10, 3")
    a("s_cbranch_scc1 P1_NOSIG")
    write_flag(a, WS_F1, 55, 4)
    a.label("P1_NOSIG")
    stamp(a, 3)
    a("s_branch P2_COMMON")

    a.label("P15_CONV")
    conv_run(a)
    read_nonce(a, 16)
    stamp(a, 3)

    a.label("P2_COMMON")
    a("v_and_b32 v2, 31, v1")
    a("v_lshrrev_b32 v3, 5, v1")
    a("s_and_b32 s24, s2, 7")
    a("s_lshl_b32 s24, s24, 2")
    a("s_lshr_b32 s10, s2, 3")
    a("s_and_b32 s10, s10, 3")
    a("s_add_u32 s24, s24, s10")
    a("s_lshr_b32 s25, s2, 5")
    a("s_mul_i32 s27, s24, 196608")
    a(f"s_add_u32 s27, s27, 0x{WS_KV:x}")
    a("s_cmp_ge_u32 s26, 8")
    a("s_cbranch_scc1 P2_HELP")

    VK, VKH, VV = 5, 6, 7
    QLO, QHI = 8, 12
    KB = [16, 24]
    VB, P = 32, 40
    S = [48, 64]
    O, NM, TMP = 80, 96, 112
    a("v_and_b32 v14, 0x13, v2")
    a("v_and_b32 v15, 4, v2")
    a("v_lshl_or_b32 v14, v15, 1, v14")
    a("v_and_b32 v15, 8, v2")
    a("v_lshrrev_b32 v15, 1, v15")
    a("v_or_b32 v14, v14, v15")
    a("v_mul_u32_u24 v14, 48, v14")
    a(f"v_add_u32 v{TMP}, 32, v14")
    a(f"v_lshl_add_u32 v{TMP + 1}, v3, 4, v14")
    a("v_min_u32 v14, 20, v2")
    a("v_lshlrev_b32 v14, 4, v14")
    a("v_mul_u32_u24 v15, 336, v3")
    a(f"v_add_u32 v{TMP + 2}, v14, v15")
    a(f"v_add_u32 v{TMP + 2}, 12288, v{TMP + 2}")
    a(f"v_mov_b32 v{VK}, v{TMP + 1}")
    a(f"v_mov_b32 v{VKH}, v{TMP}")
    a(f"v_mov_b32 v{VV}, v{TMP + 2}")
    a("s_lshl_b32 s10, s26, 5")
    a("v_add_u32 v14, s10, v2")
    a("v_mul_u32_u24 v14, 48, v14")
    a(f"v_add_u32 v14, {QST}, v14")
    a("v_lshl_add_u32 v15, v3, 4, v14")
    a(f"v_mov_b32 v{TMP + 3}, {RES + 8}")
    for r in range(16):
        a(f"v_mov_b32 v{O + r}, 0")
    for r in range(4):
        a(f"v_mov_b32 v{P + 4 + r}, 0")
        a(f"v_mov_b32 v{VB + 4 + r}, 0")

    def kread(buf, tile):
        return [f"ds_read_b128 {vr(KB[buf], 4)}, v{VK} offset:{tile * 1536}",
                f"ds_read_b64 {vr(KB[buf] + 4, 2)}, v{VKH} offset:{tile * 1536}"]

    def qk1(sb, kb, c):
        return f"v_mfma_f32_32x32x16_bf16 {vr(S[sb], 16)}, {vr(KB[kb], 4)}, {vr(QLO, 4)}, {c}"

    def qk2(sb, kb):
        return f"v_mfma_f32_32x32x8_bf16 {vr(S[sb], 16)}, {vr(KB[kb] + 4, 2)}, {vr(QHI, 2)}, {vr(S[sb], 16)}"

    pv1 = f"v_mfma_f32_32x32x16_bf16 {vr(O, 16)}, {vr(VB, 4)}, {vr(P, 4)}, {vr(O, 16)}"
    pv2 = f"v_mfma_f32_32x32x16_bf16 {vr(O, 16)}, {vr(VB + 4, 4)}, {vr(P + 4, 4)}, {vr(O, 16)}"
    a("v_cmp_eq_u32 vcc, 0, v3")
    a("s_waitcnt lgkmcnt(0)")
    a("s_barrier")
    stamp(a, 4)
    a(f"ds_read_b128 {vr(QLO, 4)}, v15")
    a(f"ds_read_b64 {vr(QHI, 2)}, v14 offset:32")
    for r in kread(0, 0) + kread(1, 1):
        a(r)
    a(f"ds_read_b128 {vr(VB, 4)}, v{VV}")
    a("s_waitcnt lgkmcnt(3)")
    a(f"v_cndmask_b32 v{QHI}, 0, v{QHI}, vcc")
    a(f"v_cndmask_b32 v{QHI + 1}, 0, v{QHI + 1}, vcc")
    a(qk1(0, 0, "0"))
    a("s_nop 0")
    a(qk2(0, 0))
    a("s_nop 15")
    a("s_nop 3")
    s0 = S[0]
    a(f"v_max3_f32 v14, v{s0}, v{s0 + 1}, v{s0 + 2}")
    for r in range(3, 15, 2):
        a(f"v_max3_f32 v14, v14, v{s0 + r}, v{s0 + r + 1}")
    a(f"v_max_f32 v14, v14, v{s0 + 15}")
    a("v_mov_b32 v15, v14")
    a("s_nop 1")
    a("v_permlane32_swap_b32 v14, v15")
    a("s_nop 1")
    a("v_max_f32 v14, v14, v15")
    for r in range(16):
        a(f"v_sub_f32 v{NM + r}, 0, v14")
    for r in range(16):
        a(f"v_sub_f32 v{s0 + r}, v{s0 + r}, v14")
    a("s_mov_b32 s30, 0")
    a(f"s_mov_b32 s32, {SLOT}")
    a("s_mov_b32 s33, 0")
    a.raw(".p2align 6")
    a.label("P2_LOOP")
    for t in range(8):
        cur, nxt = t % 2, (t + 1) % 2
        sc = S[cur]

        def ex(r):
            return f"v_exp_f32 v{sc + r}, v{sc + r}"

        def cv(p):
            return f"v_cvt_pk_bf16_f32 v{P + p}, v{sc + 2 * p}, v{sc + 2 * p + 1}"

        a("s_waitcnt lgkmcnt(1)")
        a(qk1(nxt, nxt, vr(NM, 16)))
        a(ex(0)); a(ex(1)); a(ex(2)); a(ex(3)); a(cv(0))
        a(pv2)
        a(f"ds_read_b128 {vr(VB + 4, 4)}, v{VV} offset:{t * 1344 + 672}")
        a(ex(4)); a(cv(1)); a(ex(5)); a(ex(6)); a(ex(7)); a(cv(2))
        a(qk2(nxt, nxt))
        if t == 6:
            a(f"v_add_u32 v{VK}, s32, v{VK}")
            a(f"v_add_u32 v{VKH}, s32, v{VKH}")
        for r in kread(cur, (t + 2) % 8):
            a(r)
        a(ex(8)); a(cv(3)); a(ex(9)); a(ex(10))
        if t == 5:
            a("s_waitcnt vmcnt(0)")
            a("s_barrier")
        a(ex(11)); a(cv(4))
        a("s_waitcnt lgkmcnt(3)")
        a(pv1)
        if t == 7:
            a(f"v_add_u32 v{VV}, s32, v{VV}")
        a(f"ds_read_b128 {vr(VB, 4)}, v{VV} offset:{((t + 1) % 8) * 1344}")
        a(ex(12)); a(cv(5)); a(ex(13)); a(ex(14)); a(ex(15)); a(cv(6)); a(cv(7))
    a("s_add_u32 s33, s33, 1")
    a("s_cmp_eq_u32 s33, 3")
    a("s_cselect_b32 s33, 0, s33")
    a("s_cmp_eq_u32 s33, 2")
    a(f"s_mov_b32 s32, {SLOT}")
    a(f"s_cselect_b32 s32, {(-2 * SLOT) & 0xffffffff}, s32")
    a("s_add_u32 s30, s30, 1")
    a("s_cmp_lt_u32 s30, 8")
    a("s_cbranch_scc1 P2_LOOP")
    a("s_waitcnt lgkmcnt(0)")
    a(pv2)
    stamp(a, 5)
    a("s_nop 15")
    a(f"v_mov_b32 v14, v{O + 8}")
    a(f"v_mov_b32 v15, v{O + 8}")
    a("s_nop 1")
    a("v_permlane32_swap_b32 v14, v15")
    a("s_mov_b32 s10, 0x53800000")
    a(f"v_mov_b32 v{TMP + 4}, 1")
    a("v_cmp_nge_f32 vcc, s10, v15")
    a("s_and_saveexec_b64 s[46:47], vcc")
    a("s_cbranch_execz P2_NOFLAG")
    a(f"ds_write_b32 v{TMP + 3}, v{TMP + 4}")
    a.label("P2_NOFLAG")
    a("s_mov_b64 exec, s[46:47]")
    a("s_waitcnt lgkmcnt(0)")
    a("s_barrier")
    a(f"ds_read_b32 v{TMP + 4}, v{TMP + 3}")
    a("s_waitcnt lgkmcnt(0)")
    a(f"v_readfirstlane_b32 s10, v{TMP + 4}")
    a("s_cmp_eq_u32 s10, 0")
    a("s_cbranch_scc1 P2_STORE")
    a(f"v_add_u32 v{VK}, {SLOT}, v{TMP + 1}")
    a(f"v_add_u32 v{VKH}, {SLOT}, v{TMP}")
    a(f"v_add_u32 v{VV}, {SLOT}, v{TMP + 2}")
    a("s_mul_i32 s28, s26, 3072")
    a("v_lshlrev_b32 v4, 4, v1")
    a("v_add_u32 v4, s28, v4")
    a("v_mov_b32 v14, 0xff800000")
    for r in range(16):
        a(f"v_mov_b32 v{O + r}, 0")
    a("s_mov_b32 s31, 0")
    a.label("P2_SPASS")
    a("s_mov_b32 s30, 0")
    a("s_mov_b32 s29, s27")
    a.label("P2_SCHUNK")
    a("s_barrier")
    a(f"s_add_u32 m0, s28, {SLOT}")
    a("s_nop 0")
    for i in range(3):
        o = f" offset:{1024 * i}" if i else ""
        a(f"buffer_load_dwordx4 v4, s[{SWS}:{SWS + 3}], s29 offen{o} sc1 lds")
    a("s_waitcnt vmcnt(0)")
    a("s_barrier")
    a(f"v_mov_b32 v{TMP + 5}, v{VK}")
    a(f"v_mov_b32 v{TMP + 6}, v{VKH}")
    a(f"v_mov_b32 v{TMP + 7}, v{VV}")
    a("s_mov_b32 s33, 0")
    a.label("P2_STILE")
    a(f"ds_read_b128 {vr(KB[0], 4)}, v{TMP + 5}")
    a(f"ds_read_b64 {vr(KB[0] + 4, 2)}, v{TMP + 6}")
    a(f"ds_read_b128 {vr(VB, 4)}, v{TMP + 7}")
    a(f"ds_read_b128 {vr(VB + 4, 4)}, v{TMP + 7} offset:672")
    a("s_waitcnt lgkmcnt(0)")
    a(qk1(0, 0, "0"))
    a(qk2(0, 0))
    a("s_nop 15")
    a("s_nop 3")
    a("s_cmp_lg_u32 s31, 0")
    a("s_cbranch_scc1 P2_SEXP")
    for r in range(0, 16, 2):
        a(f"v_max3_f32 v14, v14, v{s0 + r}, v{s0 + r + 1}")
    a("s_branch P2_SNEXT")
    a.label("P2_SEXP")
    for r in range(16):
        a(f"v_sub_f32 v{s0 + r}, v{s0 + r}, v14")
    for r in range(16):
        a(f"v_exp_f32 v{s0 + r}, v{s0 + r}")
    a("s_nop 0")
    for p in range(8):
        a(f"v_cvt_pk_bf16_f32 v{P + p}, v{s0 + 2 * p}, v{s0 + 2 * p + 1}")
    a("s_nop 1")
    a(pv1)
    a(pv2)
    a.label("P2_SNEXT")
    a(f"v_add_u32 v{TMP + 5}, 1536, v{TMP + 5}")
    a(f"v_add_u32 v{TMP + 6}, 1536, v{TMP + 6}")
    a(f"v_add_u32 v{TMP + 7}, 1344, v{TMP + 7}")
    a("s_add_u32 s33, s33, 1")
    a("s_cmp_lt_u32 s33, 8")
    a("s_cbranch_scc1 P2_STILE")
    a(f"s_add_u32 s29, s29, {SLOT}")
    a("s_add_u32 s30, s30, 1")
    a("s_cmp_lt_u32 s30, 8")
    a("s_cbranch_scc1 P2_SCHUNK")
    a("s_cmp_lg_u32 s31, 0")
    a("s_cbranch_scc1 P2_SDONE")
    a("v_mov_b32 v15, v14")
    a("s_nop 1")
    a("v_permlane32_swap_b32 v14, v15")
    a("s_nop 1")
    a("v_max_f32 v14, v14, v15")
    a("s_mov_b32 s31, 1")
    a("s_branch P2_SPASS")
    a.label("P2_SDONE")
    a("s_nop 15")
    a(f"v_mov_b32 v14, v{O + 8}")
    a(f"v_mov_b32 v15, v{O + 8}")
    a("s_nop 1")
    a("v_permlane32_swap_b32 v14, v15")
    a("s_nop 1")
    a.label("P2_STORE")
    a("v_rcp_f32 v15, v15")
    a("s_lshl_b32 s10, s25, 8")
    a("s_lshl_b32 s11, s26, 5")
    a("s_add_u32 s10, s10, s11")
    a("v_add_u32 v16, s10, v2")
    a("v_lshrrev_b32 v17, 4, v16")
    a("v_mul_u32_u24 v17, 20480, v17")
    a("v_and_b32 v16, 15, v16")
    a("v_lshl_add_u32 v17, v16, 4, v17")
    a(f"v_add_u32 v17, 0x{WS_O:x}, v17")
    a("s_mul_i32 s10, s24, 5")
    a("v_add_u32 v18, s10, v3")
    for pc in range(3):
        for r in range(4):
            a(f"v_mul_f32 v{O + 4 * pc + r}, v{O + 4 * pc + r}, v15")
        a(f"v_cvt_pk_bf16_f32 v{20 + 2 * pc}, v{O + 4 * pc}, v{O + 4 * pc + 1}")
        a(f"v_cvt_pk_bf16_f32 v{21 + 2 * pc}, v{O + 4 * pc + 2}, v{O + 4 * pc + 3}")
        a(f"v_add_u32 v19, {2 * pc}, v18")
        a("v_lshrrev_b32 v26, 3, v19")
        a("v_lshl_add_u32 v26, v26, 10, v17")
        a("v_and_b32 v27, 3, v19")
        a("v_lshl_add_u32 v26, v27, 8, v26")
        a("v_bfe_u32 v27, v19, 2, 1")
        a(f"v_lshl_add_u32 v{28 + pc}, v27, 3, v26")
    a("v_cmp_eq_u32 vcc, 0, v3")
    a(f"v_mov_b32 v27, 0x{OOB:x}")
    a("s_nop 0")
    a("v_cndmask_b32 v30, v27, v30, vcc")
    for pc in range(3):
        a(f"buffer_store_dwordx2 {vr(20 + 2 * pc, 2)}, v{28 + pc}, s[{SWS}:{SWS + 3}], 0 offen sc1")
    a("s_cmp_ge_u32 s26, 4")
    a("s_cbranch_scc1 P2_DONE_HI")

    SO = 16
    srd(a, SO, 76, XBYTES)
    OF, ACC3 = 32, 112
    WF = [132, 8]
    a("s_lshr_b32 s10, s24, 2")
    a("v_lshlrev_b32 v4, 3, v2")
    a("v_add_u32 v4, s10, v4")
    a("v_lshlrev_b32 v4, 6, v4")
    a(f"v_add_u32 v4, 0x{WS_F2:x}, v4")
    a("v_lshlrev_b32 v5, 4, v1")
    a("s_lshl_b32 s3, s24, 2")
    a("s_add_u32 s3, s3, s26")
    a("s_mul_i32 s32, s3, 20480")
    a(f"s_add_u32 s32, s32, 0x{WS_O:x}")
    a("s_lshl_b32 s36, s3, 4")
    a("s_mul_i32 s40, s36, 1280")
    a("s_mul_i32 s41, s26, 2560")
    a(f"s_add_u32 s41, s41, {L_X}")
    a("v_and_b32 v2, 15, v1")
    a("v_lshrrev_b32 v3, 4, v1")
    a("v_lshrrev_b32 v6, 2, v2")
    a("v_lshl_add_u32 v6, v3, 2, v6")
    a("v_and_b32 v7, 3, v1")
    a("v_mul_u32_u24 v28, 160, v6")
    a("v_lshl_add_u32 v28, v7, 3, v28")
    a(f"v_add_u32 v28, {L_WO}, v28")
    a("v_add_u32 v29, 51200, v28")
    a("v_lshlrev_b32 v30, 7, v6")
    a("v_lshl_add_u32 v30, v7, 3, v30")
    a("s_lshl_b32 s37, s26, 5")
    a(f"s_add_u32 s37, s37, {L_Z}")
    a("v_add_u32 v30, s37, v30")
    a("v_mul_u32_u24 v31, 160, v2")
    a("v_lshl_add_u32 v31, v3, 3, v31")
    a("v_add_u32 v31, s41, v31")
    a("v_lshlrev_b32 v7, 2, v2")
    a("s_lshl_b32 s36, s36, 2")
    a(f"s_add_u32 s36, s36, 0x{WS_G:x}")
    for r in range(20):
        a(f"v_mov_b32 v{ACC3 + r}, 0")
    a("s_waitcnt vmcnt(0)")
    a("s_barrier")
    stamp(a, 6)
    a("s_cmp_lg_u32 s26, 0")
    a("s_cbranch_scc1 P3_NOF")
    a("s_lshl_b32 s10, s24, 3")
    a("s_add_u32 s10, s10, s25")
    write_flag(a, WS_F2, 10, 152)
    a.label("P3_NOF")
    a(f"buffer_load_dword v6, v7, s[{SWS}:{SWS + 3}], s36 offen sc1")

    def wreads(ks, st):
        out = []
        b = 28 if ks < 10 else 29
        k2 = ks if ks < 10 else ks - 10
        for j in range(5):
            for T in range(2):
                out.append(f"ds_read_b64_tr_b16 {vr(WF[st] + 4 * j + 2 * T, 2)}, v{b} offset:{k2 * 5120 + T * 2560 + j * 32}")
        return out

    for r in wreads(0, 0):
        a(r)
    poll(a, [4], 152, 20)
    for ks in range(20):
        if ks % 4 == 0:
            a(f"s_add_u32 s35, s32, {(ks // 4) * 4096}")
        a(f"buffer_load_dwordx4 {vr(OF + 4 * ks, 4)}, v5, s[{SWS}:{SWS + 3}], s35 offen offset:{(ks % 4) * 1024} sc1")
    a("s_mul_i32 s3, s25, 160")
    a("s_movk_i32 s10, 1280")
    for i in range(3):
        a(f"v_add_u32 v155, {64 * i}, v1")
        a("v_mul_u32_u24 v156, 0xcccd, v155")
        a("v_lshrrev_b32 v156, 19, v156")
        a("v_mul_u32_u24 v157, 10, v156")
        a("v_sub_u32 v155, v155, v157")
        a("v_mul_lo_u32 v156, v156, s10")
        a("v_lshl_add_u32 v155, v155, 4, v156")
        a(f"v_add_u32 v{152 + i}, s3, v155")
    for ks in range(20):
        st = ks % 2
        if ks < 19:
            for r in wreads(ks + 1, 1 - st):
                a(r)
            a(f"s_waitcnt vmcnt({19 - ks}) lgkmcnt(10)")
        else:
            a("s_waitcnt vmcnt(0) lgkmcnt(0)")
        for j in range(5):
            d = ACC3 + 4 * j
            a(f"v_mfma_f32_16x16x32_bf16 {vr(d, 4)}, {vr(WF[st] + 4 * j, 4)}, {vr(OF + 4 * ks, 4)}, {vr(d, 4)}")
    for j in range(5):
        a(f"ds_read_b64 {vr(32 + 2 * j, 2)}, v31 offset:{32 * j}")
        a(f"ds_read_b64_tr_b16 {vr(44 + 2 * j, 2)}, v30 offset:{2048 * j}")
    a("v_sub_f32 v17, 1.0, v6")
    a("s_mov_b32 s42, 0xffff0000")
    a("s_waitcnt lgkmcnt(0)")
    for j in range(5):
        d = ACC3 + 4 * j
        for r in range(4):
            xs = 32 + 2 * j + r // 2
            zs = 44 + 2 * j + r // 2
            if r % 2 == 0:
                a(f"v_lshlrev_b32 v18, 16, v{xs}")
                a(f"v_lshlrev_b32 v19, 16, v{zs}")
            else:
                a(f"v_and_b32 v18, s42, v{xs}")
                a(f"v_and_b32 v19, s42, v{zs}")
            a("v_mul_f32 v18, v18, v19")
            a("v_mul_f32 v18, v18, v17")
            a(f"v_fma_f32 v{d + r}, v{d + r}, v6, v18")
        a(f"v_cvt_pk_bf16_f32 v{56 + 2 * j}, v{d}, v{d + 1}")
        a(f"v_cvt_pk_bf16_f32 v{57 + 2 * j}, v{d + 2}, v{d + 3}")
        a(f"ds_write_b64 v31, {vr(56 + 2 * j, 2)} offset:{32 * j}")
    a("v_add_u32 v18, s41, v5")
    a("s_waitcnt lgkmcnt(0)")
    for i in range(3):
        a(f"ds_read_b128 {vr(68 + 4 * i, 4)}, v18 offset:{1024 * i}")
    a("s_waitcnt lgkmcnt(0)")
    for i in range(2):
        a(f"buffer_store_dwordx4 {vr(68 + 4 * i, 4)}, v{152 + i}, s[{SO}:{SO + 3}], s40 offen")
    a("s_mov_b32 exec_hi, 0")
    a(f"buffer_store_dwordx4 {vr(76, 4)}, v154, s[{SO}:{SO + 3}], s40 offen")
    if DIAG:
        a("s_waitcnt vmcnt(0)")
    stamp(a, 7)
    stamp_flush(a)
    a("s_endpgm")
    a.label("P2_DONE_HI")
    a("s_waitcnt vmcnt(0)")
    a("s_barrier")
    stamp(a, 6)
    stamp_flush(a)
    a("s_endpgm")

    a.label("P2_HELP")
    SX, SG, SWO = 16, 28, 36
    if os.environ.get("HPRIO", "3") != "0":
        a("s_setprio " + os.environ.get("HPRIO", "3"))
    srd(a, SX, 4, XBYTES)
    srd(a, SG, 74, 1280)
    srd(a, SWO, 60, WO_BYTES)
    a("s_sub_u32 s34, s26, 8")
    a("v_lshlrev_b32 v4, 4, v1")
    a("s_lshl_b32 s10, s2, 3")
    a("s_lshl_b32 s11, s34, 1")
    a("s_add_u32 s35, s10, s11")
    a("s_mul_i32 s10, s35, 1280")
    a("s_add_u32 s11, s10, 1280")
    a("v_add_u32 v5, 1024, v4")
    a("v_cmp_gt_u32 vcc, 16, v1")
    a(f"v_mov_b32 v6, 0x{OOB:x}")
    a("s_nop 0")
    a("v_cndmask_b32 v5, v6, v5, vcc")
    G = 64
    a(f"buffer_load_dwordx4 {vr(G, 4)}, v4, s[{SG}:{SG + 3}], 0 offen")
    a(f"buffer_load_dwordx4 {vr(G + 4, 4)}, v5, s[{SG}:{SG + 3}], 0 offen")
    a(f"buffer_load_dwordx4 {vr(G + 8, 4)}, v4, s[{SX}:{SX + 3}], s10 offen")
    a(f"buffer_load_dwordx4 {vr(G + 12, 4)}, v5, s[{SX}:{SX + 3}], s10 offen")
    a(f"buffer_load_dwordx4 {vr(G + 16, 4)}, v4, s[{SX}:{SX + 3}], s11 offen")
    a(f"buffer_load_dwordx4 {vr(G + 20, 4)}, v5, s[{SX}:{SX + 3}], s11 offen")
    a("s_lshr_b32 s10, s24, 3")
    a("v_and_b32 v5, 15, v1")
    a("v_bfe_u32 v6, v1, 4, 1")
    a("v_lshlrev_b32 v6, 6, v6")
    a("v_add3_u32 v5, v5, v6, 64")
    a("v_and_b32 v6, 1, v1")
    a("s_lshl_b32 s11, s25, 1")
    a("v_add_u32 v6, s11, v6")
    a("v_cmp_gt_u32 vcc, 32, v1")
    a("s_lshl_b32 s10, s10, 4")
    a("s_nop 0")
    a("v_cndmask_b32 v5, v6, v5, vcc")
    a("v_add_u32 v5, s10, v5")
    a("v_lshlrev_b32 v5, 6, v5")
    a(f"v_add_u32 v5, 0x{WS_F1:x}, v5")
    VD = 10
    a("s_mul_i32 s40, s34, 6144")
    a(f"v_add_u32 v{VD}, s40, v4")
    a("s_mov_b32 s41, s25")
    a("s_mov_b32 s42, 0")

    def kv_dma():
        a("s_mul_i32 s43, s41, 24576")
        a("s_add_u32 s43, s43, s27")
        a("s_add_u32 m0, s42, s40")
        a("s_add_u32 s41, s41, 1")
        for i in range(4):
            o = f" offset:{1024 * i}" if i else ""
            a(f"buffer_load_dwordx4 v{VD}, s[{SWS}:{SWS + 3}], s43 offen{o} sc1 lds")
        a("s_add_u32 m0, m0, 4096")
        a("s_add_u32 s43, s43, 4096")
        a("s_and_b32 s41, s41, 7")
        for i in range(2):
            o = f" offset:{1024 * i}" if i else ""
            a(f"buffer_load_dwordx4 v{VD}, s[{SWS}:{SWS + 3}], s43 offen{o} sc1 lds")
        a(f"s_add_u32 s42, s42, {SLOT}")
        a(f"s_cmp_ge_u32 s42, {3 * SLOT}")
        a("s_cselect_b32 s42, 0, s42")

    VP = 24
    a("s_mul_i32 s3, s25, 160")
    a("s_movk_i32 s10, 1280")
    for i in range(5):
        a(f"v_add_u32 v7, {64 * i}, v1")
        a("v_mul_u32_u24 v8, 0xcccd, v7")
        a("v_lshrrev_b32 v8, 19, v8")
        a("v_mul_u32_u24 v11, 10, v8")
        a("v_sub_u32 v7, v7, v11")
        a("v_mul_lo_u32 v8, v8, s10")
        a("v_lshl_add_u32 v7, v7, 4, v8")
        a(f"v_add_u32 v{VP + i}, s3, v7")
    a("v_mov_b32 v20, 0")
    a("v_mov_b32 v21, 0")
    a("s_waitcnt vmcnt(0)")
    for r in range(8):
        a(f"v_dot2_f32_bf16 v20, v{G + 8 + r}, v{G + r}, v20")
        a(f"v_dot2_f32_bf16 v21, v{G + 16 + r}, v{G + r}, v21")
    a("s_nop 3")
    for sh in (1, 2, 4, 8):
        a(f"v_add_f32_dpp v20, v20, v20 row_shr:{sh} row_mask:0xf bank_mask:0xf bound_ctrl:0")
        a(f"v_add_f32_dpp v21, v21, v21 row_shr:{sh} row_mask:0xf bank_mask:0xf bound_ctrl:0")
        a("s_nop 1")
    a("s_nop 1")
    a("v_readlane_b32 s10, v20, 15")
    a("v_readlane_b32 s11, v20, 31")
    a("v_readlane_b32 s49, v20, 47")
    a("v_readlane_b32 s50, v20, 63")
    a("v_readlane_b32 s51, v21, 15")
    a("v_readlane_b32 s52, v21, 31")
    a("v_readlane_b32 s53, v21, 47")
    a("v_readlane_b32 s54, v21, 63")
    a("s_nop 3")
    a("v_mov_b32 v22, s10")
    a("v_mov_b32 v23, s51")
    a("v_add_f32 v22, s11, v22")
    a("v_add_f32 v23, s52, v23")
    a("v_add_f32 v22, s49, v22")
    a("v_add_f32 v23, s53, v23")
    a("v_add_f32 v22, s50, v22")
    a("v_add_f32 v23, s54, v23")
    a("v_cmp_eq_u32 vcc, 1, v1")
    a("s_nop 1")
    a("v_cndmask_b32 v22, v22, v23, vcc")
    a(f"v_mul_f32 v22, {f32hex(-math.log2(math.e))}, v22")
    a("v_exp_f32 v22, v22")
    a("s_nop 0")
    a("v_add_f32 v22, 1.0, v22")
    a("v_rcp_f32 v22, v22")
    a("s_lshl_b32 s10, s35, 2")
    a(f"s_add_u32 s10, s10, 0x{WS_G:x}")
    a("v_lshlrev_b32 v23, 2, v1")
    a("s_mov_b64 exec, 3")
    a(f"buffer_store_dword v22, v23, s[{SWS}:{SWS + 3}], s10 offen sc1")
    a("s_mov_b64 exec, -1")
    a("s_lshl_b32 s44, s24, 11")
    a("s_lshl_b32 s11, s25, 8")
    a("s_add_u32 s44, s44, s11")
    a("s_mul_i32 s44, s44, 48")
    a("s_mul_i32 s45, s34, 3072")
    a("s_add_u32 s44, s44, s45")
    a(f"v_mov_b32 v6, {RES + 16}")
    a("s_mov_b32 s10, 0")
    a.label("P2H_CW")
    a("ds_read_b32 v7, v6")
    a("s_waitcnt lgkmcnt(0)")
    a("v_readfirstlane_b32 s11, v7")
    a("s_add_u32 s10, s10, 1")
    a(f"s_cmp_gt_u32 s10, {POLL_LIMIT * 8}")
    a("s_cbranch_scc1 P2H_CWD")
    a("s_cmp_lt_u32 s11, 4")
    a("s_cbranch_scc1 P2H_CW")
    a.label("P2H_CWD")
    poll(a, [5], 20, 10)
    stamp(a, 4)
    a(f"s_add_u32 m0, s45, {QST}")
    a("s_nop 0")
    for i in range(3):
        o = f" offset:{1024 * i}" if i else ""
        a(f"buffer_load_dwordx4 v4, s[{SWS}:{SWS + 3}], s44 offen{o} sc1 lds")
    kv_dma()
    kv_dma()
    a("s_waitcnt vmcnt(6)")
    a("s_barrier")
    a("s_waitcnt vmcnt(0)")
    a("s_barrier")
    a("s_cmp_lg_u32 s26, 8")
    a("s_cbranch_scc1 P2H_NOF3")
    write_flag(a, WS_F3, 2, 12)
    a.label("P2H_NOF3")

    def wo_rep(srep):
        a(f"s_mul_i32 s10, s{srep}, 40960")
        a(f"s_mul_i32 s11, s{srep}, 5120")
        a(f"s_add_u32 s11, s11, {L_WO}")
        for i in range(5):
            a(f"s_add_u32 m0, s11, {1024 * i}")
            a("s_nop 0")
            a(f"buffer_load_dwordx4 v{VP + i}, s[{SWO}:{SWO + 3}], s10 offen lds")

    a("s_add_u32 s44, s34, 4")
    a.label("P2H_WO")
    kv_dma()
    wo_rep(44)
    a("s_waitcnt vmcnt(5)")
    a("s_barrier")
    a("s_add_u32 s44, s44, 4")
    a("s_cmp_lt_u32 s44, 20")
    a("s_cbranch_scc1 P2H_WO")
    stamp(a, 5)
    kv_dma()
    a("v_lshlrev_b32 v5, 6, v1")
    a(f"v_add_u32 v5, 0x{WS_F3:x}, v5")
    a("v_add_u32 v6, 4096, v5")
    a("v_add_u32 v7, 8192, v5")
    a("v_add_u32 v8, 12288, v5")
    a("s_waitcnt vmcnt(0)")
    a("s_barrier")
    kv_dma()
    poll(a, [5, 6, 7, 8], 12, 10)
    a("s_barrier")
    wo_rep(34)
    a("s_lshl_b32 s10, s24, 6")
    a("s_lshl_b32 s11, s34, 4")
    a("s_add_u32 s10, s10, s11")
    a("s_mul_i32 s10, s10, 1280")
    a("s_mul_i32 s11, s34, 2560")
    a(f"s_add_u32 s11, s11, {L_X}")
    for i in range(3):
        a(f"s_add_u32 m0, s11, {1024 * i}")
        if i == 2:
            a("s_mov_b32 exec_hi, 0")
        else:
            a("s_nop 0")
        a(f"buffer_load_dwordx4 v{VP + i}, s[{SX}:{SX + 3}], s10 offen lds")
    a("s_mov_b64 exec, -1")
    a("v_lshrrev_b32 v7, 3, v1")
    a("v_lshlrev_b32 v7, 12, v7")
    a("v_and_b32 v8, 7, v1")
    a("v_lshl_add_u32 v7, v8, 4, v7")
    a("s_mul_i32 s10, s25, 80")
    a("s_lshl_b32 s10, s10, 12")
    a("s_lshl_b32 s11, s24, 7")
    a("s_add_u32 s10, s10, s11")
    a(f"s_add_u32 s10, s10, 0x{WS_Z:x}")
    a("s_lshl_b32 s11, s34, 15")
    a("s_add_u32 s10, s10, s11")
    a("s_lshl_b32 s11, s34, 10")
    a(f"s_add_u32 s11, s11, {L_Z}")
    a("s_barrier")
    for k in range(3):
        if k == 2:
            a("s_cmp_lt_u32 s34, 2")
            a("s_cselect_b32 s44, 2, 1")
            a("s_lshl_b32 s43, s44, 17")
            a("s_lshl_b32 s44, s44, 12")
            a("s_add_u32 s43, s43, s10")
            a("s_add_u32 m0, s11, s44")
        else:
            a(f"s_add_u32 s43, s10, {k * 131072}")
            a(f"s_add_u32 m0, s11, {k * 4096}")
        a("s_nop 0")
        a(f"buffer_load_dwordx4 v7, s[{SWS}:{SWS + 3}], s43 offen sc1 lds")
    a(f"v_mov_b32 v5, {RES + 8}")
    a("s_barrier")
    a("ds_read_b32 v6, v5")
    a("s_waitcnt lgkmcnt(0)")
    a("v_readfirstlane_b32 s10, v6")
    a("s_cmp_eq_u32 s10, 0")
    a("s_cbranch_scc1 P2H_END")
    a("s_mov_b32 s10, 0")
    a.label("P2H_SLOWB")
    a("s_barrier")
    a("s_add_u32 s10, s10, 1")
    a("s_cmp_lt_u32 s10, 32")
    a("s_cbranch_scc1 P2H_SLOWB")
    a.label("P2H_END")
    a("s_waitcnt vmcnt(0)")
    a("s_barrier")
    stamp(a, 6)
    stamp_flush(a)
    a.label("L_END")
    a("s_endpgm")


def main():
    hdr = open("cdna_kernels/" + NAME + ".s.ref").read().split("\n")
    head = [l for l in hdr if l.startswith(";") and "@launch" not in l and "Override" not in l and "grid=ceil" not in l]
    a = Asm()
    gen(a)
    out = "\n".join(head) + "\n"
    if os.environ.get("ASLIST", "0") == "1":
        out += f"; @launch kernel={KNAME} grid=(256,1,1) block=(768,1,1) lds={LDS_TOTAL}\n"
    else:
        out += f"; @launch grid=(256,1,1) block=(768,1,1) lds={LDS_TOTAL}\n"
    out += '.amdgcn_target "amdgcn-amd-amdhsa--gfx950"\n.text\n'
    out += a.text()
    out += '.section .rodata,"a"\n.p2align 6\n'
    out += f""".amdhsa_kernel {KNAME}
  .amdhsa_next_free_vgpr 160
  .amdhsa_next_free_sgpr 102
  .amdhsa_accum_offset 160
  .amdhsa_group_segment_fixed_size 0
  .amdhsa_kernarg_size 104
  .amdhsa_user_sgpr_count 2
  .amdhsa_user_sgpr_kernarg_segment_ptr 1
  .amdhsa_system_sgpr_workgroup_id_x 1
.end_amdhsa_kernel
"""
    path = sys.argv[1] if len(sys.argv) > 1 else "cdna_kernels/" + NAME + ".s"
    open(path, "w").write(out)
    print("wrote", path, len(out), "bytes")


if __name__ == "__main__":
    main()
```

```python
import struct, sys, math, os

NAME = "gated_mix__softmax_full_mha__ssm_conv_h3__prompt"
KNAME = NAME + "_kernel"

WS_Q = 0x0
WS_KV = 0x300000
WS_U = 0x900000
WS_Z = 0xC00000
WS_O = 0xF00000
OLAYOUT = 2
VROWS = 22
WS_G = 0x1200000
WS_F1 = 0x1210000
WS_F3 = 0x1218000
WS_F2 = 0x1220000
WS_DIAG = 0x1280000
WS_SIZE = 0x1400000

XBYTES = 2048 * 640 * 2
WQKV_BYTES = 640 * 1920 * 2
WO_BYTES = 640 * 640 * 2
OOB = 0x7F000000
DIAG = int(os.environ.get("DIAG", "0"))
POLL_LIMIT = 30000
OUTPOL = os.environ.get('OUTPOL', '')
NT_E = ' nt' if os.environ.get('NT_E', '1') == '1' else ''
NT_G = ' nt' if os.environ.get('NT_G', '0') == '1' else ''
NT_H = ' nt' if os.environ.get('NT_H', '1') == '1' else ''

G_STAGE = 36864
SLOT = 24576
CONVB = 51200
CJ_BIG, CJ_SMALL = 24240, 13488
QST = CONVB + 3 * CJ_BIG + 2 * CJ_SMALL
RES = 163584
LDS_TOTAL = 163840
L_WO = RES - 102400
L_X = 2 * SLOT
L_Z = 0
assert QST + 12288 <= RES and L_X + 10240 <= L_WO

SWS = 12


def f32hex(x):
    return "0x%08x" % struct.unpack("<I", struct.pack("<f", x))[0]


class Asm:
    def __init__(self):
        self.L = []
        self.uid = 0

    def __call__(self, s):
        self.L.append("    " + s)

    def label(self, s):
        self.L.append(s + ":")

    def raw(self, s):
        self.L.append(s)

    def newlabel(self, p):
        self.uid += 1
        return f"{p}_{self.uid}"

    def text(self):
        return "\n".join(self.L) + "\n"


def vr(a, n=1):
    return f"v{a}" if n == 1 else f"v[{a}:{a + n - 1}]"


def srd(a, d, base, nbytes):
    a(f"s_mov_b32 s{d}, s{base}")
    a(f"s_and_b32 s{d + 1}, s{base + 1}, 0xffff")
    a(f"s_mov_b32 s{d + 2}, 0x{nbytes:x}")
    a(f"s_mov_b32 s{d + 3}, 0x00020000")


def stamp(a, idx):
    if not DIAG:
        return
    a("s_waitcnt lgkmcnt(0)")
    a("s_memtime s[96:97]")
    a("s_memrealtime s[98:99]")
    a("s_waitcnt lgkmcnt(0)")
    a(f"s_mov_b32 s{80 + 2 * idx}, s96")
    a(f"s_mov_b32 s{81 + 2 * idx}, s98")


def stamp_flush(a):
    if not DIAG:
        return
    a("s_mov_b64 exec, 1")
    if DIAG == 2:
        sel = {(37, 0): [(0, 2), (2, 3), (1, 4), (3, 5), (4, 6), (5, 7), (6, 8), (7, 9)], (37, 4): [(1, 10), (3, 11)],
               (37, 8): [(3, 12), (4, 13)], (200, 4): [(2, 14), (3, 15)]}
        srd(a, 16, 78, 256)
        a("v_mov_b32 v2, 0")
        a("s_lshl_b32 s96, s2, 4")
        a("s_add_u32 s96, s96, s26")
        for (wg, wv), lst in sel.items():
            lb = a.newlabel("DG")
            a(f"s_cmp_lg_u32 s96, {wg * 16 + wv}")
            a(f"s_cbranch_scc1 {lb}")
            for st, word in lst:
                a(f"v_mov_b32 v3, s{81 + 2 * st}")
                a(f"buffer_store_dword v3, v2, s[16:19], 0 offen offset:{4 * word}")
                a("s_nop 1")
            a.label(lb)
        return
    a("s_lshl_b32 s96, s2, 4")
    a("s_add_u32 s96, s96, s26")
    a("s_lshl_b32 s96, s96, 6")
    a(f"s_add_u32 s96, s96, 0x{WS_DIAG:x}")
    a("v_mov_b32 v2, 0")
    for i in range(16):
        a(f"v_mov_b32 v3, s{80 + i}")
        a(f"buffer_store_dword v3, v2, s[{SWS}:{SWS + 3}], s96 offen offset:{4 * i}")
        a("s_nop 1")


def poll(a, vaddrs, vtmp, scnt, preloaded=False):
    lp, done, chk = a.newlabel("POLL"), a.newlabel("POLLD"), a.newlabel("POLLC")
    a(f"s_mov_b32 s{scnt}, 0")
    if len(vaddrs) == 1 and os.environ.get('POLL2', '0') == '1':
        va = vaddrs[0]
        ld = lambda k: f"buffer_load_dwordx2 {vr(vtmp + 2 * k, 2)}, v{va}, s[{SWS}:{SWS + 3}], 0 offen sc0 sc1"
        if not preloaded:
            a(ld(0))
        a.label(lp)
        for k in range(2):
            a(ld(1 - k))
            a("s_waitcnt vmcnt(1)")
            a(f"v_cmp_ne_u64 vcc, s[56:57], {vr(vtmp + 2 * k, 2)}")
            a(f"s_add_u32 s{scnt}, s{scnt}, 1")
            a("s_cmp_eq_u64 vcc, 0")
            a(f"s_cbranch_scc1 {done}")
        a(f"s_cmp_le_u32 s{scnt}, {POLL_LIMIT}")
        a(f"s_cbranch_scc1 {lp}")
        a.label(done)
        return
    if preloaded:
        a(f"s_branch {chk}")
    a.label(lp)
    for k, va in enumerate(vaddrs):
        a(f"buffer_load_dwordx2 {vr(vtmp + 2 * k, 2)}, v{va}, s[{SWS}:{SWS + 3}], 0 offen sc0 sc1")
    a.label(chk)
    a("s_waitcnt vmcnt(0)")
    a(f"v_cmp_ne_u64 vcc, s[56:57], {vr(vtmp, 2)}")
    for k in range(1, len(vaddrs)):
        a(f"v_cmp_ne_u64 s[58:59], s[56:57], {vr(vtmp + 2 * k, 2)}")
        a("s_or_b64 vcc, vcc, s[58:59]")
    a(f"s_add_u32 s{scnt}, s{scnt}, 1")
    a(f"s_cmp_gt_u32 s{scnt}, {POLL_LIMIT}")
    a(f"s_cbranch_scc1 {done}")
    a("s_cmp_lg_u64 vcc, 0")
    a(f"s_cbranch_scc1 {lp}")
    a.label(done)


def lds_wait(a, vaddr, vt, target, s0, s1):
    lp, done = a.newlabel("LW"), a.newlabel("LWD")
    a(f"s_mov_b32 s{s0}, 0")
    a.label(lp)
    a(f"ds_read_b32 v{vt}, v{vaddr}")
    a("s_waitcnt lgkmcnt(0)")
    a(f"v_readfirstlane_b32 s{s1}, v{vt}")
    a(f"s_add_u32 s{s0}, s{s0}, 1")
    a(f"s_cmp_gt_u32 s{s0}, {POLL_LIMIT * 8}")
    a(f"s_cbranch_scc1 {done}")
    a(f"s_cmp_lt_u32 s{s1}, {target}")
    a(f"s_cbranch_scc1 {lp}")
    a.label(done)


def shared_poll(a, poller, vaddrs, vtmp, ldsoff, vl, preloaded=False):
    oth, done = a.newlabel("SP"), a.newlabel("SPD")
    a(f"v_mov_b32 v{vl}, {RES + ldsoff}")
    a(f"s_cmp_lg_u32 s26, {poller}")
    a(f"s_cbranch_scc1 {oth}")
    poll(a, vaddrs, vtmp, 10, preloaded)
    a(f"v_mov_b32 v{vl + 1}, 1")
    a(f"ds_write_b32 v{vl}, v{vl + 1}")
    a(f"s_branch {done}")
    a.label(oth)
    lds_wait(a, vl, vl + 1, 1, 10, 11)
    a.label(done)


def get_nonce(a, vt):
    lp, done = a.newlabel("NON"), a.newlabel("NOND")
    a("s_cmp_eq_u32 s2, 0")
    a(f"s_cbranch_scc1 {done}")
    srd(a, 16, 78, 256)
    a(f"v_mov_b32 v{vt}, 0")
    a("s_mov_b32 s20, 0")
    a.label(lp)
    a(f"buffer_load_dwordx2 {vr(vt + 2, 2)}, v{vt}, s[16:19], 0 offen sc0 sc1")
    a("s_waitcnt vmcnt(0)")
    a(f"v_readfirstlane_b32 s56, v{vt + 2}")
    a(f"v_readfirstlane_b32 s57, v{vt + 3}")
    a("s_add_u32 s20, s20, 1")
    a(f"s_cmp_gt_u32 s20, {POLL_LIMIT}")
    a(f"s_cbranch_scc1 {done}")
    a("s_not_b32 s21, s56")
    a("s_cmp_lg_u32 s21, s57")
    a(f"s_cbranch_scc1 {lp}")
    a.label(done)
    a(f"v_mov_b32 v{vt}, {RES}")
    a(f"v_mov_b32 v{vt + 2}, s56")
    a(f"v_mov_b32 v{vt + 3}, s57")
    a(f"ds_write_b64 v{vt}, {vr(vt + 2, 2)}")
    a("s_waitcnt lgkmcnt(0)")


def nonce_check_or_poll(a, vt, sdbg):
    lp, chk, done = a.newlabel("NON"), a.newlabel("NONC"), a.newlabel("NOND")
    a("s_mov_b32 s58, 0")
    a(f"s_branch {chk}")
    a.label(lp)
    a(f"buffer_load_dwordx2 {vr(vt + 2, 2)}, v{vt}, s[{sdbg}:{sdbg + 3}], 0 offen sc0 sc1")
    a("s_waitcnt vmcnt(0)")
    a.label(chk)
    a(f"v_readfirstlane_b32 s56, v{vt + 2}")
    a(f"v_readfirstlane_b32 s57, v{vt + 3}")
    a("s_add_u32 s58, s58, 1")
    a(f"s_cmp_gt_u32 s58, {POLL_LIMIT}")
    a(f"s_cbranch_scc1 {done}")
    a("s_not_b32 s59, s56")
    a("s_cmp_lg_u32 s59, s57")
    a(f"s_cbranch_scc1 {lp}")
    a.label(done)


def nonce_to_lds(a, vt):
    a(f"v_mov_b32 v{vt}, {RES}")
    a(f"v_mov_b32 v{vt + 2}, s56")
    a(f"v_mov_b32 v{vt + 3}, s57")
    a(f"ds_write_b64 v{vt}, {vr(vt + 2, 2)}")
    a("s_waitcnt lgkmcnt(0)")


def read_nonce(a, vt):
    a(f"v_mov_b32 v{vt}, {RES}")
    a(f"ds_read_b64 {vr(vt + 2, 2)}, v{vt}")
    a("s_waitcnt lgkmcnt(0)")
    a(f"v_readfirstlane_b32 s56, v{vt + 2}")
    a(f"v_readfirstlane_b32 s57, v{vt + 3}")


def write_flag(a, base, sslot, vt):
    a(f"s_lshl_b32 s58, s{sslot}, 6")
    a(f"s_add_u32 s58, s58, 0x{base:x}")
    a(f"v_mov_b32 v{vt}, s58")
    a(f"v_mov_b32 v{vt + 2}, s56")
    a(f"v_mov_b32 v{vt + 3}, s57")
    a("s_mov_b64 exec, 1")
    a(f"buffer_store_dwordx2 {vr(vt + 2, 2)}, v{vt}, s[{SWS}:{SWS + 3}], 0 offen sc0 sc1")
    a("s_mov_b64 exec, -1")


SH = 20
HREG = 124


def pack4(l):
    v = 0
    for i, x in enumerate(l):
        v |= x << (4 * i)
    return v


def job_params(a, swave):
    ty = [pack4([1, 1, 1, 2, 0, 0, 0, 2]), pack4([1, 1, 2, 2, 0, 0, 2, 0])]
    ch = [pack4([0, 1, 2, 0, 0, 0, 0, 1]), pack4([3, 4, 2, 4, 0, 0, 3, 0])]
    nb = [pack4([0, 1, 2, 3, 0, 0, 0, 3]), pack4([0, 1, 2, 2, 0, 0, 2, 0])]
    ns = [pack4([0, 0, 0, 0, 0, 0, 0, 1]), pack4([0, 0, 0, 2, 0, 0, 1, 0])]
    a(f"s_lshl_b32 s17, s{swave}, 2")
    a("s_or_b32 s17, s17, 0x40000")
    a("s_and_b32 s18, s2, 1")

    def sel(dst, t):
        a(f"s_mov_b32 s{dst}, 0x{t[0]:x}")
        a("s_cmp_eq_u32 s18, 0")
        a(f"s_cselect_b32 s{dst}, s{dst}, 0x{t[1]:x}")
        a(f"s_bfe_u32 s{dst}, s{dst}, s17")
    sel(51, ty)
    sel(50, ch)
    sel(16, nb)
    sel(19, ns)
    a("s_lshr_b32 s18, s2, 1")
    a("s_mul_i32 s18, s18, 5")
    a("s_add_u32 s50, s50, s18")
    a(f"s_mul_i32 s16, s16, {CJ_BIG}")
    a(f"s_mul_i32 s19, s19, {CJ_SMALL}")
    a("s_add_u32 s16, s16, s19")
    a(f"s_add_u32 s16, s16, {CONVB}")


def h_load(a):
    srd(a, SH, 70, XBYTES)
    a("s_lshl_b32 s17, s50, 12")
    if os.environ.get("NOH", "0") == "1":
        a(f"s_mov_b32 s17, 0x{OOB:x}")
    a(f"v_lshlrev_b32 v{HREG + 24}, 4, v1")
    for i in range(4):
        a(f"buffer_load_dwordx4 {vr(HREG + 4 * i, 4)}, v{HREG + 24}, s[{SH}:{SH + 3}], s17 offen offset:{1024 * i}{NT_H}")
    for i in range(4):
        a(f"buffer_load_dwordx2 {vr(HREG + 16 + 2 * i, 2)}, v{HREG + 24}, s[{SH}:{SH + 3}], s17 offen offset:{1024 * i + 16}{NT_H}")


def u_dma(a, uo):
    end = a.newlabel("UD")
    a("s_lshl_b32 s17, s50, 6")
    a(f"s_add_u32 s17, s17, 0x{WS_U:x}")
    a("s_cmp_eq_u32 s51, 2")
    a(f"s_cselect_b32 s18, {32 * 40960}, 0")
    a("s_cselect_b32 s19, 0, -1")
    a("s_add_u32 s17, s17, s18")
    for i in range(5):
        a(f"s_add_u32 m0, s16, {1024 * i}")
        if i == 2:
            a("s_mov_b32 exec_hi, s19")
        else:
            a("s_nop 0")
        a(f"buffer_load_dwordx4 v{uo + i}, s[{SWS}:{SWS + 3}], s17 offen sc1 lds")
        if i == 2:
            a("s_mov_b32 exec_hi, -1")
            a("s_cmp_eq_u32 s51, 2")
            a(f"s_cbranch_scc1 {end}")
    a.label(end)


def conv_build(a):
    T1, T2, T3, T4 = 64, 68, 72, 76
    VW = 20

    def build(d, n, off):
        dd = [d, d + 1, d + 2, d + 3, n, n + 1]
        for i in range(4):
            a(f"v_alignbit_b32 v{T1 + i}, v{dd[i + 1]}, v{dd[i]}, 16")
            a(f"v_mov_b32 v{T2 + i}, v{dd[i + 1]}")
            a(f"v_alignbit_b32 v{T3 + i}, v{dd[i + 2]}, v{dd[i + 1]}, 16")
            a(f"v_mov_b32 v{T4 + i}, v{dd[i + 2]}")
        a(f"ds_write_b128 v{VW}, {vr(T1, 4)} offset:{off}")
        a(f"ds_write_b128 v{VW + 1}, {vr(T2, 4)} offset:{off}")
        a(f"ds_write_b128 v{VW + 2}, {vr(T3, 4)} offset:{off}")
        a(f"ds_write_b128 v{VW + 3}, {vr(T4, 4)} offset:{off}")

    a("s_lshr_b32 s17, s50, 1")
    a("s_lshl_b32 s17, s17, 2")
    a("s_load_dword s54, s[72:73], s17")
    a("s_cmp_eq_u32 s51, 1")
    a("s_movk_i32 s17, 2560")
    a("s_cselect_b32 s17, 5120, s17")
    a("s_movk_i32 s53, 2112")
    a("s_cselect_b32 s53, 4160, s53")
    a("s_add_u32 s17, s17, s16")
    a("s_add_u32 s52, s17, 2480")
    a("v_and_b32 v2, 31, v1")
    a("v_lshrrev_b32 v3, 5, v1")
    a("v_lshlrev_b32 v9, 4, v1")
    a("v_add_u32 v10, s17, v9")
    a(f"v_add_u32 v{VW}, s52, v9")
    for r in range(1, 4):
        a(f"v_add_u32 v{VW + r}, s53, v{VW + r - 1}")
    for r in range(4):
        a(f"v_mov_b32 v{12 + r}, 0")
    a("ds_write_b128 v10, v[12:15]")
    a("ds_write_b128 v10, v[12:15] offset:1024")
    a("s_mov_b32 exec_hi, 0")
    a("s_mov_b32 exec_lo, 0x7ffffff")
    a("ds_write_b128 v10, v[12:15] offset:2048")
    a("s_mov_b64 exec, -1")
    a(f"v_readfirstlane_b32 s17, v{HREG}")
    a(f"v_readfirstlane_b32 s18, v{HREG + 1}")
    a("v_cmp_eq_u32 vcc, 3, v1")
    a("v_mov_b32 v16, s17")
    a("v_mov_b32 v17, s18")
    a("v_cndmask_b32 v16, 0, v16, vcc")
    a("v_cndmask_b32 v17, 0, v17, vcc")
    a("s_mov_b64 exec, 15")
    build(12, 16, 0)
    a("s_mov_b64 exec, -1")
    sk = a.newlabel("CVB")
    for i in range(4):
        if i == 2:
            a("s_cmp_eq_u32 s51, 2")
            a(f"s_cbranch_scc1 {sk}")
        build(HREG + 4 * i, HREG + 16 + 2 * i, 64 + 1024 * i)
    a.label(sk)


def conv_run(a):
    VA, VBB, VU = 4, 5, 6
    Y = 32
    FR = [96, 104, 112, 48]
    a("v_and_b32 v11, 3, v2")
    a("v_mul_lo_u32 v11, v11, s53")
    a("v_lshrrev_b32 v10, 2, v2")
    a("v_lshl_add_u32 v10, v10, 3, v11")
    a("v_lshl_add_u32 v10, v3, 4, v10")
    a(f"v_add_u32 v{VA}, s52, v10")
    a("s_cmp_eq_u32 s51, 1")
    a("s_cselect_b32 s53, 8, 4")
    a("v_sub_u32 v10, 31, v2")
    a("v_mul_u32_u24 v10, 80, v10")
    a("v_add_u32 v10, s16, v10")
    a(f"v_lshl_add_u32 v{VBB}, v3, 4, v10")
    a("v_lshlrev_b32 v11, 3, v3")
    a("v_sub_u32 v10, v10, v11")
    a(f"v_add_u32 v{VU}, 8, v10")
    for r in range(16):
        a(f"v_mov_b32 v{Y + r}, 0")
    a("s_lshl_b32 s17, s26, 2")
    a(f"s_add_u32 s17, s17, {RES + 32}")
    a("v_mov_b32 v10, s17")
    lds_wait(a, 10, 11, 1, 17, 18)
    stamp(a, 1)

    def rd(s):
        st = s % 4
        bo = (s // 2) * 80 + (s % 2) * 32
        return [f"ds_read_b64 {vr(FR[st], 2)}, v{VA} offset:{s * 32}",
                f"ds_read_b64 {vr(FR[st] + 2, 2)}, v{VA} offset:{s * 32 + 8}",
                f"ds_read_b128 {vr(FR[st] + 4, 4)}, v{VBB} offset:{bo}"]
    for s in range(3):
        for r in rd(s):
            a(r)
    a.label("CV_SEG")
    for s in range(16):
        for r in rd(s + 3):
            a(r)
        a("s_waitcnt lgkmcnt(9)")
        st = s % 4
        a(f"v_mfma_f32_32x32x16_bf16 {vr(Y, 16)}, {vr(FR[st], 4)}, {vr(FR[st] + 4, 4)}, {vr(Y, 16)}")
    a(f"v_add_u32 v{VBB}, 640, v{VBB}")
    a(f"v_add_u32 v{VA}, 512, v{VA}")
    a("s_sub_u32 s53, s53, 1")
    a("s_cmp_lg_u32 s53, 0")
    a("s_cbranch_scc1 CV_SEG")
    for q in range(4):
        a(f"ds_read_b64 {vr(64 + 2 * q, 2)}, v{VU} offset:{48 - 16 * q}")
    a("s_and_b32 s17, s50, 1")
    a("s_lshl_b32 s18, s54, 16")
    a("s_and_b32 s54, s54, 0xffff0000")
    a("s_cmp_eq_u32 s17, 0")
    a("s_cselect_b32 s54, s18, s54")
    a("v_lshlrev_b32 v11, 6, v2")
    a("v_lshl_add_u32 v11, v3, 3, v11")
    a("v_add_u32 v11, s52, v11")
    a("v_add_u32 v10, s52, v9")
    a("s_lshl_b32 s17, s50, 12")
    a("s_and_b32 s18, s51, 1")
    a("s_lshl_b32 s18, s18, 11")
    a("s_add_u32 s17, s17, s18")
    a(f"s_add_u32 s17, s17, 0x{WS_Z:x}")
    a("s_mov_b32 s18, 0xffff0000")
    a("s_waitcnt lgkmcnt(0)")
    a("s_nop 4")
    for q in range(4):
        u = 64 + 2 * q
        a(f"v_and_b32 v16, s18, v{u + 1}")
        a(f"v_lshlrev_b32 v17, 16, v{u + 1}")
        a(f"v_and_b32 v18, s18, v{u}")
        a(f"v_lshlrev_b32 v19, 16, v{u}")
        for r in range(4):
            a(f"v_fmac_f32 v{Y + 4 * q + r}, s54, v{16 + r}")
        d = 72 + 2 * q
        a(f"v_cvt_pk_bf16_f32 v{d}, v{Y + 4 * q}, v{Y + 4 * q + 1}")
        a(f"v_cvt_pk_bf16_f32 v{d + 1}, v{Y + 4 * q + 2}, v{Y + 4 * q + 3}")
        a(f"ds_write_b64 v11, {vr(d, 2)} offset:{16 * q}")
    a("ds_read_b128 v[64:67], v10")
    a("ds_read_b128 v[68:71], v10 offset:1024")
    a("s_waitcnt lgkmcnt(1)")
    a(f"buffer_store_dwordx4 v[64:67], v9, s[{SWS}:{SWS + 3}], s17 offen sc1")
    a("s_waitcnt lgkmcnt(0)")
    a(f"buffer_store_dwordx4 v[68:71], v9, s[{SWS}:{SWS + 3}], s17 offen offset:1024 sc1")


def gen(a):
    a.raw(f".globl {KNAME}")
    a.raw(".p2align 8")
    a.raw(f".type {KNAME},@function")
    a.label(KNAME)
    a("s_cmp_ge_u32 s2, 256")
    a("s_cbranch_scc1 L_END")
    a("s_load_dwordx4 s[4:7], s[0:1], 0")
    a("s_load_dwordx2 s[8:9], s[0:1], 96")
    a("s_load_dwordx2 s[60:61], s[0:1], 16")
    a("s_load_dwordx8 s[64:71], s[0:1], 32")
    a("s_load_dwordx4 s[72:75], s[0:1], 64")
    a("s_load_dwordx4 s[76:79], s[0:1], 80")
    a("v_and_b32 v1, 63, v0")
    a("v_lshrrev_b32 v2, 6, v0")
    a("s_nop 0")
    a("v_readfirstlane_b32 s26, v2")
    a("s_mov_b32 s56, 0")
    a("s_mov_b32 s57, 0")
    if DIAG:
        for i in range(16):
            a(f"s_mov_b32 s{80 + i}, 0")
    a("s_waitcnt lgkmcnt(0)")
    srd(a, SWS, 8, WS_SIZE)
    stamp(a, 0)
    a("s_cmp_lg_u32 s2, 0")
    a("s_cbranch_scc1 L_NOPUB")
    a("s_cmp_lg_u32 s26, 8")
    a("s_cbranch_scc1 L_NOPUB")
    a("s_memrealtime s[56:57]")
    srd(a, 16, 78, 256)
    a("s_waitcnt lgkmcnt(0)")
    a("s_or_b32 s56, s56, 1")
    a("s_not_b32 s57, s56")
    a("v_mov_b32 v2, 0")
    a("v_mov_b32 v4, s56")
    a("v_mov_b32 v5, s57")
    a("s_mov_b64 exec, 1")
    a("buffer_store_dwordx2 v[4:5], v2, s[16:19], 0 offen sc0 sc1")
    a("s_mov_b64 exec, -1")
    a.label("L_NOPUB")
    a("v_lshlrev_b32 v2, 2, v1")
    a(f"v_add_u32 v2, {RES + 8}, v2")
    a("v_mov_b32 v4, 0")
    a("s_mov_b32 exec_hi, 0")
    a("ds_write_b32 v2, v4")
    a("s_mov_b64 exec, -1")
    a("s_cmp_ge_u32 s2, 192")
    a("s_cbranch_scc1 P1_E")
    a("s_and_b32 s3, s2, 7")
    a("s_lshr_b32 s10, s2, 3")
    a("s_and_b32 s24, s3, 3")
    a("s_lshl_b32 s24, s24, 2")
    a("s_and_b32 s11, s10, 3")
    a("s_add_u32 s24, s24, s11")
    a("s_lshr_b32 s25, s3, 2")
    a("s_mul_i32 s25, s25, 6")
    a("s_lshr_b32 s10, s10, 2")
    a("s_add_u32 s25, s25, s10")
    a("s_lshl_b32 s27, s24, 7")
    a("s_lshr_b32 s28, s25, 2")
    a("s_and_b32 s29, s25, 3")
    a("s_lshl_b32 s29, s29, 3")
    a("s_lshl_b32 s55, s25, 4")
    a("s_add_u32 s55, s55, s24")
    a("s_cmp_lt_u32 s26, 8")
    a("s_cbranch_scc1 P1_COMP")
    SX, SW = 16, 20
    srd(a, SX, 4, XBYTES)
    srd(a, SW, 6, WQKV_BYTES)
    a("s_mul_i32 s34, s11, 3")
    a("s_lshl_b32 s10, s10, 1")
    a("s_add_u32 s34, s34, s10")
    a("s_cmp_ge_u32 s34, 10")
    a("s_cselect_b32 s10, 10, 0")
    a("s_sub_u32 s34, s34, s10")
    a("s_sub_u32 s35, s26, 8")
    VXO, VWO = 4, 8
    a("v_lshrrev_b32 v2, 3, v1")
    a("v_and_b32 v3, 7, v1")
    a("v_lshrrev_b32 v13, 4, v1")
    a("s_lshl_b32 s10, s35, 5")
    a("s_add_u32 s10, s10, s27")
    a("v_add_u32 v2, s10, v2")
    a("s_movk_i32 s11, 1280")
    a("v_mul_lo_u32 v2, v2, s11")
    a("v_xor_b32 v14, v3, v13")
    a("v_xor_b32 v15, 4, v14")
    a("v_lshlrev_b32 v14, 4, v14")
    a("v_lshlrev_b32 v15, 4, v15")
    for i in range(4):
        a(f"v_add_u32 v{VXO + i}, {i * 8 * 1280 - 1024 * i}, v2")
        a(f"v_add_u32 v{VXO + i}, v{VXO + i}, v{14 + (i & 1)}")
    a("s_mul_i32 s10, s25, 320")
    a("s_mul_i32 s11, s35, 61440")
    a("s_add_u32 s10, s10, s11")
    a("s_movk_i32 s11, 3840")
    for i in range(5):
        a(f"v_add_u32 v2, {64 * i}, v1")
        a("v_mul_u32_u24 v3, 0xcccd, v2")
        a("v_lshrrev_b32 v3, 20, v3")
        a("v_mul_u32_u24 v14, 20, v3")
        a("v_sub_u32 v2, v2, v14")
        a("v_lshrrev_b32 v14, 3, v3")
        a("v_and_b32 v14, 1, v14")
        a("v_lshlrev_b32 v14, 1, v14")
        a("v_xor_b32 v2, v2, v14")
        a("v_lshlrev_b32 v2, 4, v2")
        a("v_mul_lo_u32 v3, v3, s11")
        a("v_add3_u32 v2, v2, v3, s10")
        comp = 1024 * i if i < 4 else 0
        if comp:
            a(f"v_subrev_u32 v{VWO + i}, {comp}, v2")
        else:
            a(f"v_mov_b32 v{VWO + i}, v2")
    a("s_lshl_b32 s42, s35, 12")
    a("s_mul_i32 s43, s35, 5120")
    a("s_add_u32 s43, s43, 16384")
    a("s_mov_b32 s32, 0")
    a("s_mov_b32 s33, 0")

    def issue_stage():
        if os.environ.get("NODMA", "0") == "1":
            return
        a("s_lshl_b32 s30, s34, 7")
        a("s_mul_i32 s31, s34, 245760")
        a("s_add_u32 m0, s32, s42")
        a("s_add_u32 s34, s34, 1")
        for i in range(4):
            o = f" offset:{1024 * i}" if i else ""
            a(f"buffer_load_dwordx4 v{VXO + i}, s[{SX}:{SX + 3}], s30 offen{o}{NT_G} lds")
        a("s_add_u32 m0, s32, s43")
        a("s_cmp_ge_u32 s34, 10")
        for i in range(4):
            o = f" offset:{1024 * i}" if i else ""
            a(f"buffer_load_dwordx4 v{VWO + i}, s[{SW}:{SW + 3}], s31 offen{o}{NT_G} lds")
        a("s_cselect_b32 s34, 0, s34")
        a("s_add_u32 m0, m0, 4096")
        a(f"s_add_u32 s32, s32, {G_STAGE}")
        a(f"buffer_load_dwordx4 v{VWO + 4}, s[{SW}:{SW + 3}], s31 offen{NT_G} lds")
        a(f"s_cmp_ge_u32 s32, {4 * G_STAGE}")
        a("s_cselect_b32 s32, 0, s32")

    srd(a, 36, 78, 256)
    a("v_mov_b32 v16, 0")
    a("v_lshlrev_b32 v20, 6, v1")
    a(f"v_add_u32 v20, 0x{WS_F1 + 192 * 64:x}, v20")
    issue_stage()
    issue_stage()
    a("s_waitcnt vmcnt(9) lgkmcnt(0)")
    a("s_barrier")
    stamp(a, 1)
    issue_stage()
    issue_stage()
    a("buffer_load_dwordx2 v[18:19], v16, s[36:39], 0 offen sc0 sc1")
    a("s_mov_b32 s33, 4")
    a.label("P1_LLOOP")
    a("s_waitcnt vmcnt(18)")
    a("s_barrier")
    issue_stage()
    a("s_add_u32 s33, s33, 1")
    a("s_cmp_lt_u32 s33, 10")
    a("s_cbranch_scc1 P1_LLOOP")
    a("s_waitcnt vmcnt(18)")
    a("s_barrier")
    nonce_check_or_poll(a, 16, 36)
    a("s_cmp_lg_u32 s26, 8")
    a("s_cbranch_scc1 P1_LNON")
    nonce_to_lds(a, 16)
    a.label("P1_LNON")
    a("s_mov_b32 s18, 40960")
    for i in range(5):
        a(f"v_add_u32 v24, {64 * i}, v1")
        a("v_mul_u32_u24 v25, 0xcccd, v24")
        a("v_lshrrev_b32 v25, 18, v25")
        a("v_mul_u32_u24 v26, 5, v25")
        a("v_sub_u32 v24, v24, v26")
        a("v_min_u32 v24, 3, v24")
        a("v_mul_lo_u32 v25, v25, s18")
        a(f"v_lshl_add_u32 v{28 + i}, v24, 4, v25")
    a(f"v_mov_b32 v24, {RES + 68}")
    a("v_mov_b32 v25, 1")

    def e_issue():
        lb = a.newlabel("EI")
        a("s_cmp_lg_u32 s26, 9")
        a(f"s_cbranch_scc1 {lb}")
        a(f"buffer_load_dwordx2 v[22:23], v20, s[{SWS}:{SWS + 3}], 0 offen sc0 sc1")
        a.label(lb)

    def e_check():
        lb = a.newlabel("EC")
        a("s_cmp_lg_u32 s26, 9")
        a(f"s_cbranch_scc1 {lb}")
        a("v_cmp_ne_u64 vcc, s[56:57], v[22:23]")
        a("s_cmp_lg_u64 vcc, 0")
        a(f"s_cbranch_scc1 {lb}")
        a("ds_write_b32 v24, v25")
        a("s_waitcnt lgkmcnt(0)")
        a.label(lb)

    a("s_waitcnt vmcnt(9)")
    a("s_barrier")
    a("s_waitcnt vmcnt(0)")
    e_issue()
    a("s_barrier")
    a("s_barrier")
    stamp(a, 2)
    a("s_waitcnt vmcnt(0)")
    e_check()
    e_issue()
    a("s_barrier")
    a("ds_read_b32 v26, v24")
    a("s_sub_u32 s35, s26, 8")
    job_params(a, 35)
    a("s_waitcnt lgkmcnt(0)")
    a("v_readfirstlane_b32 s10, v26")
    a("s_cmp_eq_u32 s10, 0")
    a("s_cbranch_scc1 P1_LATE")
    a("s_mov_b32 s33, 1")
    a("s_branch P1_HU2")
    a.label("P1_LATE")
    a("s_barrier")
    a.label("P1_HU")
    a("s_mov_b32 s33, 0")
    shared_poll(a, 9, [20], 22, 68, 4, preloaded=True)
    a.label("P1_HU2")
    u_dma(a, 28)
    a("s_add_u32 s35, s35, 4")
    job_params(a, 35)
    a("s_cmp_eq_u32 s51, 0")
    a("s_cbranch_scc1 P1_HU1")
    u_dma(a, 28)
    a.label("P1_HU1")
    a("s_cmp_eq_u32 s33, 0")
    a("s_cbranch_scc1 P1_HU3")
    a("s_barrier")
    a.label("P1_HU3")
    a("s_lshl_b32 s17, s35, 2")
    a(f"s_add_u32 s17, s17, {RES + 32 - 16}")
    a("v_mov_b32 v4, s17")
    a("v_mov_b32 v5, 1")
    a("s_waitcnt vmcnt(0)")
    a("ds_write2_b32 v4, v5, v5 offset1:4")
    stamp(a, 3)
    a("s_branch P2_COMMON")

    a.label("P1_COMP")
    VXB0, VXB1, VWE0, VWO0 = 16, 17, 18, 19
    VXC0, VXC1, VWEC, VWOC = 20, 21, 22, 23
    X0, W0, X1, W1, ACC = 28, 36, 56, 64, 84
    a("v_lshrrev_b32 v13, 4, v1")
    a("s_and_b32 s10, s26, 3")
    a("s_lshr_b32 s11, s26, 2")
    a("v_and_b32 v2, 15, v1")
    a("v_lshrrev_b32 v3, 1, v2")
    a("v_xor_b32 v3, v3, v13")
    a("s_lshl_b32 s35, s10, 5")
    a("v_add_u32 v14, s35, v2")
    a("v_lshlrev_b32 v14, 7, v14")
    a(f"v_lshl_add_u32 v{VXB0}, v3, 4, v14")
    a("v_xor_b32 v3, 4, v3")
    a(f"v_lshl_add_u32 v{VXB1}, v3, 4, v14")
    a("v_lshrrev_b32 v3, 2, v2")
    a("v_lshl_add_u32 v3, v13, 3, v3")
    a("v_mul_u32_u24 v3, 320, v3")
    a("v_and_b32 v14, 3, v1")
    a("v_lshl_add_u32 v3, v14, 3, v3")
    a("s_mul_i32 s35, s11, 160")
    a("s_add_u32 s35, s35, 16384")
    a("v_add_u32 v3, s35, v3")
    a("v_and_b32 v14, 1, v13")
    a("v_lshlrev_b32 v14, 5, v14")
    a("v_add_u32 v15, v3, v14")
    a("v_sub_u32 v14, v3, v14")
    a("s_cmp_eq_u32 s11, 0")
    a("s_cselect_b64 vcc, -1, 0")
    a("s_nop 1")
    a(f"v_cndmask_b32 v{VWE0}, v14, v15, vcc")
    a(f"v_cndmask_b32 v{VWO0}, v15, v14, vcc")
    for r in range(40):
        a(f"v_mov_b32 v{ACC + r}, 0")

    def reads(ks, XS, WS_):
        xb = VXC0 if ks == 0 else VXC1
        x = [f"ds_read_b128 {vr(XS + 4 * i, 4)}, v{xb} offset:{i * 2048}" for i in range(2)]
        w = []
        for j in range(5):
            wb = VWEC if j % 2 == 0 else VWOC
            for T in range(2):
                w.append(f"ds_read_b64_tr_b16 {vr(WS_ + 4 * j + 2 * T, 2)}, v{wb} offset:{ks * 10240 + T * 1280 + j * 32}")
        return [x[0], w[0], w[1], x[1]] + w[2:]

    def mfmas(XS, WS_, vtype):
        m = []
        for j in range(5):
            for i in range(2):
                d = ACC + (i * 5 + j) * 4
                if vtype:
                    m.append(f"v_mfma_f32_16x16x32_bf16 {vr(d, 4)}, {vr(XS + 4 * i, 4)}, {vr(WS_ + 4 * j, 4)}, {vr(d, 4)}")
                else:
                    m.append(f"v_mfma_f32_16x16x32_bf16 {vr(d, 4)}, {vr(WS_ + 4 * j, 4)}, {vr(XS + 4 * i, 4)}, {vr(d, 4)}")
        return m

    def set_bases():
        a(f"v_add_u32 v{VXC0}, s33, v{VXB0}")
        a(f"v_add_u32 v{VXC1}, s33, v{VXB1}")
        a(f"v_add_u32 v{VWEC}, s33, v{VWE0}")
        a(f"v_add_u32 v{VWOC}, s33, v{VWO0}")

    def interleave(m, r):
        if os.environ.get("NOCOMP", "0") == "1":
            return
        if os.environ.get("NOCOMP", "0") == "2":
            r = []
        k = 0
        for i, mm in enumerate(m):
            a(mm)
            n = 2 if i < 2 else 1
            for _ in range(n):
                if k < len(r):
                    a(r[k]); k += 1
        while k < len(r):
            a(r[k]); k += 1

    a("s_mov_b32 s33, 0")
    a("s_mov_b32 s34, 0")
    set_bases()
    job_params(a, 26)
    a("s_waitcnt lgkmcnt(0)")
    a("s_barrier")
    stamp(a, 1)
    for r in reads(0, X0, W0):
        a(r)
    a("s_cmp_eq_u32 s28, 2")
    a("s_cbranch_scc1 P1_LOOP_V")
    for vtype in (0, 1):
        lbl = "P1_LOOP_V" if vtype else "P1_LOOP_QK"
        a.raw(".p2align 6")
        a.label(lbl)
        a("s_waitcnt lgkmcnt(0)")
        interleave(mfmas(X0, W0, vtype), reads(1, X1, W1))
        a(f"s_add_u32 s33, s33, {G_STAGE}")
        a(f"s_cmp_ge_u32 s33, {4 * G_STAGE}")
        a("s_cselect_b32 s33, 0, s33")
        a("s_waitcnt lgkmcnt(0)")
        a("s_barrier")
        set_bases()
        interleave(mfmas(X1, W1, vtype), reads(0, X0, W0))
        a("s_add_u32 s34, s34, 1")
        a("s_cmp_lg_u32 s34, 5")
        a(f"s_cbranch_scc1 {lbl}_NH")
        h_load(a)
        a.label(f"{lbl}_NH")
        a("s_cmp_lt_u32 s34, 10")
        a(f"s_cbranch_scc1 {lbl}")
        a("s_waitcnt lgkmcnt(0)")
        a("s_barrier")
        stamp(a, 2)

        a("s_mul_i32 s35, s11, 80")
        OFFJ = 28
        if not vtype:
            a("s_lshl_b32 s44, s10, 5")
            a("v_add_u32 v3, s44, v2")
            a("v_mul_u32_u24 v3, 48, v3")
            a("v_lshlrev_b32 v14, 2, v13")
            a("v_add_u32 v14, s35, v14")
            for j in range(5):
                a(f"v_add_u32 v15, {16 * j}, v14")
                a("v_mul_u32_u24 v24, 0xcccd, v15")
                a("v_lshrrev_b32 v24, 20, v24")
                a("v_mul_u32_u24 v25, 20, v24")
                a("v_sub_u32 v25, v15, v25")
                a("v_mul_u32_u24 v24, 6144, v24")
                a("v_lshl_add_u32 v24, v25, 1, v24")
                a(f"v_add_u32 v{OFFJ + j}, v24, v3")
            qs = math.log2(math.e) / math.sqrt(20.0)
            a(f"s_mov_b32 s44, {f32hex(qs)}")
            a("s_cmp_eq_u32 s28, 0")
            a("s_cselect_b32 s44, s44, 1.0")
            for i in range(2):
                for j in range(5):
                    d = ACC + (i * 5 + j) * 4
                    t = 36 + ((i * 5 + j) % 4) * 2
                    for r in range(4):
                        a(f"v_mul_f32 v{d + r}, s44, v{d + r}")
                    a(f"v_cvt_pk_bf16_f32 v{t}, v{d}, v{d + 1}")
                    a(f"v_cvt_pk_bf16_f32 v{t + 1}, v{d + 2}, v{d + 3}")
                    a(f"ds_write_b64 v{OFFJ + j}, {vr(t, 2)} offset:{768 * i}")
            a("s_movk_i32 s45, 6144")
            a("s_mul_i32 s46, s29, 98304")
            a("s_mul_i32 s48, s27, 48")
            a("s_add_u32 s46, s46, s48")
            a(f"s_add_u32 s46, s46, 0x{WS_Q:x}")
            a("s_mul_i32 s48, s29, 196608")
            a("s_lshr_b32 s49, s27, 8")
            a("s_mul_i32 s49, s49, 24576")
            a("s_add_u32 s48, s48, s49")
            a("s_and_b32 s49, s27, 255")
            a("s_mul_i32 s49, s49, 48")
            a("s_add_u32 s48, s48, s49")
            a(f"s_add_u32 s48, s48, 0x{WS_KV:x}")
            a("s_cmp_eq_u32 s28, 0")
            a("s_cselect_b32 s46, s46, s48")
            a("s_mov_b32 s48, 196608")
            a("s_cselect_b32 s47, 98304, s48")
            a("s_branch P1_COPY")
        else:
            a("v_lshrrev_b32 v3, 1, v13")
            a("s_lshl_b32 s44, s10, 2")
            a("v_add_u32 v3, s44, v3")
            a("v_mul_u32_u24 v3, 352, v3")
            a("v_and_b32 v14, 1, v13")
            a("v_lshl_add_u32 v3, v14, 3, v3")
            a("v_add_u32 v14, s35, v2")
            for j in range(5):
                a(f"v_add_u32 v15, {16 * j}, v14")
                a("v_mul_u32_u24 v24, 0xcccd, v15")
                a("v_lshrrev_b32 v24, 20, v24")
                a("v_mul_u32_u24 v25, 20, v24")
                a("v_sub_u32 v25, v15, v25")
                a("v_mul_u32_u24 v24, 5632, v24")
                a("v_lshl_add_u32 v24, v25, 4, v24")
                a(f"v_add_u32 v{OFFJ + j}, v24, v3")
            for i in range(2):
                for j in range(5):
                    d = ACC + (i * 5 + j) * 4
                    t = 36 + ((i * 5 + j) % 4) * 2
                    a(f"v_cvt_pk_bf16_f32 v{t}, v{d}, v{d + 1}")
                    a(f"v_cvt_pk_bf16_f32 v{t + 1}, v{d + 2}, v{d + 3}")
                    a(f"ds_write_b64 v{OFFJ + j}, {vr(t, 2)} offset:{704 * i}")
            a("s_mul_i32 s44, s26, 5632")
            a("v_mul_u32_u24 v14, 352, v1")
            a("v_add_u32 v3, s44, v14")
            for r in range(4):
                a(f"v_mov_b32 v{44 + r}, 0x3f803f80")
                a(f"v_mov_b32 v{48 + r}, 0")
            a("s_mov_b64 exec, 0xffff")
            a("ds_write_b128 v3, v[44:47] offset:320")
            a("ds_write_b128 v3, v[48:51] offset:336")
            a("s_mov_b64 exec, -1")
            a("s_movk_i32 s45, 5632")
            a("s_mul_i32 s46, s29, 196608")
            a("s_lshr_b32 s49, s27, 8")
            a("s_mul_i32 s49, s49, 24576")
            a("s_add_u32 s46, s46, s49")
            a("s_and_b32 s49, s27, 255")
            a("s_mul_i32 s49, s49, 44")
            a("s_add_u32 s46, s46, s49")
            a(f"s_add_u32 s46, s46, 0x{WS_KV + 12288:x}")
            a("s_mov_b32 s47, 196608")
    a.label("P1_COPY")
    a("s_waitcnt lgkmcnt(0)")
    a("s_barrier")
    a("s_cmp_lt_u32 s26, 4")
    a("s_cbranch_scc1 P15_CONV")
    a("v_lshlrev_b32 v2, 4, v1")
    a("s_sub_u32 s10, s26, 4")
    a("s_lshl_b32 s10, s10, 1")
    a("s_mul_i32 s11, s10, s45")
    a("s_mul_i32 s48, s10, s47")
    a("s_add_u32 s46, s46, s48")
    a("v_add_u32 v3, s11, v2")
    a("v_add_u32 v14, s45, v3")
    a("s_add_u32 s48, s46, s47")
    a("s_add_u32 s49, s46, 4096")
    a("s_add_u32 s38, s48, 4096")
    for h in range(2):
        for i in range(6):
            a(f"ds_read_b128 {vr(28 + (h * 6 + i) * 4, 4)}, v{3 if h == 0 else 14} offset:{1024 * i}")
    a("v_add_u32 v15, 5120, v2")
    a("v_cmp_gt_u32 vcc, s45, v15")
    for h in range(2):
        for i in range(5):
            a(f"s_waitcnt lgkmcnt({11 - (h * 6 + i)})")
            so = (46 if h == 0 else 48) if i < 4 else (49 if h == 0 else 38)
            a(f"buffer_store_dwordx4 {vr(28 + (h * 6 + i) * 4, 4)}, v2, s[{SWS}:{SWS + 3}], s{so} offen offset:{1024 * (i % 4)} sc1")
    a("s_waitcnt lgkmcnt(0)")
    a("s_and_saveexec_b64 s[36:37], vcc")
    a(f"buffer_store_dwordx4 {vr(28 + 5 * 4, 4)}, v2, s[{SWS}:{SWS + 3}], s49 offen offset:1024 sc1")
    a(f"buffer_store_dwordx4 {vr(28 + 11 * 4, 4)}, v2, s[{SWS}:{SWS + 3}], s38 offen offset:1024 sc1")
    a("s_mov_b64 exec, s[36:37]")
    a("s_branch P1_SIGNAL")

    a.label("P1_E")
    SK, SV, SSH = 16, 20, 44
    a("s_sub_u32 s24, s2, 192")
    a("s_mov_b32 s55, s2")
    a("s_cmp_ge_u32 s26, 10")
    a("s_cbranch_scc1 P1_E_B1")
    srd(a, SK, 64, XBYTES)
    srd(a, SV, 66, XBYTES)
    srd(a, SSH, 68, 640 * 8)
    a("s_lshl_b32 s25, s24, 5")
    a("s_movk_i32 s27, 5120")
    a("s_movk_i32 s28, 1280")
    KR, VR_, WB, T = 16, 38, 56, 64
    a("v_mul_u32_u24 v3, 0xcccd, v0")
    a("v_lshrrev_b32 v3, 23, v3")
    a("v_mul_u32_u24 v4, 160, v3")
    a("v_sub_u32 v4, v0, v4")
    a("v_lshlrev_b32 v5, 3, v3")
    a("v_add_u32 v5, s25, v5")
    a("v_mul_lo_u32 v6, v5, s28")
    a("v_lshl_add_u32 v6, v4, 3, v6")
    a("v_subrev_u32 v7, 3840, v6")
    a("v_cmp_eq_u32 vcc, 0, v5")
    a(f"v_mov_b32 v8, 0x{OOB:x}")
    a("v_lshlrev_b32 v9, 5, v4")
    a("v_cndmask_b32 v7, v7, v8, vcc")
    a("v_mul_u32_u24 v10, 320, v4")
    a("v_sub_u32 v11, 3, v3")
    a("v_lshl_add_u32 v54, v11, 4, v10")
    if os.environ.get("NOE", "0") == "1":
        a("v_mov_b32 v6, v8")
        a("v_mov_b32 v7, v8")
    for r in range(3):
        a(f"buffer_load_dwordx2 {vr(KR + 2 * r, 2)}, v7, s[{SK}:{SK + 3}], 0 offen offset:{1280 * r}{NT_E}")
    for r in range(8):
        so = "0" if r < 4 else "s27"
        a(f"buffer_load_dwordx2 {vr(KR + 6 + 2 * r, 2)}, v6, s[{SK}:{SK + 3}], {so} offen offset:{1280 * (r % 4)}{NT_E}")
    for r in range(8):
        so = "0" if r < 4 else "s27"
        a(f"buffer_load_dwordx2 {vr(VR_ + 2 * r, 2)}, v6, s[{SV}:{SV + 3}], {so} offen offset:{1280 * (r % 4)}{NT_E}")
    a(f"buffer_load_dwordx4 {vr(WB, 4)}, v9, s[{SSH}:{SSH + 3}], 0 offen")
    a(f"buffer_load_dwordx4 {vr(WB + 4, 4)}, v9, s[{SSH}:{SSH + 3}], 0 offen offset:16")
    stamp(a, 1)
    a("s_mov_b32 s29, 0xffff0000")
    a("s_waitcnt vmcnt(0)")
    a("s_cmp_ge_u32 s26, 8")
    a("s_cbranch_scc1 P1_E_NOH")
    job_params(a, 26)
    h_load(a)
    a.label("P1_E_NOH")
    for ch in range(4):
        KF, WF, UO = T, T + 11, 4
        dw, hi = ch // 2, ch % 2
        for r in range(11):
            if hi == 0:
                a(f"v_lshlrev_b32 v{KF + r}, 16, v{KR + 2 * r + dw}")
            else:
                a(f"v_and_b32 v{KF + r}, s29, v{KR + 2 * r + dw}")
        w = WB + 2 * ch
        a(f"v_lshlrev_b32 v{WF}, 16, v{w}")
        a(f"v_and_b32 v{WF + 1}, s29, v{w}")
        a(f"v_lshlrev_b32 v{WF + 2}, 16, v{w + 1}")
        a(f"v_and_b32 v{WF + 3}, s29, v{w + 1}")
        for r in range(8):
            a(f"v_mul_f32 v{UO + r}, v{WF + 3}, v{KF + r}")
            a(f"v_fmac_f32 v{UO + r}, v{WF + 2}, v{KF + r + 1}")
            a(f"v_fmac_f32 v{UO + r}, v{WF + 1}, v{KF + r + 2}")
            a(f"v_fmac_f32 v{UO + r}, v{WF}, v{KF + r + 3}")
            if hi == 0:
                a(f"v_lshlrev_b32 v{T + 15}, 16, v{VR_ + 2 * r + dw}")
            else:
                a(f"v_and_b32 v{T + 15}, s29, v{VR_ + 2 * r + dw}")
            a(f"v_mul_f32 v{UO + r}, v{UO + r}, v{T + 15}")
        for d in range(4):
            a(f"v_cvt_pk_bf16_f32 v{12 + d}, v{UO + 7 - 2 * d}, v{UO + 6 - 2 * d}")
        a(f"ds_write_b128 v54, v[12:15] offset:{80 * ch}")
        a("s_nop 0")
    a("s_waitcnt lgkmcnt(0)")
    a.label("P1_E_B1")
    a("s_cmp_lt_u32 s26, 8")
    a("s_cbranch_scc1 P1_E_NON")
    srd(a, 36, 78, 256)
    a("v_mov_b32 v16, 0")
    a("v_mov_b32 v18, 0")
    a("v_mov_b32 v19, 0")
    nonce_check_or_poll(a, 16, 36)
    nonce_to_lds(a, 16)
    a.label("P1_E_NON")
    a("s_barrier")
    stamp(a, 2)
    a("s_cmp_lt_u32 s26, 4")
    a("s_cbranch_scc1 P15_CONV")
    a("s_cmp_lt_u32 s26, 8")
    a("s_cbranch_scc1 P1_E_COPY")
    a("v_lshlrev_b32 v20, 6, v1")
    a(f"v_add_u32 v20, 0x{WS_F1 + 192 * 64:x}, v20")
    a("v_mov_b32 v22, 0")
    a("v_mov_b32 v23, 0")
    a("s_mov_b32 s18, 40960")
    for i in range(5):
        a(f"v_add_u32 v24, {64 * i}, v1")
        a("v_mul_u32_u24 v25, 0xcccd, v24")
        a("v_lshrrev_b32 v25, 18, v25")
        a("v_mul_u32_u24 v26, 5, v25")
        a("v_sub_u32 v24, v24, v26")
        a("v_min_u32 v24, 3, v24")
        a("v_mul_lo_u32 v25, v25, s18")
        a(f"v_lshl_add_u32 v{28 + i}, v24, 4, v25")
    a("s_sub_u32 s35, s26, 8")
    job_params(a, 35)
    a("s_branch P1_HU")
    a.label("P1_E_COPY")
    a("v_lshrrev_b32 v2, 2, v1")
    a("v_mul_u32_u24 v2, 80, v2")
    a("v_and_b32 v3, 3, v1")
    a("v_lshl_add_u32 v2, v3, 4, v2")
    a("s_sub_u32 s11, s26, 4")
    a("s_mul_i32 s10, s11, 12800")
    a("v_add_u32 v2, s10, v2")
    a("v_lshlrev_b32 v3, 4, v1")
    a("s_sub_u32 s10, 63, s24")
    a("s_mul_i32 s10, s10, 40960")
    a("s_mul_i32 s11, s11, 10240")
    a("s_add_u32 s10, s10, s11")
    a(f"s_add_u32 s10, s10, 0x{WS_U:x}")
    a("s_add_u32 s11, s10, 4096")
    a("s_add_u32 s29, s10, 8192")
    for i in range(10):
        a(f"ds_read_b128 {vr(16 + 4 * i, 4)}, v2 offset:{1280 * i}")
    for i in range(10):
        a(f"s_waitcnt lgkmcnt({9 - i})")
        so = [10, 11, 29][i // 4]
        a(f"buffer_store_dwordx4 {vr(16 + 4 * i, 4)}, v3, s[{SWS}:{SWS + 3}], s{so} offen offset:{1024 * (i % 4)} sc1")
    a.label("P1_SIGNAL")
    read_nonce(a, 4)
    a(f"v_mov_b32 v4, {RES + 16}")
    a("v_mov_b32 v5, 1")
    a("s_waitcnt vmcnt(0)")
    a("s_mov_b64 exec, 1")
    a("ds_add_rtn_u32 v6, v4, v5")
    a("s_waitcnt lgkmcnt(0)")
    a("v_readfirstlane_b32 s10, v6")
    a("s_mov_b64 exec, -1")
    a("s_cmp_lg_u32 s10, 3")
    a("s_cbranch_scc1 P1_NOSIG")
    write_flag(a, WS_F1, 55, 4)
    a.label("P1_NOSIG")
    stamp(a, 3)
    a("s_cmp_eq_u32 s51, 0")
    a("s_cbranch_scc1 P2_COMMON")

    a.label("P15_CONV")
    a("s_waitcnt vmcnt(0)")
    conv_build(a)
    conv_run(a)
    read_nonce(a, 16)
    stamp(a, 3)

    a.label("P2_COMMON")
    a("v_and_b32 v2, 31, v1")
    a("v_lshrrev_b32 v3, 5, v1")
    a("s_and_b32 s24, s2, 7")
    a("s_lshl_b32 s24, s24, 2")
    a("s_lshr_b32 s10, s2, 3")
    a("s_and_b32 s10, s10, 3")
    a("s_add_u32 s24, s24, s10")
    a("s_lshr_b32 s25, s2, 5")
    a("s_mul_i32 s27, s24, 196608")
    a(f"s_add_u32 s27, s27, 0x{WS_KV:x}")
    a("s_cmp_ge_u32 s26, 8")
    a("s_cbranch_scc1 P2_HELP")

    VK, VKH, VV = 5, 6, 7
    QLO, QHI = 8, 12
    KB = [16, 24]
    VB, P = 32, 40
    S = [48, 64]
    O, NM, TMP = 80, 96, 112
    a("v_and_b32 v14, 0x13, v2")
    a("v_and_b32 v15, 4, v2")
    a("v_lshl_or_b32 v14, v15, 1, v14")
    a("v_and_b32 v15, 8, v2")
    a("v_lshrrev_b32 v15, 1, v15")
    a("v_or_b32 v14, v14, v15")
    a("v_mul_u32_u24 v14, 48, v14")
    a(f"v_add_u32 v{TMP}, 32, v14")
    a(f"v_lshl_add_u32 v{TMP + 1}, v3, 4, v14")
    a("v_min_u32 v14, 21, v2")
    a("v_lshlrev_b32 v14, 4, v14")
    a("v_mul_u32_u24 v15, 352, v3")
    a(f"v_add_u32 v{TMP + 2}, v14, v15")
    a(f"v_add_u32 v{TMP + 2}, 12288, v{TMP + 2}")
    a(f"v_mov_b32 v{VK}, v{TMP + 1}")
    a(f"v_mov_b32 v{VKH}, v{TMP}")
    a(f"v_mov_b32 v{VV}, v{TMP + 2}")
    a("s_lshl_b32 s10, s26, 5")
    a("v_add_u32 v14, s10, v2")
    a("v_mul_u32_u24 v14, 48, v14")
    a(f"v_add_u32 v14, {QST}, v14")
    a("v_lshl_add_u32 v15, v3, 4, v14")
    for r in range(16):
        a(f"v_mov_b32 v{O + r}, 0")
    for r in range(4):
        a(f"v_mov_b32 v{P + 4 + r}, 0")
        a(f"v_mov_b32 v{VB + 4 + r}, 0")

    def kread(buf, tile):
        return [f"ds_read_b128 {vr(KB[buf], 4)}, v{VK} offset:{tile * 1536}",
                f"ds_read_b64 {vr(KB[buf] + 4, 2)}, v{VKH} offset:{tile * 1536}"]

    def qk1(sb, kb, c):
        return f"v_mfma_f32_32x32x16_bf16 {vr(S[sb], 16)}, {vr(KB[kb], 4)}, {vr(QLO, 4)}, {c}"

    def qk2(sb, kb):
        return f"v_mfma_f32_32x32x8_bf16 {vr(S[sb], 16)}, {vr(KB[kb] + 4, 2)}, {vr(QHI, 2)}, {vr(S[sb], 16)}"

    pv1 = f"v_mfma_f32_32x32x16_bf16 {vr(O, 16)}, {vr(VB, 4)}, {vr(P, 4)}, {vr(O, 16)}"
    pv2 = f"v_mfma_f32_32x32x16_bf16 {vr(O, 16)}, {vr(VB + 4, 4)}, {vr(P + 4, 4)}, {vr(O, 16)}"
    a("v_cmp_eq_u32 vcc, 0, v3")
    a("s_waitcnt lgkmcnt(0)")
    a("s_barrier")
    stamp(a, 4)
    a(f"ds_read_b128 {vr(QLO, 4)}, v15")
    a(f"ds_read_b64 {vr(QHI, 2)}, v14 offset:32")
    for r in kread(0, 0) + kread(1, 1):
        a(r)
    a(f"ds_read_b128 {vr(VB, 4)}, v{VV}")
    a("s_waitcnt lgkmcnt(3)")
    a(f"v_cndmask_b32 v{QHI}, 0, v{QHI}, vcc")
    a(f"v_cndmask_b32 v{QHI + 1}, 0, v{QHI + 1}, vcc")
    a(qk1(0, 0, "0"))
    a("s_nop 0")
    a(qk2(0, 0))
    a("s_nop 15")
    a("s_nop 3")
    s0 = S[0]
    a(f"v_max3_f32 v14, v{s0}, v{s0 + 1}, v{s0 + 2}")
    for r in range(3, 15, 2):
        a(f"v_max3_f32 v14, v14, v{s0 + r}, v{s0 + r + 1}")
    a(f"v_max_f32 v14, v14, v{s0 + 15}")
    a("v_mov_b32 v15, v14")
    a("s_nop 1")
    a("v_permlane32_swap_b32 v14, v15")
    a("s_nop 1")
    a("v_max_f32 v14, v14, v15")
    for r in range(16):
        a(f"v_sub_f32 v{NM + r}, 0, v14")
    for r in range(16):
        a(f"v_sub_f32 v{s0 + r}, v{s0 + r}, v14")
    a("s_mov_b32 s30, 0")
    a(f"s_mov_b32 s32, {SLOT}")
    a("s_mov_b32 s33, 0")
    a.raw(".p2align 6")
    a.label("P2_LOOP")
    for t in range(8):
        cur, nxt = t % 2, (t + 1) % 2
        sc = S[cur]

        def ex(r):
            return f"v_exp_f32 v{sc + r}, v{sc + r}"

        def cv(p):
            return f"v_cvt_pk_bf16_f32 v{P + p}, v{sc + 2 * p}, v{sc + 2 * p + 1}"

        a("s_waitcnt lgkmcnt(1)")
        a(qk1(nxt, nxt, vr(NM, 16)))
        a(ex(0)); a(ex(1)); a(ex(2)); a(ex(3)); a(cv(0))
        a(pv2)
        a(f"ds_read_b128 {vr(VB + 4, 4)}, v{VV} offset:{t * 1408 + 704}")
        a(ex(4)); a(cv(1)); a(ex(5)); a(ex(6)); a(ex(7)); a(cv(2))
        a(qk2(nxt, nxt))
        if t == 6:
            a(f"v_add_u32 v{VK}, s32, v{VK}")
            a(f"v_add_u32 v{VKH}, s32, v{VKH}")
        for r in kread(cur, (t + 2) % 8):
            a(r)
        a(ex(8)); a(cv(3)); a(ex(9)); a(ex(10))
        if t == 5:
            a("s_waitcnt vmcnt(0)")
            a("s_barrier")
        a(ex(11)); a(cv(4))
        a("s_waitcnt lgkmcnt(3)")
        a(pv1)
        if t == 7:
            a(f"v_add_u32 v{VV}, s32, v{VV}")
        a(f"ds_read_b128 {vr(VB, 4)}, v{VV} offset:{((t + 1) % 8) * 1408}")
        a(ex(12)); a(cv(5)); a(ex(13)); a(ex(14)); a(ex(15)); a(cv(6)); a(cv(7))
    a("s_add_u32 s33, s33, 1")
    a("s_cmp_eq_u32 s33, 3")
    a("s_cselect_b32 s33, 0, s33")
    a("s_cmp_eq_u32 s33, 2")
    a(f"s_mov_b32 s32, {SLOT}")
    a(f"s_cselect_b32 s32, {(-2 * SLOT) & 0xffffffff}, s32")
    a("s_add_u32 s30, s30, 1")
    a("s_cmp_lt_u32 s30, 8")
    a("s_cbranch_scc1 P2_LOOP")
    a("s_waitcnt lgkmcnt(0)")
    a(pv2)
    stamp(a, 5)
    a("s_nop 15")
    a(f"v_mov_b32 v14, v{O + 8}")
    a(f"v_mov_b32 v15, v{O + 8}")
    a("s_nop 1")
    a("v_permlane32_swap_b32 v14, v15")
    a("s_mov_b32 s10, 0x53800000")
    a("s_nop 0")
    a("v_cmp_nge_f32 vcc, s10, v15")
    a("s_cmp_eq_u64 vcc, 0")
    a("s_cbranch_scc1 P2_STORE")
    a("v_mov_b32 v14, 0xff800000")
    for r in range(16):
        a(f"v_mov_b32 v{O + r}, 0")
    a("s_mov_b32 s31, 0")
    a.label("P2_SPASS")
    a("s_mov_b32 s30, 0")
    a("s_mov_b32 s29, s27")
    a.label("P2_SCHUNK")
    a("s_mov_b32 s28, s29")
    a("s_mov_b32 s34, s29")
    a("s_mov_b32 s33, 0")
    a.label("P2_STILE")
    a(f"buffer_load_dwordx4 {vr(KB[0], 4)}, v{TMP + 1}, s[{SWS}:{SWS + 3}], s28 offen sc1")
    a(f"buffer_load_dwordx2 {vr(KB[0] + 4, 2)}, v{TMP}, s[{SWS}:{SWS + 3}], s28 offen sc1")
    a(f"buffer_load_dwordx4 {vr(VB, 4)}, v{TMP + 2}, s[{SWS}:{SWS + 3}], s34 offen sc1")
    a(f"buffer_load_dwordx4 {vr(VB + 4, 4)}, v{TMP + 2}, s[{SWS}:{SWS + 3}], s34 offen offset:704 sc1")
    a("s_waitcnt vmcnt(0)")
    a(qk1(0, 0, "0"))
    a(qk2(0, 0))
    a("s_nop 15")
    a("s_nop 3")
    a("s_cmp_lg_u32 s31, 0")
    a("s_cbranch_scc1 P2_SEXP")
    for r in range(0, 16, 2):
        a(f"v_max3_f32 v14, v14, v{s0 + r}, v{s0 + r + 1}")
    a("s_branch P2_SNEXT")
    a.label("P2_SEXP")
    for r in range(16):
        a(f"v_sub_f32 v{s0 + r}, v{s0 + r}, v14")
    for r in range(16):
        a(f"v_exp_f32 v{s0 + r}, v{s0 + r}")
    a("s_nop 0")
    for p in range(8):
        a(f"v_cvt_pk_bf16_f32 v{P + p}, v{s0 + 2 * p}, v{s0 + 2 * p + 1}")
    a("s_nop 1")
    a(pv1)
    a(pv2)
    a.label("P2_SNEXT")
    a("s_add_u32 s28, s28, 1536")
    a("s_add_u32 s34, s34, 1408")
    a("s_add_u32 s33, s33, 1")
    a("s_cmp_lt_u32 s33, 8")
    a("s_cbranch_scc1 P2_STILE")
    a(f"s_add_u32 s29, s29, {SLOT}")
    a("s_add_u32 s30, s30, 1")
    a("s_cmp_lt_u32 s30, 8")
    a("s_cbranch_scc1 P2_SCHUNK")
    a("s_cmp_lg_u32 s31, 0")
    a("s_cbranch_scc1 P2_SDONE")
    a("v_mov_b32 v15, v14")
    a("s_nop 1")
    a("v_permlane32_swap_b32 v14, v15")
    a("s_nop 1")
    a("v_max_f32 v14, v14, v15")
    a("s_mov_b32 s31, 1")
    a("s_branch P2_SPASS")
    a.label("P2_SDONE")
    a("s_nop 15")
    a(f"v_mov_b32 v14, v{O + 8}")
    a(f"v_mov_b32 v15, v{O + 8}")
    a("s_nop 1")
    a("v_permlane32_swap_b32 v14, v15")
    a("s_nop 1")
    a.label("P2_STORE")
    a("v_rcp_f32 v15, v15")
    a("s_lshl_b32 s10, s25, 8")
    a("s_lshl_b32 s11, s26, 5")
    a("s_add_u32 s10, s10, s11")
    a("v_add_u32 v16, s10, v2")
    a("v_lshrrev_b32 v17, 4, v16")
    a("v_mul_u32_u24 v17, 20480, v17")
    a("v_and_b32 v16, 15, v16")
    a("v_lshl_add_u32 v17, v16, 4, v17")
    a(f"v_add_u32 v17, 0x{WS_O:x}, v17")
    a("s_lshr_b32 s10, s24, 1")
    a("s_mul_i32 s10, s10, 5")
    a("s_and_b32 s11, s24, 1")
    a("s_lshl_b32 s28, s11, 1")
    a("s_add_u32 s28, s28, s10")
    a("v_add_u32 v18, s28, v3")
    a("v_lshl_add_u32 v28, v18, 8, v17")
    a("s_add_u32 s10, s10, 4")
    a("s_lshl_b32 s10, s10, 8")
    a("s_lshl_b32 s11, s11, 3")
    a("s_add_u32 s10, s10, s11")
    a("v_add_u32 v29, s10, v17")
    for r in range(12):
        a(f"v_mul_f32 v{O + r}, v{O + r}, v15")
    for p in range(6):
        a(f"v_cvt_pk_bf16_f32 v{20 + p}, v{O + 2 * p}, v{O + 2 * p + 1}")
    a(f"buffer_store_dwordx4 v[20:23], v28, s[{SWS}:{SWS + 3}], 0 offen sc1")
    a("s_mov_b32 exec_hi, 0")
    a(f"buffer_store_dwordx2 v[24:25], v29, s[{SWS}:{SWS + 3}], 0 offen sc1")
    a("s_mov_b32 exec_hi, -1")
    a("s_lshl_b32 s28, s24, 3")
    a("s_add_u32 s28, s28, s25")
    a("s_lshl_b32 s28, s28, 3")
    a("s_add_u32 s28, s28, s26")
    a("s_cmp_ge_u32 s26, 4")
    a("s_cbranch_scc1 P2_DONE_HI")

    SO = 16
    srd(a, SO, 76, XBYTES)
    OF, ACC3 = 32, 112
    WF = [132, 8]
    a("v_lshlrev_b32 v5, 4, v1")
    a("s_lshl_b32 s3, s24, 2")
    a("s_add_u32 s3, s3, s26")
    a("s_mul_i32 s32, s3, 20480")
    a(f"s_add_u32 s32, s32, 0x{WS_O:x}")
    a("s_lshl_b32 s36, s3, 4")
    a("s_mul_i32 s40, s36, 1280")
    a("s_mul_i32 s41, s26, 2560")
    a(f"s_add_u32 s41, s41, {L_X}")
    a("v_and_b32 v2, 15, v1")
    a("v_lshrrev_b32 v3, 4, v1")
    a("v_lshrrev_b32 v6, 2, v2")
    a("v_lshl_add_u32 v6, v3, 2, v6")
    a("v_and_b32 v7, 3, v1")
    WBASE = 158
    a("v_lshrrev_b32 v28, 2, v2")
    a("v_mul_u32_u24 v28, 160, v28")
    a("v_lshl_add_u32 v28, v7, 3, v28")
    a(f"v_add_u32 v28, {L_WO}, v28")
    for k5 in range(5):
        for T in range(2):
            rows = []
            for g in range(4):
                j, i = divmod(4 * k5 + g, 5)
                rows.append(40 * j + (20 * (i // 2) + 4 * (i % 2) + 8 * T if i < 4 else 16 + 20 * T))
            pk = rows[0] | rows[1] << 8 | rows[2] << 16 | rows[3] << 24
            a(f"s_mov_b32 s10, 0x{pk:x}")
            a("v_lshlrev_b32 v29, 3, v3")
            a("v_lshrrev_b32 v29, v29, s10")
            a("v_and_b32 v29, 0xff, v29")
            a("v_mul_u32_u24 v29, 160, v29")
            a(f"v_add_u32 v{WBASE + 2 * k5 + T}, v29, v28")
    a("v_lshlrev_b32 v30, 7, v6")
    a("v_lshl_add_u32 v30, v7, 3, v30")
    a("s_lshl_b32 s37, s26, 5")
    a(f"s_add_u32 s37, s37, {L_Z}")
    a("v_add_u32 v30, s37, v30")
    a("v_mul_u32_u24 v31, 160, v2")
    a("v_lshl_add_u32 v31, v3, 3, v31")
    a("v_add_u32 v31, s41, v31")
    a("v_lshlrev_b32 v7, 2, v2")
    a("s_lshl_b32 s36, s36, 2")
    a(f"s_add_u32 s36, s36, 0x{WS_G:x}")
    for r in range(20):
        a(f"v_mov_b32 v{ACC3 + r}, 0")
    a(f"v_mov_b32 v156, {RES + 64}")
    a("s_waitcnt vmcnt(0)")
    write_flag(a, WS_F2, 28, 152)
    stamp(a, 6)
    a(f"buffer_load_dword v6, v7, s[{SWS}:{SWS + 3}], s36 offen sc1")

    def wreads(ks, st):
        k2 = (ks // 5) % 2
        return [f"ds_read_b64_tr_b16 {vr(WF[st] + 4 * j + 2 * T, 2)}, v{WBASE + 2 * (ks % 5) + T} offset:{k2 * 25600 + j * 32}"
                for j in range(5) for T in range(2)]

    a("s_mul_i32 s3, s25, 160")
    a("s_movk_i32 s10, 1280")
    for i in range(3):
        a(f"v_add_u32 v155, {64 * i}, v1")
        a("v_mul_u32_u24 v28, 0xcccd, v155")
        a("v_lshrrev_b32 v28, 19, v28")
        a("v_mul_u32_u24 v29, 10, v28")
        a("v_sub_u32 v155, v155, v29")
        a("v_mul_lo_u32 v28, v28, s10")
        a("v_lshl_add_u32 v155, v155, 4, v28")
        a(f"v_add_u32 v{152 + i}, s3, v155")
    lds_wait(a, 156, 157, 4, 10, 11)
    a("s_lshr_b32 s10, s26, 1")
    a("s_lshl_b32 s10, s10, 2")
    a(f"s_add_u32 s10, s10, {RES + 88}")
    a("v_mov_b32 v156, s10")
    a("s_mov_b32 s44, 0")
    a("s_mov_b32 s45, 0")
    a.label("P3_WAIT")
    a("ds_read_b32 v157, v156")
    a("s_waitcnt lgkmcnt(0)")
    a("v_readfirstlane_b32 s46, v157")
    a("s_add_u32 s45, s45, 1")
    a(f"s_cmp_gt_u32 s45, {POLL_LIMIT * 8}")
    a("s_cselect_b32 s46, -1, s46")
    a("s_mov_b32 s47, 0")
    for gam in range(4):
        a(f"s_bfe_u32 s10, s46, 0x{0x80000 + 8 * gam:x}")
        a("s_cmp_eq_u32 s10, 0xff")
        a(f"s_cselect_b32 s10, {1 << gam}, 0")
        a("s_or_b32 s47, s47, s10")
    a("s_andn2_b32 s47, s47, s44")
    a("s_cmp_eq_u32 s47, 0")
    a("s_cbranch_scc1 P3_WAIT")
    for gam in range(4):
        a(f"s_bitcmp0_b32 s47, {gam}")
        a(f"s_cbranch_scc1 P3_NL{gam}")
        a(f"s_add_u32 s35, s32, {gam * 5120}")
        a("s_add_u32 s33, s35, 4096")
        for k in range(5):
            ks = 5 * gam + k
            so, off = (35, k * 1024) if k < 4 else (33, 0)
            a(f"buffer_load_dwordx4 {vr(OF + 4 * ks, 4)}, v5, s[{SWS}:{SWS + 3}], s{so} offen offset:{off} sc1")
        a.label(f"P3_NL{gam}")
    for gam in range(4):
        a(f"s_bitcmp0_b32 s47, {gam}")
        a(f"s_cbranch_scc1 P3_NM{gam}")
        if gam >= 2:
            for r in range(10):
                a(f"v_add_u32 v{WBASE + r}, 51200, v{WBASE + r}")
        for r in wreads(5 * gam, 0):
            a(r)
        a("s_waitcnt vmcnt(0)")
        for k in range(5):
            ks = 5 * gam + k
            st = k % 2
            if k < 4:
                for r in wreads(ks + 1, 1 - st):
                    a(r)
                a("s_waitcnt lgkmcnt(10)")
            else:
                a("s_waitcnt lgkmcnt(0)")
            for j in range(5):
                d = ACC3 + 4 * j
                a(f"v_mfma_f32_16x16x32_bf16 {vr(d, 4)}, {vr(WF[st] + 4 * j, 4)}, {vr(OF + 4 * ks, 4)}, {vr(d, 4)}")
        if gam >= 2:
            for r in range(10):
                a(f"v_subrev_u32 v{WBASE + r}, 51200, v{WBASE + r}")
        a.label(f"P3_NM{gam}")
    a("s_or_b32 s44, s44, s47")
    a("s_cmp_lg_u32 s44, 15")
    a("s_cbranch_scc1 P3_WAIT")
    for j in range(5):
        a(f"ds_read_b64 {vr(32 + 2 * j, 2)}, v31 offset:{32 * j}")
        a(f"ds_read_b64_tr_b16 {vr(44 + 2 * j, 2)}, v30 offset:{2048 * j}")
    a("v_sub_f32 v17, 1.0, v6")
    a("s_mov_b32 s42, 0xffff0000")
    a("s_waitcnt lgkmcnt(0)")
    for j in range(5):
        d = ACC3 + 4 * j
        for r in range(4):
            xs = 32 + 2 * j + r // 2
            zs = 44 + 2 * j + r // 2
            if r % 2 == 0:
                a(f"v_lshlrev_b32 v18, 16, v{xs}")
                a(f"v_lshlrev_b32 v19, 16, v{zs}")
            else:
                a(f"v_and_b32 v18, s42, v{xs}")
                a(f"v_and_b32 v19, s42, v{zs}")
            a("v_mul_f32 v18, v18, v19")
            a("v_mul_f32 v18, v18, v17")
            a(f"v_fma_f32 v{d + r}, v{d + r}, v6, v18")
        a(f"v_cvt_pk_bf16_f32 v{56 + 2 * j}, v{d}, v{d + 1}")
        a(f"v_cvt_pk_bf16_f32 v{57 + 2 * j}, v{d + 2}, v{d + 3}")
        a(f"ds_write_b64 v31, {vr(56 + 2 * j, 2)} offset:{32 * j}")
    a("v_add_u32 v18, s41, v5")
    a("s_waitcnt lgkmcnt(0)")
    for i in range(3):
        a(f"ds_read_b128 {vr(68 + 4 * i, 4)}, v18 offset:{1024 * i}")
    a("s_waitcnt lgkmcnt(0)")
    for i in range(2):
        a(f"buffer_store_dwordx4 {vr(68 + 4 * i, 4)}, v{152 + i}, s[{SO}:{SO + 3}], s40 offen{OUTPOL}")
    a("s_mov_b32 exec_hi, 0")
    a(f"buffer_store_dwordx4 {vr(76, 4)}, v154, s[{SO}:{SO + 3}], s40 offen{OUTPOL}")
    if DIAG:
        a("s_waitcnt vmcnt(0)")
    stamp(a, 7)
    stamp_flush(a)
    a("s_endpgm")
    a.label("P2_DONE_HI")
    a("s_waitcnt vmcnt(0)")
    write_flag(a, WS_F2, 28, 4)
    stamp(a, 6)
    stamp_flush(a)
    a("s_endpgm")

    a.label("P2_HELP")
    SX, SG, SWO = 16, 28, 36
    if os.environ.get("HPRIO", "3") != "0":
        a("s_setprio " + os.environ.get("HPRIO", "3"))
    srd(a, SX, 4, XBYTES)
    srd(a, SG, 74, 1280)
    srd(a, SWO, 60, WO_BYTES)
    a("s_sub_u32 s34, s26, 8")
    a("v_lshlrev_b32 v4, 4, v1")
    a("s_lshl_b32 s10, s2, 3")
    a("s_lshl_b32 s11, s34, 1")
    a("s_add_u32 s35, s10, s11")
    a("s_mul_i32 s10, s35, 1280")
    a("s_add_u32 s11, s10, 1280")
    a("v_add_u32 v5, 1024, v4")
    a("v_cmp_gt_u32 vcc, 16, v1")
    a(f"v_mov_b32 v6, 0x{OOB:x}")
    a("s_nop 0")
    a("v_cndmask_b32 v5, v6, v5, vcc")
    G = 64
    a("v_mov_b32 v9, v5")
    a("s_mov_b32 s46, s10")
    a("s_mov_b32 s47, s11")
    a("s_lshr_b32 s10, s24, 3")
    a("v_and_b32 v5, 15, v1")
    a("v_bfe_u32 v6, v1, 4, 1")
    a("v_lshlrev_b32 v6, 6, v6")
    a("v_add3_u32 v5, v5, v6, 64")
    a("v_and_b32 v6, 1, v1")
    a("s_lshl_b32 s11, s25, 1")
    a("v_add_u32 v6, s11, v6")
    a("v_cmp_gt_u32 vcc, 32, v1")
    a("s_lshl_b32 s10, s10, 4")
    a("s_nop 0")
    a("v_cndmask_b32 v5, v6, v5, vcc")
    a("v_add_u32 v5, s10, v5")
    a("v_lshlrev_b32 v5, 6, v5")
    a(f"v_add_u32 v5, 0x{WS_F1:x}, v5")
    a("v_and_b32 v11, 3, v1")
    a("v_min_u32 v11, 2, v11")
    a("v_lshlrev_b32 v11, 6, v11")
    a("v_bfe_u32 v12, v1, 2, 1")
    a("v_add3_u32 v11, v11, v12, s10")
    a("v_add_u32 v11, s11, v11")
    a("v_lshlrev_b32 v11, 6, v11")
    a(f"v_add_u32 v13, 0x{WS_F1:x}, v11")
    VD = 10
    a("s_mul_i32 s40, s34, 6144")
    a(f"v_add_u32 v{VD}, s40, v4")
    a("s_mov_b32 s41, s25")
    a("s_mov_b32 s42, 0")

    def kv_dma():
        a("s_mul_i32 s43, s41, 24576")
        a("s_add_u32 s43, s43, s27")
        a("s_add_u32 m0, s42, s40")
        a("s_add_u32 s41, s41, 1")
        for i in range(4):
            o = f" offset:{1024 * i}" if i else ""
            a(f"buffer_load_dwordx4 v{VD}, s[{SWS}:{SWS + 3}], s43 offen{o} sc1 lds")
        a("s_add_u32 m0, m0, 4096")
        a("s_add_u32 s43, s43, 4096")
        a("s_and_b32 s41, s41, 7")
        for i in range(2):
            o = f" offset:{1024 * i}" if i else ""
            a(f"buffer_load_dwordx4 v{VD}, s[{SWS}:{SWS + 3}], s43 offen{o} sc1 lds")
        a(f"s_add_u32 s42, s42, {SLOT}")
        a(f"s_cmp_ge_u32 s42, {3 * SLOT}")
        a("s_cselect_b32 s42, 0, s42")

    VP = 24
    a("s_mul_i32 s3, s25, 160")
    a("s_movk_i32 s10, 1280")
    for i in range(5):
        a(f"v_add_u32 v7, {64 * i}, v1")
        a("v_mul_u32_u24 v8, 0xcccd, v7")
        a("v_lshrrev_b32 v8, 19, v8")
        a("v_mul_u32_u24 v11, 10, v8")
        a("v_sub_u32 v7, v7, v11")
        a("v_mul_lo_u32 v8, v8, s10")
        a("v_lshl_add_u32 v7, v7, 4, v8")
        a(f"v_add_u32 v{VP + i}, s3, v7")
    a("s_lshl_b32 s44, s24, 11")
    a("s_lshl_b32 s11, s25, 8")
    a("s_add_u32 s44, s44, s11")
    a("s_mul_i32 s44, s44, 48")
    a("s_mul_i32 s45, s34, 3072")
    a("s_add_u32 s44, s44, s45")
    a(f"v_mov_b32 v6, {RES + 16}")
    lds_wait(a, 6, 7, 4, 10, 11)
    shared_poll(a, 8, [13], 20, 72, 6)
    stamp(a, 4)
    a(f"s_add_u32 m0, s45, {QST}")
    a("s_nop 0")
    for i in range(3):
        o = f" offset:{1024 * i}" if i else ""
        a(f"buffer_load_dwordx4 v4, s[{SWS}:{SWS + 3}], s44 offen{o} sc1 lds")
    kv_dma()
    a(f"buffer_load_dwordx4 {vr(G, 4)}, v4, s[{SG}:{SG + 3}], 0 offen")
    a(f"buffer_load_dwordx4 {vr(G + 4, 4)}, v9, s[{SG}:{SG + 3}], 0 offen")
    a(f"buffer_load_dwordx4 {vr(G + 8, 4)}, v4, s[{SX}:{SX + 3}], s46 offen")
    a(f"buffer_load_dwordx4 {vr(G + 12, 4)}, v9, s[{SX}:{SX + 3}], s46 offen")
    a(f"buffer_load_dwordx4 {vr(G + 16, 4)}, v4, s[{SX}:{SX + 3}], s47 offen")
    a(f"buffer_load_dwordx4 {vr(G + 20, 4)}, v9, s[{SX}:{SX + 3}], s47 offen")
    a("s_waitcnt vmcnt(6)")
    a("s_barrier")
    shared_poll(a, 8, [5], 20, 76, 6)
    kv_dma()
    a("v_mov_b32 v20, 0")
    a("v_mov_b32 v21, 0")
    a("s_waitcnt vmcnt(6)")
    for r in range(8):
        a(f"v_dot2_f32_bf16 v20, v{G + 8 + r}, v{G + r}, v20")
        a(f"v_dot2_f32_bf16 v21, v{G + 16 + r}, v{G + r}, v21")
    a("s_nop 3")
    for sh in (1, 2, 4, 8):
        a(f"v_add_f32_dpp v20, v20, v20 row_shr:{sh} row_mask:0xf bank_mask:0xf bound_ctrl:0")
        a(f"v_add_f32_dpp v21, v21, v21 row_shr:{sh} row_mask:0xf bank_mask:0xf bound_ctrl:0")
        a("s_nop 1")
    a("s_nop 1")
    a("v_readlane_b32 s10, v20, 15")
    a("v_readlane_b32 s11, v20, 31")
    a("v_readlane_b32 s49, v20, 47")
    a("v_readlane_b32 s50, v20, 63")
    a("v_readlane_b32 s51, v21, 15")
    a("v_readlane_b32 s52, v21, 31")
    a("v_readlane_b32 s53, v21, 47")
    a("v_readlane_b32 s54, v21, 63")
    a("s_nop 3")
    a("v_mov_b32 v22, s10")
    a("v_mov_b32 v23, s51")
    a("v_add_f32 v22, s11, v22")
    a("v_add_f32 v23, s52, v23")
    a("v_add_f32 v22, s49, v22")
    a("v_add_f32 v23, s53, v23")
    a("v_add_f32 v22, s50, v22")
    a("v_add_f32 v23, s54, v23")
    a("v_cmp_eq_u32 vcc, 1, v1")
    a("s_nop 1")
    a("v_cndmask_b32 v22, v22, v23, vcc")
    a(f"v_mul_f32 v22, {f32hex(-math.log2(math.e))}, v22")
    a("v_exp_f32 v22, v22")
    a("s_nop 0")
    a("v_add_f32 v22, 1.0, v22")
    a("v_rcp_f32 v22, v22")
    a("s_lshl_b32 s10, s35, 2")
    a(f"s_add_u32 s10, s10, 0x{WS_G:x}")
    a("v_lshlrev_b32 v23, 2, v1")
    a("s_mov_b64 exec, 3")
    a(f"buffer_store_dword v22, v23, s[{SWS}:{SWS + 3}], s10 offen sc1")
    a("s_mov_b64 exec, -1")
    a("s_waitcnt vmcnt(0)")
    a("s_barrier")
    a("s_cmp_lg_u32 s26, 8")
    a("s_cbranch_scc1 P2H_NOF3")
    write_flag(a, WS_F3, 2, 12)
    a.label("P2H_NOF3")

    def wo_rep(srep):
        a(f"s_mul_i32 s10, s{srep}, 40960")
        a(f"s_mul_i32 s11, s{srep}, 5120")
        a(f"s_add_u32 s11, s11, {L_WO}")
        for i in range(5):
            a(f"s_add_u32 m0, s11, {1024 * i}")
            a("s_nop 0")
            a(f"buffer_load_dwordx4 v{VP + i}, s[{SWO}:{SWO + 3}], s10 offen lds")

    a("s_add_u32 s44, s34, 4")
    a.label("P2H_WO")
    kv_dma()
    wo_rep(44)
    a("s_waitcnt vmcnt(5)")
    a("s_barrier")
    a("s_add_u32 s44, s44, 4")
    a("s_cmp_lt_u32 s44, 20")
    a("s_cbranch_scc1 P2H_WO")
    stamp(a, 5)
    kv_dma()
    a("v_lshlrev_b32 v5, 6, v1")
    a(f"v_add_u32 v5, 0x{WS_F3:x}, v5")
    a("v_add_u32 v6, 4096, v5")
    a("v_add_u32 v7, 8192, v5")
    a("v_add_u32 v8, 12288, v5")
    a("s_waitcnt vmcnt(0)")
    a("s_barrier")
    kv_dma()
    a("s_cmp_lg_u32 s26, 8")
    a("s_cbranch_scc1 P2H_NOP3")
    poll(a, [5, 6, 7, 8], 12, 10)
    a.label("P2H_NOP3")
    a("s_waitcnt vmcnt(0)")
    a("s_barrier")
    wo_rep(34)
    a("s_lshl_b32 s10, s24, 6")
    a("s_lshl_b32 s11, s34, 4")
    a("s_add_u32 s10, s10, s11")
    a("s_mul_i32 s10, s10, 1280")
    a("s_mul_i32 s11, s34, 2560")
    a(f"s_add_u32 s11, s11, {L_X}")
    for i in range(3):
        a(f"s_add_u32 m0, s11, {1024 * i}")
        if i == 2:
            a("s_mov_b32 exec_hi, 0")
        else:
            a("s_nop 0")
        a(f"buffer_load_dwordx4 v{VP + i}, s[{SX}:{SX + 3}], s10 offen lds")
    a("s_mov_b64 exec, -1")
    a("v_lshrrev_b32 v7, 3, v1")
    a("v_lshlrev_b32 v7, 12, v7")
    a("v_and_b32 v8, 7, v1")
    a("v_lshl_add_u32 v7, v8, 4, v7")
    a("s_mul_i32 s10, s25, 80")
    a("s_lshl_b32 s10, s10, 12")
    a("s_lshl_b32 s11, s24, 7")
    a("s_add_u32 s10, s10, s11")
    a(f"s_add_u32 s10, s10, 0x{WS_Z:x}")
    a("s_lshl_b32 s11, s34, 15")
    a("s_add_u32 s10, s10, s11")
    a("s_lshl_b32 s11, s34, 10")
    a(f"s_add_u32 s11, s11, {L_Z}")
    a("s_barrier")
    for k in range(3):
        if k == 2:
            a("s_cmp_lt_u32 s34, 2")
            a("s_cselect_b32 s44, 2, 1")
            a("s_lshl_b32 s43, s44, 17")
            a("s_lshl_b32 s44, s44, 12")
            a("s_add_u32 s43, s43, s10")
            a("s_add_u32 m0, s11, s44")
        else:
            a(f"s_add_u32 s43, s10, {k * 131072}")
            a(f"s_add_u32 m0, s11, {k * 4096}")
        a("s_nop 0")
        a(f"buffer_load_dwordx4 v7, s[{SWS}:{SWS + 3}], s43 offen sc1 lds")
    a(f"v_mov_b32 v5, {RES + 64}")
    a("v_mov_b32 v6, 1")
    a("s_waitcnt vmcnt(0)")
    a("s_mov_b64 exec, 1")
    a("ds_add_u32 v5, v6")
    a("s_mov_b64 exec, -1")
    a("s_cmp_lg_u32 s26, 8")
    a("s_cbranch_scc1 P2H_FIN")
    a("s_lshr_b32 s10, s24, 2")
    a("s_lshl_b32 s10, s10, 3")
    a("s_and_b32 s11, s24, 3")
    a("s_lshl_b32 s11, s11, 1")
    a("s_add_u32 s10, s10, s11")
    a("v_lshlrev_b32 v7, 6, v2")
    a("v_add3_u32 v7, v7, v3, s10")
    a("v_lshlrev_b32 v7, 6, v7")
    a(f"v_add_u32 v7, 0x{WS_F2:x}, v7")
    a(f"v_mov_b32 v8, {RES + 88}")
    a("s_mov_b32 s10, 0")
    a.label("P2H_OP")
    a(f"buffer_load_dwordx2 v[12:13], v7, s[{SWS}:{SWS + 3}], 0 offen sc0 sc1")
    a("s_waitcnt vmcnt(0)")
    a("v_cmp_eq_u64 vcc, s[56:57], v[12:13]")
    a("s_add_u32 s10, s10, 1")
    a("s_nop 0")
    a("v_mov_b32 v14, vcc_lo")
    a("v_mov_b32 v15, vcc_hi")
    a("ds_write_b64 v8, v[14:15]")
    a(f"s_cmp_gt_u32 s10, {POLL_LIMIT}")
    a("s_cbranch_scc1 P2H_FIN")
    a("s_cmp_lg_u64 vcc, -1")
    a("s_cbranch_scc1 P2H_OP")
    a.label("P2H_FIN")
    a("s_waitcnt lgkmcnt(0)")
    stamp(a, 6)
    stamp_flush(a)
    a.label("L_END")
    a("s_endpgm")


def main():
    hdr = open("cdna_kernels/" + NAME + ".s.ref").read().split("\n")
    head = [l for l in hdr if l.startswith(";") and "@launch" not in l and "Override" not in l and "grid=ceil" not in l]
    a = Asm()
    gen(a)
    out = "\n".join(head) + "\n"
    if os.environ.get("ASLIST", "0") == "1":
        out += f"; @launch kernel={KNAME} grid=(256,1,1) block=(768,1,1) lds={LDS_TOTAL}\n"
    else:
        out += f"; @launch grid=(256,1,1) block=(768,1,1) lds={LDS_TOTAL}\n"
    out += '.amdgcn_target "amdgcn-amd-amdhsa--gfx950"\n.text\n'
    out += a.text()
    out += '.section .rodata,"a"\n.p2align 6\n'
    out += f""".amdhsa_kernel {KNAME}
  .amdhsa_next_free_vgpr 168
  .amdhsa_next_free_sgpr 102
  .amdhsa_accum_offset 168
  .amdhsa_group_segment_fixed_size 0
  .amdhsa_kernarg_size 104
  .amdhsa_user_sgpr_count 2
  .amdhsa_user_sgpr_kernarg_segment_ptr 1
  .amdhsa_system_sgpr_workgroup_id_x 1
.end_amdhsa_kernel
"""
    path = sys.argv[1] if len(sys.argv) > 1 else "cdna_kernels/" + NAME + ".s"
    open(path, "w").write(out)
    print("wrote", path, len(out), "bytes")


if __name__ == "__main__":
    main()
```

```python
import struct, sys, math, os

NAME = "gated_mix__softmax_full_mha__ssm_conv_h3__prompt"
KNAME = NAME + "_kernel"

WS_Q = 0x0
WS_KV = 0x300000
WS_U = 0x900000
WS_Z = 0xC00000
WS_O = 0xF00000
OLAYOUT = 2
VROWS = 22
WS_G = 0x1200000
WS_F1 = 0x1210000
WS_F3 = 0x1218000
WS_F2 = 0x1220000
WS_DIAG = 0x1280000
WS_SIZE = 0x1400000

XBYTES = 2048 * 640 * 2
WQKV_BYTES = 640 * 1920 * 2
WO_BYTES = 640 * 640 * 2
OOB = 0x7F000000
DIAG = int(os.environ.get("DIAG", "0"))
POLL_LIMIT = 30000
HPOS = int(os.environ.get('HPOS', '1'))
OUTPOL = os.environ.get('OUTPOL', '')
NT_E = ' nt' if os.environ.get('NT_E', '1') == '1' else ''
NT_G = ' nt' if os.environ.get('NT_G', '0') == '1' else ''
NT_H = ' nt' if os.environ.get('NT_H', '1') == '1' else ''

G_STAGE = 36864
SLOT = 24576
CONVB = 51200
CJ_BIG, CJ_SMALL = 24240, 13488
QST = CONVB + 3 * CJ_BIG + 2 * CJ_SMALL
RES = 163584
LDS_TOTAL = 163840
L_WO = RES - 102400
L_X = 2 * SLOT
L_Z = 0
assert QST + 12288 <= RES and L_X + 10240 <= L_WO

SWS = 12


def f32hex(x):
    return "0x%08x" % struct.unpack("<I", struct.pack("<f", x))[0]


class Asm:
    def __init__(self):
        self.L = []
        self.uid = 0

    def __call__(self, s):
        self.L.append("    " + s)

    def label(self, s):
        self.L.append(s + ":")

    def raw(self, s):
        self.L.append(s)

    def newlabel(self, p):
        self.uid += 1
        return f"{p}_{self.uid}"

    def text(self):
        return "\n".join(self.L) + "\n"


def vr(a, n=1):
    return f"v{a}" if n == 1 else f"v[{a}:{a + n - 1}]"


def srd(a, d, base, nbytes):
    a(f"s_mov_b32 s{d}, s{base}")
    a(f"s_and_b32 s{d + 1}, s{base + 1}, 0xffff")
    a(f"s_mov_b32 s{d + 2}, 0x{nbytes:x}")
    a(f"s_mov_b32 s{d + 3}, 0x00020000")


def stamp(a, idx):
    if not DIAG:
        return
    a("s_waitcnt lgkmcnt(0)")
    a("s_memtime s[96:97]")
    a("s_memrealtime s[98:99]")
    a("s_waitcnt lgkmcnt(0)")
    a(f"s_mov_b32 s{80 + 2 * idx}, s96")
    a(f"s_mov_b32 s{81 + 2 * idx}, s98")


def stamp_flush(a):
    if not DIAG:
        return
    a("s_mov_b64 exec, 1")
    if DIAG == 2:
        sel = {(37, 0): [(0, 2), (2, 3), (1, 4), (3, 5), (4, 6), (5, 7), (6, 8), (7, 9)], (37, 4): [(1, 10), (3, 11)],
               (37, 8): [(3, 12), (4, 13)], (200, 4): [(2, 14), (3, 15)]}
        srd(a, 16, 78, 256)
        a("v_mov_b32 v2, 0")
        a("s_lshl_b32 s96, s2, 4")
        a("s_add_u32 s96, s96, s26")
        for (wg, wv), lst in sel.items():
            lb = a.newlabel("DG")
            a(f"s_cmp_lg_u32 s96, {wg * 16 + wv}")
            a(f"s_cbranch_scc1 {lb}")
            for st, word in lst:
                a(f"v_mov_b32 v3, s{81 + 2 * st}")
                a(f"buffer_store_dword v3, v2, s[16:19], 0 offen offset:{4 * word}")
                a("s_nop 1")
            a.label(lb)
        return
    a("s_lshl_b32 s96, s2, 4")
    a("s_add_u32 s96, s96, s26")
    a("s_lshl_b32 s96, s96, 6")
    a(f"s_add_u32 s96, s96, 0x{WS_DIAG:x}")
    a("v_mov_b32 v2, 0")
    for i in range(16):
        a(f"v_mov_b32 v3, s{80 + i}")
        a(f"buffer_store_dword v3, v2, s[{SWS}:{SWS + 3}], s96 offen offset:{4 * i}")
        a("s_nop 1")


def poll(a, vaddrs, vtmp, scnt, preloaded=False):
    lp, done, chk = a.newlabel("POLL"), a.newlabel("POLLD"), a.newlabel("POLLC")
    a(f"s_mov_b32 s{scnt}, 0")
    if len(vaddrs) == 1 and os.environ.get('POLL2', '0') == '1':
        va = vaddrs[0]
        ld = lambda k: f"buffer_load_dwordx2 {vr(vtmp + 2 * k, 2)}, v{va}, s[{SWS}:{SWS + 3}], 0 offen sc0 sc1"
        if not preloaded:
            a(ld(0))
        a.label(lp)
        for k in range(2):
            a(ld(1 - k))
            a("s_waitcnt vmcnt(1)")
            a(f"v_cmp_ne_u64 vcc, s[56:57], {vr(vtmp + 2 * k, 2)}")
            a(f"s_add_u32 s{scnt}, s{scnt}, 1")
            a("s_cmp_eq_u64 vcc, 0")
            a(f"s_cbranch_scc1 {done}")
        a(f"s_cmp_le_u32 s{scnt}, {POLL_LIMIT}")
        a(f"s_cbranch_scc1 {lp}")
        a.label(done)
        return
    if preloaded:
        a(f"s_branch {chk}")
    a.label(lp)
    for k, va in enumerate(vaddrs):
        a(f"buffer_load_dwordx2 {vr(vtmp + 2 * k, 2)}, v{va}, s[{SWS}:{SWS + 3}], 0 offen sc0 sc1")
    a.label(chk)
    a("s_waitcnt vmcnt(0)")
    a(f"v_cmp_ne_u64 vcc, s[56:57], {vr(vtmp, 2)}")
    for k in range(1, len(vaddrs)):
        a(f"v_cmp_ne_u64 s[58:59], s[56:57], {vr(vtmp + 2 * k, 2)}")
        a("s_or_b64 vcc, vcc, s[58:59]")
    a(f"s_add_u32 s{scnt}, s{scnt}, 1")
    a(f"s_cmp_gt_u32 s{scnt}, {POLL_LIMIT}")
    a(f"s_cbranch_scc1 {done}")
    a("s_cmp_lg_u64 vcc, 0")
    a(f"s_cbranch_scc1 {lp}")
    a.label(done)


def lds_wait(a, vaddr, vt, target, s0, s1):
    lp, done = a.newlabel("LW"), a.newlabel("LWD")
    a(f"s_mov_b32 s{s0}, 0")
    a.label(lp)
    a(f"ds_read_b32 v{vt}, v{vaddr}")
    a("s_waitcnt lgkmcnt(0)")
    a(f"v_readfirstlane_b32 s{s1}, v{vt}")
    a(f"s_add_u32 s{s0}, s{s0}, 1")
    a(f"s_cmp_gt_u32 s{s0}, {POLL_LIMIT * 8}")
    a(f"s_cbranch_scc1 {done}")
    a(f"s_cmp_lt_u32 s{s1}, {target}")
    a(f"s_cbranch_scc1 {lp}")
    a.label(done)


def shared_poll(a, poller, vaddrs, vtmp, ldsoff, vl, preloaded=False):
    oth, done = a.newlabel("SP"), a.newlabel("SPD")
    a(f"v_mov_b32 v{vl}, {RES + ldsoff}")
    a(f"s_cmp_lg_u32 s26, {poller}")
    a(f"s_cbranch_scc1 {oth}")
    poll(a, vaddrs, vtmp, 10, preloaded)
    a(f"v_mov_b32 v{vl + 1}, 1")
    a(f"ds_write_b32 v{vl}, v{vl + 1}")
    a(f"s_branch {done}")
    a.label(oth)
    lds_wait(a, vl, vl + 1, 1, 10, 11)
    a.label(done)


def get_nonce(a, vt):
    lp, done = a.newlabel("NON"), a.newlabel("NOND")
    a("s_cmp_eq_u32 s2, 0")
    a(f"s_cbranch_scc1 {done}")
    srd(a, 16, 78, 256)
    a(f"v_mov_b32 v{vt}, 0")
    a("s_mov_b32 s20, 0")
    a.label(lp)
    a(f"buffer_load_dwordx2 {vr(vt + 2, 2)}, v{vt}, s[16:19], 0 offen sc0 sc1")
    a("s_waitcnt vmcnt(0)")
    a(f"v_readfirstlane_b32 s56, v{vt + 2}")
    a(f"v_readfirstlane_b32 s57, v{vt + 3}")
    a("s_add_u32 s20, s20, 1")
    a(f"s_cmp_gt_u32 s20, {POLL_LIMIT}")
    a(f"s_cbranch_scc1 {done}")
    a("s_not_b32 s21, s56")
    a("s_cmp_lg_u32 s21, s57")
    a(f"s_cbranch_scc1 {lp}")
    a.label(done)
    a(f"v_mov_b32 v{vt}, {RES}")
    a(f"v_mov_b32 v{vt + 2}, s56")
    a(f"v_mov_b32 v{vt + 3}, s57")
    a(f"ds_write_b64 v{vt}, {vr(vt + 2, 2)}")
    a("s_waitcnt lgkmcnt(0)")


def nonce_check_or_poll(a, vt, sdbg):
    lp, chk, done = a.newlabel("NON"), a.newlabel("NONC"), a.newlabel("NOND")
    a("s_mov_b32 s58, 0")
    a(f"s_branch {chk}")
    a.label(lp)
    a(f"buffer_load_dwordx2 {vr(vt + 2, 2)}, v{vt}, s[{sdbg}:{sdbg + 3}], 0 offen sc0 sc1")
    a("s_waitcnt vmcnt(0)")
    a.label(chk)
    a(f"v_readfirstlane_b32 s56, v{vt + 2}")
    a(f"v_readfirstlane_b32 s57, v{vt + 3}")
    a("s_add_u32 s58, s58, 1")
    a(f"s_cmp_gt_u32 s58, {POLL_LIMIT}")
    a(f"s_cbranch_scc1 {done}")
    a("s_not_b32 s59, s56")
    a("s_cmp_lg_u32 s59, s57")
    a(f"s_cbranch_scc1 {lp}")
    a.label(done)


def nonce_to_lds(a, vt):
    a(f"v_mov_b32 v{vt}, {RES}")
    a(f"v_mov_b32 v{vt + 2}, s56")
    a(f"v_mov_b32 v{vt + 3}, s57")
    a(f"ds_write_b64 v{vt}, {vr(vt + 2, 2)}")
    a("s_waitcnt lgkmcnt(0)")


def read_nonce(a, vt):
    a(f"v_mov_b32 v{vt}, {RES}")
    a(f"ds_read_b64 {vr(vt + 2, 2)}, v{vt}")
    a("s_waitcnt lgkmcnt(0)")
    a(f"v_readfirstlane_b32 s56, v{vt + 2}")
    a(f"v_readfirstlane_b32 s57, v{vt + 3}")


def write_flag(a, base, sslot, vt):
    a(f"s_lshl_b32 s58, s{sslot}, 6")
    a(f"s_add_u32 s58, s58, 0x{base:x}")
    a(f"v_mov_b32 v{vt}, s58")
    a(f"v_mov_b32 v{vt + 2}, s56")
    a(f"v_mov_b32 v{vt + 3}, s57")
    a("s_mov_b64 exec, 1")
    a(f"buffer_store_dwordx2 {vr(vt + 2, 2)}, v{vt}, s[{SWS}:{SWS + 3}], 0 offen sc0 sc1")
    a("s_mov_b64 exec, -1")


SH = 20
HREG = 124


def pack4(l):
    v = 0
    for i, x in enumerate(l):
        v |= x << (4 * i)
    return v


def job_params(a, swave):
    ty = [pack4([1, 1, 1, 2, 0, 0, 0, 2]), pack4([1, 1, 2, 2, 0, 0, 2, 0])]
    ch = [pack4([0, 1, 2, 0, 0, 0, 0, 1]), pack4([3, 4, 2, 4, 0, 0, 3, 0])]
    nb = [pack4([0, 1, 2, 3, 0, 0, 0, 3]), pack4([0, 1, 2, 2, 0, 0, 2, 0])]
    ns = [pack4([0, 0, 0, 0, 0, 0, 0, 1]), pack4([0, 0, 0, 2, 0, 0, 1, 0])]
    a(f"s_lshl_b32 s17, s{swave}, 2")
    a("s_or_b32 s17, s17, 0x40000")
    a("s_and_b32 s18, s2, 1")

    def sel(dst, t):
        a(f"s_mov_b32 s{dst}, 0x{t[0]:x}")
        a("s_cmp_eq_u32 s18, 0")
        a(f"s_cselect_b32 s{dst}, s{dst}, 0x{t[1]:x}")
        a(f"s_bfe_u32 s{dst}, s{dst}, s17")
    sel(51, ty)
    sel(50, ch)
    sel(16, nb)
    sel(19, ns)
    a("s_lshr_b32 s18, s2, 1")
    a("s_mul_i32 s18, s18, 5")
    a("s_add_u32 s50, s50, s18")
    a(f"s_mul_i32 s16, s16, {CJ_BIG}")
    a(f"s_mul_i32 s19, s19, {CJ_SMALL}")
    a("s_add_u32 s16, s16, s19")
    a(f"s_add_u32 s16, s16, {CONVB}")


def h_load(a):
    srd(a, SH, 70, XBYTES)
    a("s_lshl_b32 s17, s50, 12")
    if os.environ.get("NOH", "0") == "1":
        a(f"s_mov_b32 s17, 0x{OOB:x}")
    a(f"v_lshlrev_b32 v{HREG + 24}, 4, v1")
    for i in range(4):
        a(f"buffer_load_dwordx4 {vr(HREG + 4 * i, 4)}, v{HREG + 24}, s[{SH}:{SH + 3}], s17 offen offset:{1024 * i}{NT_H}")
    for i in range(4):
        a(f"buffer_load_dwordx2 {vr(HREG + 16 + 2 * i, 2)}, v{HREG + 24}, s[{SH}:{SH + 3}], s17 offen offset:{1024 * i + 16}{NT_H}")


def u_dma(a, uo):
    end = a.newlabel("UD")
    a("s_lshl_b32 s17, s50, 6")
    a(f"s_add_u32 s17, s17, 0x{WS_U:x}")
    a("s_cmp_eq_u32 s51, 2")
    a(f"s_cselect_b32 s18, {32 * 40960}, 0")
    a("s_cselect_b32 s19, 0, -1")
    a("s_add_u32 s17, s17, s18")
    for i in range(5):
        a(f"s_add_u32 m0, s16, {1024 * i}")
        if i == 2:
            a("s_mov_b32 exec_hi, s19")
        else:
            a("s_nop 0")
        a(f"buffer_load_dwordx4 v{uo + i}, s[{SWS}:{SWS + 3}], s17 offen sc1 lds")
        if i == 2:
            a("s_mov_b32 exec_hi, -1")
            a("s_cmp_eq_u32 s51, 2")
            a(f"s_cbranch_scc1 {end}")
    a.label(end)


def conv_build(a):
    T1, T2, T3, T4 = 64, 68, 72, 76
    VW = 20

    def build(d, n, off):
        dd = [d, d + 1, d + 2, d + 3, n, n + 1]
        for i in range(4):
            a(f"v_alignbit_b32 v{T1 + i}, v{dd[i + 1]}, v{dd[i]}, 16")
            a(f"v_mov_b32 v{T2 + i}, v{dd[i + 1]}")
            a(f"v_alignbit_b32 v{T3 + i}, v{dd[i + 2]}, v{dd[i + 1]}, 16")
            a(f"v_mov_b32 v{T4 + i}, v{dd[i + 2]}")
        a(f"ds_write_b128 v{VW}, {vr(T1, 4)} offset:{off}")
        a(f"ds_write_b128 v{VW + 1}, {vr(T2, 4)} offset:{off}")
        a(f"ds_write_b128 v{VW + 2}, {vr(T3, 4)} offset:{off}")
        a(f"ds_write_b128 v{VW + 3}, {vr(T4, 4)} offset:{off}")

    a("s_lshr_b32 s17, s50, 1")
    a("s_lshl_b32 s17, s17, 2")
    a("s_load_dword s54, s[72:73], s17")
    a("s_cmp_eq_u32 s51, 1")
    a("s_movk_i32 s17, 2560")
    a("s_cselect_b32 s17, 5120, s17")
    a("s_movk_i32 s53, 2112")
    a("s_cselect_b32 s53, 4160, s53")
    a("s_add_u32 s17, s17, s16")
    a("s_add_u32 s52, s17, 2480")
    a("v_and_b32 v2, 31, v1")
    a("v_lshrrev_b32 v3, 5, v1")
    a("v_lshlrev_b32 v9, 4, v1")
    a("v_add_u32 v10, s17, v9")
    a(f"v_add_u32 v{VW}, s52, v9")
    for r in range(1, 4):
        a(f"v_add_u32 v{VW + r}, s53, v{VW + r - 1}")
    for r in range(4):
        a(f"v_mov_b32 v{12 + r}, 0")
    a("ds_write_b128 v10, v[12:15]")
    a("ds_write_b128 v10, v[12:15] offset:1024")
    a("s_mov_b32 exec_hi, 0")
    a("s_mov_b32 exec_lo, 0x7ffffff")
    a("ds_write_b128 v10, v[12:15] offset:2048")
    a("s_mov_b64 exec, -1")
    a(f"v_readfirstlane_b32 s17, v{HREG}")
    a(f"v_readfirstlane_b32 s18, v{HREG + 1}")
    a("v_cmp_eq_u32 vcc, 3, v1")
    a("v_mov_b32 v16, s17")
    a("v_mov_b32 v17, s18")
    a("v_cndmask_b32 v16, 0, v16, vcc")
    a("v_cndmask_b32 v17, 0, v17, vcc")
    a("s_mov_b64 exec, 15")
    build(12, 16, 0)
    a("s_mov_b64 exec, -1")
    sk = a.newlabel("CVB")
    for i in range(4):
        if i == 2:
            a("s_cmp_eq_u32 s51, 2")
            a(f"s_cbranch_scc1 {sk}")
        build(HREG + 4 * i, HREG + 16 + 2 * i, 64 + 1024 * i)
    a.label(sk)


def conv_run(a):
    VA, VBB, VU = 4, 5, 6
    Y = 32
    FR = [96, 104, 112, 48]
    a("v_and_b32 v11, 3, v2")
    a("v_mul_lo_u32 v11, v11, s53")
    a("v_lshrrev_b32 v10, 2, v2")
    a("v_lshl_add_u32 v10, v10, 3, v11")
    a("v_lshl_add_u32 v10, v3, 4, v10")
    a(f"v_add_u32 v{VA}, s52, v10")
    a("s_cmp_eq_u32 s51, 1")
    a("s_cselect_b32 s53, 8, 4")
    a("v_sub_u32 v10, 31, v2")
    a("v_mul_u32_u24 v10, 80, v10")
    a("v_add_u32 v10, s16, v10")
    a(f"v_lshl_add_u32 v{VBB}, v3, 4, v10")
    a("v_lshlrev_b32 v11, 3, v3")
    a("v_sub_u32 v10, v10, v11")
    a(f"v_add_u32 v{VU}, 8, v10")
    for r in range(16):
        a(f"v_mov_b32 v{Y + r}, 0")
    a("s_lshl_b32 s17, s26, 2")
    a(f"s_add_u32 s17, s17, {RES + 32}")
    a("v_mov_b32 v10, s17")
    lds_wait(a, 10, 11, 1, 17, 18)
    stamp(a, 1)

    def rd(s):
        st = s % 4
        bo = (s // 2) * 80 + (s % 2) * 32
        return [f"ds_read_b64 {vr(FR[st], 2)}, v{VA} offset:{s * 32}",
                f"ds_read_b64 {vr(FR[st] + 2, 2)}, v{VA} offset:{s * 32 + 8}",
                f"ds_read_b128 {vr(FR[st] + 4, 4)}, v{VBB} offset:{bo}"]
    for s in range(3):
        for r in rd(s):
            a(r)
    a.label("CV_SEG")
    for s in range(16):
        for r in rd(s + 3):
            a(r)
        a("s_waitcnt lgkmcnt(9)")
        st = s % 4
        a(f"v_mfma_f32_32x32x16_bf16 {vr(Y, 16)}, {vr(FR[st], 4)}, {vr(FR[st] + 4, 4)}, {vr(Y, 16)}")
    a(f"v_add_u32 v{VBB}, 640, v{VBB}")
    a(f"v_add_u32 v{VA}, 512, v{VA}")
    a("s_sub_u32 s53, s53, 1")
    a("s_cmp_lg_u32 s53, 0")
    a("s_cbranch_scc1 CV_SEG")
    for q in range(4):
        a(f"ds_read_b64 {vr(64 + 2 * q, 2)}, v{VU} offset:{48 - 16 * q}")
    a("s_and_b32 s17, s50, 1")
    a("s_lshl_b32 s18, s54, 16")
    a("s_and_b32 s54, s54, 0xffff0000")
    a("s_cmp_eq_u32 s17, 0")
    a("s_cselect_b32 s54, s18, s54")
    a("v_lshlrev_b32 v11, 6, v2")
    a("v_lshl_add_u32 v11, v3, 3, v11")
    a("v_add_u32 v11, s52, v11")
    a("v_add_u32 v10, s52, v9")
    a("s_lshl_b32 s17, s50, 12")
    a("s_and_b32 s18, s51, 1")
    a("s_lshl_b32 s18, s18, 11")
    a("s_add_u32 s17, s17, s18")
    a(f"s_add_u32 s17, s17, 0x{WS_Z:x}")
    a("s_mov_b32 s18, 0xffff0000")
    a("s_waitcnt lgkmcnt(0)")
    a("s_nop 4")
    for q in range(4):
        u = 64 + 2 * q
        a(f"v_and_b32 v16, s18, v{u + 1}")
        a(f"v_lshlrev_b32 v17, 16, v{u + 1}")
        a(f"v_and_b32 v18, s18, v{u}")
        a(f"v_lshlrev_b32 v19, 16, v{u}")
        for r in range(4):
            a(f"v_fmac_f32 v{Y + 4 * q + r}, s54, v{16 + r}")
        d = 72 + 2 * q
        a(f"v_cvt_pk_bf16_f32 v{d}, v{Y + 4 * q}, v{Y + 4 * q + 1}")
        a(f"v_cvt_pk_bf16_f32 v{d + 1}, v{Y + 4 * q + 2}, v{Y + 4 * q + 3}")
        a(f"ds_write_b64 v11, {vr(d, 2)} offset:{16 * q}")
    a("ds_read_b128 v[64:67], v10")
    a("ds_read_b128 v[68:71], v10 offset:1024")
    a("s_waitcnt lgkmcnt(1)")
    a(f"buffer_store_dwordx4 v[64:67], v9, s[{SWS}:{SWS + 3}], s17 offen sc1")
    a("s_waitcnt lgkmcnt(0)")
    a(f"buffer_store_dwordx4 v[68:71], v9, s[{SWS}:{SWS + 3}], s17 offen offset:1024 sc1")


def gen(a):
    a.raw(f".globl {KNAME}")
    a.raw(".p2align 8")
    a.raw(f".type {KNAME},@function")
    a.label(KNAME)
    a("s_cmp_ge_u32 s2, 256")
    a("s_cbranch_scc1 L_END")
    a("s_load_dwordx4 s[4:7], s[0:1], 0")
    a("s_load_dwordx2 s[8:9], s[0:1], 96")
    a("s_load_dwordx2 s[60:61], s[0:1], 16")
    a("s_load_dwordx8 s[64:71], s[0:1], 32")
    a("s_load_dwordx4 s[72:75], s[0:1], 64")
    a("s_load_dwordx4 s[76:79], s[0:1], 80")
    a("v_and_b32 v1, 63, v0")
    a("v_lshrrev_b32 v2, 6, v0")
    a("s_nop 0")
    a("v_readfirstlane_b32 s26, v2")
    a("s_mov_b32 s56, 0")
    a("s_mov_b32 s57, 0")
    if DIAG:
        for i in range(16):
            a(f"s_mov_b32 s{80 + i}, 0")
    a("s_waitcnt lgkmcnt(0)")
    srd(a, SWS, 8, WS_SIZE)
    stamp(a, 0)
    a("s_cmp_lg_u32 s2, 0")
    a("s_cbranch_scc1 L_NOPUB")
    a("s_cmp_lg_u32 s26, 8")
    a("s_cbranch_scc1 L_NOPUB")
    a("s_memrealtime s[56:57]")
    srd(a, 16, 78, 256)
    a("s_waitcnt lgkmcnt(0)")
    a("s_or_b32 s56, s56, 1")
    a("s_not_b32 s57, s56")
    a("v_mov_b32 v2, 0")
    a("v_mov_b32 v4, s56")
    a("v_mov_b32 v5, s57")
    a("s_mov_b64 exec, 1")
    a("buffer_store_dwordx2 v[4:5], v2, s[16:19], 0 offen sc0 sc1")
    a("s_mov_b64 exec, -1")
    a.label("L_NOPUB")
    a("v_lshlrev_b32 v2, 2, v1")
    a(f"v_add_u32 v2, {RES + 8}, v2")
    a("v_mov_b32 v4, 0")
    a("s_mov_b32 exec_hi, 0")
    a("ds_write_b32 v2, v4")
    a("s_mov_b64 exec, -1")
    a("s_cmp_ge_u32 s2, 192")
    a("s_cbranch_scc1 P1_E")
    a("s_and_b32 s3, s2, 7")
    a("s_lshr_b32 s10, s2, 3")
    a("s_and_b32 s24, s3, 3")
    a("s_lshl_b32 s24, s24, 2")
    a("s_and_b32 s11, s10, 3")
    a("s_add_u32 s24, s24, s11")
    a("s_lshr_b32 s25, s3, 2")
    a("s_mul_i32 s25, s25, 6")
    a("s_lshr_b32 s10, s10, 2")
    a("s_add_u32 s25, s25, s10")
    a("s_lshl_b32 s27, s24, 7")
    a("s_lshr_b32 s28, s25, 2")
    a("s_and_b32 s29, s25, 3")
    a("s_lshl_b32 s29, s29, 3")
    a("s_lshl_b32 s55, s25, 4")
    a("s_add_u32 s55, s55, s24")
    a("s_cmp_lt_u32 s26, 8")
    a("s_cbranch_scc1 P1_COMP")
    SX, SW = 16, 20
    srd(a, SX, 4, XBYTES)
    srd(a, SW, 6, WQKV_BYTES)
    ra, rb = [int(x) for x in os.environ.get("ROT", "3,2").split(",")]
    if os.environ.get("LPRIO", "0") != "0":
        a("s_setprio " + os.environ["LPRIO"])
    a(f"s_mul_i32 s34, s11, {ra}")
    a(f"s_mul_i32 s10, s10, {rb}")
    a("s_add_u32 s34, s34, s10")
    for _ in range((3 * ra + 5 * rb) // 10):
        a("s_cmp_ge_u32 s34, 10")
        a("s_cselect_b32 s10, 10, 0")
        a("s_sub_u32 s34, s34, s10")
    a("s_sub_u32 s35, s26, 8")
    VXO, VWO = 4, 8
    a("v_lshrrev_b32 v2, 3, v1")
    a("v_and_b32 v3, 7, v1")
    a("v_lshrrev_b32 v13, 4, v1")
    a("s_lshl_b32 s10, s35, 5")
    a("s_add_u32 s10, s10, s27")
    a("v_add_u32 v2, s10, v2")
    a("s_movk_i32 s11, 1280")
    a("v_mul_lo_u32 v2, v2, s11")
    a("v_xor_b32 v14, v3, v13")
    a("v_xor_b32 v15, 4, v14")
    a("v_lshlrev_b32 v14, 4, v14")
    a("v_lshlrev_b32 v15, 4, v15")
    for i in range(4):
        a(f"v_add_u32 v{VXO + i}, {i * 8 * 1280 - 1024 * i}, v2")
        a(f"v_add_u32 v{VXO + i}, v{VXO + i}, v{14 + (i & 1)}")
    a("s_mul_i32 s10, s25, 320")
    a("s_mul_i32 s11, s35, 61440")
    a("s_add_u32 s10, s10, s11")
    a("s_movk_i32 s11, 3840")
    for i in range(5):
        a(f"v_add_u32 v2, {64 * i}, v1")
        a("v_mul_u32_u24 v3, 0xcccd, v2")
        a("v_lshrrev_b32 v3, 20, v3")
        a("v_mul_u32_u24 v14, 20, v3")
        a("v_sub_u32 v2, v2, v14")
        a("v_lshrrev_b32 v14, 3, v3")
        a("v_and_b32 v14, 1, v14")
        a("v_lshlrev_b32 v14, 1, v14")
        a("v_xor_b32 v2, v2, v14")
        a("v_lshlrev_b32 v2, 4, v2")
        a("v_mul_lo_u32 v3, v3, s11")
        a("v_add3_u32 v2, v2, v3, s10")
        comp = 1024 * i if i < 4 else 0
        if comp:
            a(f"v_subrev_u32 v{VWO + i}, {comp}, v2")
        else:
            a(f"v_mov_b32 v{VWO + i}, v2")
    a("s_lshl_b32 s42, s35, 12")
    a("s_mul_i32 s43, s35, 5120")
    a("s_add_u32 s43, s43, 16384")
    a("s_mov_b32 s32, 0")
    a("s_mov_b32 s33, 0")

    def issue_stage():
        if os.environ.get("NODMA", "0") == "1":
            return
        a("s_lshl_b32 s30, s34, 7")
        a("s_mul_i32 s31, s34, 245760")
        a("s_add_u32 m0, s32, s42")
        a("s_add_u32 s34, s34, 1")
        for i in range(4):
            o = f" offset:{1024 * i}" if i else ""
            a(f"buffer_load_dwordx4 v{VXO + i}, s[{SX}:{SX + 3}], s30 offen{o}{NT_G} lds")
        a("s_add_u32 m0, s32, s43")
        a("s_cmp_ge_u32 s34, 10")
        for i in range(4):
            o = f" offset:{1024 * i}" if i else ""
            a(f"buffer_load_dwordx4 v{VWO + i}, s[{SW}:{SW + 3}], s31 offen{o}{NT_G} lds")
        a("s_cselect_b32 s34, 0, s34")
        a("s_add_u32 m0, m0, 4096")
        a(f"s_add_u32 s32, s32, {G_STAGE}")
        a(f"buffer_load_dwordx4 v{VWO + 4}, s[{SW}:{SW + 3}], s31 offen{NT_G} lds")
        a(f"s_cmp_ge_u32 s32, {4 * G_STAGE}")
        a("s_cselect_b32 s32, 0, s32")

    srd(a, 36, 78, 256)
    a("v_mov_b32 v16, 0")
    a("v_lshlrev_b32 v20, 6, v1")
    a(f"v_add_u32 v20, 0x{WS_F1 + 192 * 64:x}, v20")
    issue_stage()
    issue_stage()
    a("s_waitcnt vmcnt(9) lgkmcnt(0)")
    a("s_barrier")
    stamp(a, 1)
    issue_stage()
    issue_stage()
    a("buffer_load_dwordx2 v[18:19], v16, s[36:39], 0 offen sc0 sc1")
    a("s_mov_b32 s33, 4")
    a.label("P1_LLOOP")
    a("s_waitcnt vmcnt(18)")
    a("s_barrier")
    issue_stage()
    a("s_add_u32 s33, s33, 1")
    a("s_cmp_lt_u32 s33, 10")
    a("s_cbranch_scc1 P1_LLOOP")
    a("s_waitcnt vmcnt(18)")
    a("s_barrier")
    nonce_check_or_poll(a, 16, 36)
    a("s_cmp_lg_u32 s26, 8")
    a("s_cbranch_scc1 P1_LNON")
    nonce_to_lds(a, 16)
    a.label("P1_LNON")
    a("s_mov_b32 s18, 40960")
    for i in range(5):
        a(f"v_add_u32 v24, {64 * i}, v1")
        a("v_mul_u32_u24 v25, 0xcccd, v24")
        a("v_lshrrev_b32 v25, 18, v25")
        a("v_mul_u32_u24 v26, 5, v25")
        a("v_sub_u32 v24, v24, v26")
        a("v_min_u32 v24, 3, v24")
        a("v_mul_lo_u32 v25, v25, s18")
        a(f"v_lshl_add_u32 v{28 + i}, v24, 4, v25")
    a(f"v_mov_b32 v24, {RES + 68}")
    a("v_mov_b32 v25, 1")

    def e_issue():
        lb = a.newlabel("EI")
        a("s_cmp_lg_u32 s26, 9")
        a(f"s_cbranch_scc1 {lb}")
        a(f"buffer_load_dwordx2 v[22:23], v20, s[{SWS}:{SWS + 3}], 0 offen sc0 sc1")
        a.label(lb)

    def e_check():
        lb = a.newlabel("EC")
        a("s_cmp_lg_u32 s26, 9")
        a(f"s_cbranch_scc1 {lb}")
        a("v_cmp_ne_u64 vcc, s[56:57], v[22:23]")
        a("s_cmp_lg_u64 vcc, 0")
        a(f"s_cbranch_scc1 {lb}")
        a("ds_write_b32 v24, v25")
        a("s_waitcnt lgkmcnt(0)")
        a.label(lb)

    a("s_waitcnt vmcnt(9)")
    a("s_barrier")
    a("s_waitcnt vmcnt(0)")
    e_issue()
    a("s_barrier")
    a("s_barrier")
    stamp(a, 2)
    a("s_waitcnt vmcnt(0)")
    e_check()
    e_issue()
    a("s_barrier")
    a("ds_read_b32 v26, v24")
    a("s_sub_u32 s35, s26, 8")
    job_params(a, 35)
    a("s_waitcnt lgkmcnt(0)")
    a("v_readfirstlane_b32 s10, v26")
    a("s_cmp_eq_u32 s10, 0")
    a("s_cbranch_scc1 P1_LATE")
    a("s_mov_b32 s33, 1")
    a("s_branch P1_HU2")
    a.label("P1_LATE")
    a("s_barrier")
    a.label("P1_HU")
    a("s_mov_b32 s33, 0")
    shared_poll(a, 9, [20], 22, 68, 4, preloaded=True)
    a.label("P1_HU2")
    u_dma(a, 28)
    a("s_add_u32 s35, s35, 4")
    job_params(a, 35)
    a("s_cmp_eq_u32 s51, 0")
    a("s_cbranch_scc1 P1_HU1")
    u_dma(a, 28)
    a.label("P1_HU1")
    a("s_cmp_eq_u32 s33, 0")
    a("s_cbranch_scc1 P1_HU3")
    a("s_barrier")
    a.label("P1_HU3")
    a("s_lshl_b32 s17, s35, 2")
    a(f"s_add_u32 s17, s17, {RES + 32 - 16}")
    a("v_mov_b32 v4, s17")
    a("v_mov_b32 v5, 1")
    a("s_waitcnt vmcnt(0)")
    a("ds_write2_b32 v4, v5, v5 offset1:4")
    stamp(a, 3)
    a("s_branch P2_COMMON")

    a.label("P1_COMP")
    VXB0, VXB1, VWE0, VWO0 = 16, 17, 18, 19
    VXC0, VXC1, VWEC, VWOC = 20, 21, 22, 23
    X0, W0, X1, W1, ACC = 28, 36, 56, 64, 84
    a("v_lshrrev_b32 v13, 4, v1")
    a("s_and_b32 s10, s26, 3")
    a("s_lshr_b32 s11, s26, 2")
    a("v_and_b32 v2, 15, v1")
    a("v_lshrrev_b32 v3, 1, v2")
    a("v_xor_b32 v3, v3, v13")
    a("s_lshl_b32 s35, s10, 5")
    a("v_add_u32 v14, s35, v2")
    a("v_lshlrev_b32 v14, 7, v14")
    a(f"v_lshl_add_u32 v{VXB0}, v3, 4, v14")
    a("v_xor_b32 v3, 4, v3")
    a(f"v_lshl_add_u32 v{VXB1}, v3, 4, v14")
    a("v_lshrrev_b32 v3, 2, v2")
    a("v_lshl_add_u32 v3, v13, 3, v3")
    a("v_mul_u32_u24 v3, 320, v3")
    a("v_and_b32 v14, 3, v1")
    a("v_lshl_add_u32 v3, v14, 3, v3")
    a("s_mul_i32 s35, s11, 160")
    a("s_add_u32 s35, s35, 16384")
    a("v_add_u32 v3, s35, v3")
    a("v_and_b32 v14, 1, v13")
    a("v_lshlrev_b32 v14, 5, v14")
    a("v_add_u32 v15, v3, v14")
    a("v_sub_u32 v14, v3, v14")
    a("s_cmp_eq_u32 s11, 0")
    a("s_cselect_b64 vcc, -1, 0")
    a("s_nop 1")
    a(f"v_cndmask_b32 v{VWE0}, v14, v15, vcc")
    a(f"v_cndmask_b32 v{VWO0}, v15, v14, vcc")
    for r in range(40):
        a(f"v_mov_b32 v{ACC + r}, 0")

    def reads(ks, XS, WS_):
        xb = VXC0 if ks == 0 else VXC1
        x = [f"ds_read_b128 {vr(XS + 4 * i, 4)}, v{xb} offset:{i * 2048}" for i in range(2)]
        w = []
        for j in range(5):
            wb = VWEC if j % 2 == 0 else VWOC
            for T in range(2):
                w.append(f"ds_read_b64_tr_b16 {vr(WS_ + 4 * j + 2 * T, 2)}, v{wb} offset:{ks * 10240 + T * 1280 + j * 32}")
        return [x[0], w[0], w[1], x[1]] + w[2:]

    def mfmas(XS, WS_, vtype):
        m = []
        for j in range(5):
            for i in range(2):
                d = ACC + (i * 5 + j) * 4
                if vtype:
                    m.append(f"v_mfma_f32_16x16x32_bf16 {vr(d, 4)}, {vr(XS + 4 * i, 4)}, {vr(WS_ + 4 * j, 4)}, {vr(d, 4)}")
                else:
                    m.append(f"v_mfma_f32_16x16x32_bf16 {vr(d, 4)}, {vr(WS_ + 4 * j, 4)}, {vr(XS + 4 * i, 4)}, {vr(d, 4)}")
        return m

    def set_bases():
        a(f"v_add_u32 v{VXC0}, s33, v{VXB0}")
        a(f"v_add_u32 v{VXC1}, s33, v{VXB1}")
        a(f"v_add_u32 v{VWEC}, s33, v{VWE0}")
        a(f"v_add_u32 v{VWOC}, s33, v{VWO0}")

    RPM = int(os.environ.get("RPM", "0"))

    def group(m, r):
        if os.environ.get("NOCOMP", "0") == "1":
            return
        if RPM == 0:
            a("s_waitcnt lgkmcnt(0)")
            k = 0
            for i, mm in enumerate(m):
                a(mm)
                for _ in range(2 if i < 2 else 1):
                    if k < len(r):
                        a(r[k]); k += 1
            return
        need = {0: 3, 1: 4, 2: 6, 4: 8, 6: 10, 8: 12}
        issued = 0
        for i, mm in enumerate(m):
            if i in need:
                a(f"s_waitcnt lgkmcnt({min(15, 12 - need[i] + issued)})")
            a(mm)
            for _ in range(RPM):
                if issued < 12:
                    a(r[issued]); issued += 1

    a("s_mov_b32 s33, 0")
    a("s_mov_b32 s34, 0")
    set_bases()
    job_params(a, 26)
    a("s_waitcnt lgkmcnt(0)")
    a("s_barrier")
    stamp(a, 1)
    for r in reads(0, X0, W0):
        a(r)
    a("s_cmp_eq_u32 s28, 2")
    a("s_cbranch_scc1 P1_LOOP_V")
    for vtype in (0, 1):
        lbl = "P1_LOOP_V" if vtype else "P1_LOOP_QK"
        a.raw(".p2align 6")
        a.label(lbl)
        group(mfmas(X0, W0, vtype), reads(1, X1, W1))
        a(f"s_add_u32 s33, s33, {G_STAGE}")
        a(f"s_cmp_ge_u32 s33, {4 * G_STAGE}")
        a("s_cselect_b32 s33, 0, s33")
        a("s_waitcnt lgkmcnt(0)")
        a("s_barrier")
        set_bases()
        group(mfmas(X1, W1, vtype), reads(0, X0, W0))
        a("s_add_u32 s34, s34, 1")
        if HPOS == 0:
            a("s_cmp_lg_u32 s34, 5")
            a(f"s_cbranch_scc1 {lbl}_NH")
            h_load(a)
            a.label(f"{lbl}_NH")
        a("s_cmp_lt_u32 s34, 10")
        a(f"s_cbranch_scc1 {lbl}")
        a("s_waitcnt lgkmcnt(0)")
        a("s_barrier")
        stamp(a, 2)
        if HPOS == 1:
            a("s_cmp_eq_u32 s51, 0")
            a(f"s_cbranch_scc1 {lbl}_NH")
            h_load(a)
            a.label(f"{lbl}_NH")

        a("s_mul_i32 s35, s11, 80")
        OFFJ = 28
        if not vtype:
            a("s_lshl_b32 s44, s10, 5")
            a("v_add_u32 v3, s44, v2")
            a("v_mul_u32_u24 v3, 48, v3")
            a("v_lshlrev_b32 v14, 2, v13")
            a("v_add_u32 v14, s35, v14")
            for j in range(5):
                a(f"v_add_u32 v15, {16 * j}, v14")
                a("v_mul_u32_u24 v24, 0xcccd, v15")
                a("v_lshrrev_b32 v24, 20, v24")
                a("v_mul_u32_u24 v25, 20, v24")
                a("v_sub_u32 v25, v15, v25")
                a("v_mul_u32_u24 v24, 6144, v24")
                a("v_lshl_add_u32 v24, v25, 1, v24")
                a(f"v_add_u32 v{OFFJ + j}, v24, v3")
            qs = math.log2(math.e) / math.sqrt(20.0)
            a(f"s_mov_b32 s44, {f32hex(qs)}")
            a("s_cmp_eq_u32 s28, 0")
            a("s_cselect_b32 s44, s44, 1.0")
            for i in range(2):
                for j in range(5):
                    d = ACC + (i * 5 + j) * 4
                    t = 36 + ((i * 5 + j) % 4) * 2
                    for r in range(4):
                        a(f"v_mul_f32 v{d + r}, s44, v{d + r}")
                    a(f"v_cvt_pk_bf16_f32 v{t}, v{d}, v{d + 1}")
                    a(f"v_cvt_pk_bf16_f32 v{t + 1}, v{d + 2}, v{d + 3}")
                    a(f"ds_write_b64 v{OFFJ + j}, {vr(t, 2)} offset:{768 * i}")
            a("s_movk_i32 s45, 6144")
            a("s_mul_i32 s46, s29, 98304")
            a("s_mul_i32 s48, s27, 48")
            a("s_add_u32 s46, s46, s48")
            a(f"s_add_u32 s46, s46, 0x{WS_Q:x}")
            a("s_mul_i32 s48, s29, 196608")
            a("s_lshr_b32 s49, s27, 8")
            a("s_mul_i32 s49, s49, 24576")
            a("s_add_u32 s48, s48, s49")
            a("s_and_b32 s49, s27, 255")
            a("s_mul_i32 s49, s49, 48")
            a("s_add_u32 s48, s48, s49")
            a(f"s_add_u32 s48, s48, 0x{WS_KV:x}")
            a("s_cmp_eq_u32 s28, 0")
            a("s_cselect_b32 s46, s46, s48")
            a("s_mov_b32 s48, 196608")
            a("s_cselect_b32 s47, 98304, s48")
            a("s_branch P1_COPY")
        else:
            a("v_lshrrev_b32 v3, 1, v13")
            a("s_lshl_b32 s44, s10, 2")
            a("v_add_u32 v3, s44, v3")
            a("v_mul_u32_u24 v3, 352, v3")
            a("v_and_b32 v14, 1, v13")
            a("v_lshl_add_u32 v3, v14, 3, v3")
            a("v_add_u32 v14, s35, v2")
            for j in range(5):
                a(f"v_add_u32 v15, {16 * j}, v14")
                a("v_mul_u32_u24 v24, 0xcccd, v15")
                a("v_lshrrev_b32 v24, 20, v24")
                a("v_mul_u32_u24 v25, 20, v24")
                a("v_sub_u32 v25, v15, v25")
                a("v_mul_u32_u24 v24, 5632, v24")
                a("v_lshl_add_u32 v24, v25, 4, v24")
                a(f"v_add_u32 v{OFFJ + j}, v24, v3")
            for i in range(2):
                for j in range(5):
                    d = ACC + (i * 5 + j) * 4
                    t = 36 + ((i * 5 + j) % 4) * 2
                    a(f"v_cvt_pk_bf16_f32 v{t}, v{d}, v{d + 1}")
                    a(f"v_cvt_pk_bf16_f32 v{t + 1}, v{d + 2}, v{d + 3}")
                    a(f"ds_write_b64 v{OFFJ + j}, {vr(t, 2)} offset:{704 * i}")
            a("s_mul_i32 s44, s26, 5632")
            a("v_mul_u32_u24 v14, 352, v1")
            a("v_add_u32 v3, s44, v14")
            for r in range(4):
                a(f"v_mov_b32 v{44 + r}, 0x3f803f80")
                a(f"v_mov_b32 v{48 + r}, 0")
            a("s_mov_b64 exec, 0xffff")
            a("ds_write_b128 v3, v[44:47] offset:320")
            a("ds_write_b128 v3, v[48:51] offset:336")
            a("s_mov_b64 exec, -1")
            a("s_movk_i32 s45, 5632")
            a("s_mul_i32 s46, s29, 196608")
            a("s_lshr_b32 s49, s27, 8")
            a("s_mul_i32 s49, s49, 24576")
            a("s_add_u32 s46, s46, s49")
            a("s_and_b32 s49, s27, 255")
            a("s_mul_i32 s49, s49, 44")
            a("s_add_u32 s46, s46, s49")
            a(f"s_add_u32 s46, s46, 0x{WS_KV + 12288:x}")
            a("s_mov_b32 s47, 196608")
    a.label("P1_COPY")
    a("s_waitcnt lgkmcnt(0)")
    a("s_barrier")
    a("s_cmp_lt_u32 s26, 4")
    a("s_cbranch_scc1 P15_CONV")
    a("v_lshlrev_b32 v2, 4, v1")
    a("s_sub_u32 s10, s26, 4")
    a("s_lshl_b32 s10, s10, 1")
    a("s_mul_i32 s11, s10, s45")
    a("s_mul_i32 s48, s10, s47")
    a("s_add_u32 s46, s46, s48")
    a("v_add_u32 v3, s11, v2")
    a("v_add_u32 v14, s45, v3")
    a("s_add_u32 s48, s46, s47")
    a("s_add_u32 s49, s46, 4096")
    a("s_add_u32 s38, s48, 4096")
    for h in range(2):
        for i in range(6):
            a(f"ds_read_b128 {vr(28 + (h * 6 + i) * 4, 4)}, v{3 if h == 0 else 14} offset:{1024 * i}")
    a("v_add_u32 v15, 5120, v2")
    a("v_cmp_gt_u32 vcc, s45, v15")
    for h in range(2):
        for i in range(5):
            a(f"s_waitcnt lgkmcnt({11 - (h * 6 + i)})")
            so = (46 if h == 0 else 48) if i < 4 else (49 if h == 0 else 38)
            a(f"buffer_store_dwordx4 {vr(28 + (h * 6 + i) * 4, 4)}, v2, s[{SWS}:{SWS + 3}], s{so} offen offset:{1024 * (i % 4)} sc1")
    a("s_waitcnt lgkmcnt(0)")
    a("s_and_saveexec_b64 s[36:37], vcc")
    a(f"buffer_store_dwordx4 {vr(28 + 5 * 4, 4)}, v2, s[{SWS}:{SWS + 3}], s49 offen offset:1024 sc1")
    a(f"buffer_store_dwordx4 {vr(28 + 11 * 4, 4)}, v2, s[{SWS}:{SWS + 3}], s38 offen offset:1024 sc1")
    a("s_mov_b64 exec, s[36:37]")
    a("s_branch P1_SIGNAL")

    a.label("P1_E")
    SK, SV, SSH = 16, 20, 44
    a("s_sub_u32 s24, s2, 192")
    a("s_mov_b32 s55, s2")
    a("s_cmp_ge_u32 s26, 10")
    a("s_cbranch_scc1 P1_E_B1")
    srd(a, SK, 64, XBYTES)
    srd(a, SV, 66, XBYTES)
    srd(a, SSH, 68, 640 * 8)
    a("s_lshl_b32 s25, s24, 5")
    a("s_movk_i32 s27, 5120")
    a("s_movk_i32 s28, 1280")
    KR, VR_, WB, T = 16, 38, 56, 64
    a("v_mul_u32_u24 v3, 0xcccd, v0")
    a("v_lshrrev_b32 v3, 23, v3")
    a("v_mul_u32_u24 v4, 160, v3")
    a("v_sub_u32 v4, v0, v4")
    a("v_lshlrev_b32 v5, 3, v3")
    a("v_add_u32 v5, s25, v5")
    a("v_mul_lo_u32 v6, v5, s28")
    a("v_lshl_add_u32 v6, v4, 3, v6")
    a("v_subrev_u32 v7, 3840, v6")
    a("v_cmp_eq_u32 vcc, 0, v5")
    a(f"v_mov_b32 v8, 0x{OOB:x}")
    a("v_lshlrev_b32 v9, 5, v4")
    a("v_cndmask_b32 v7, v7, v8, vcc")
    a("v_mul_u32_u24 v10, 320, v4")
    a("v_sub_u32 v11, 3, v3")
    a("v_lshl_add_u32 v54, v11, 4, v10")
    if os.environ.get("NOE", "0") == "1":
        a("v_mov_b32 v6, v8")
        a("v_mov_b32 v7, v8")
    for r in range(3):
        a(f"buffer_load_dwordx2 {vr(KR + 2 * r, 2)}, v7, s[{SK}:{SK + 3}], 0 offen offset:{1280 * r}{NT_E}")
    for r in range(8):
        so = "0" if r < 4 else "s27"
        a(f"buffer_load_dwordx2 {vr(KR + 6 + 2 * r, 2)}, v6, s[{SK}:{SK + 3}], {so} offen offset:{1280 * (r % 4)}{NT_E}")
    for r in range(8):
        so = "0" if r < 4 else "s27"
        a(f"buffer_load_dwordx2 {vr(VR_ + 2 * r, 2)}, v6, s[{SV}:{SV + 3}], {so} offen offset:{1280 * (r % 4)}{NT_E}")
    a(f"buffer_load_dwordx4 {vr(WB, 4)}, v9, s[{SSH}:{SSH + 3}], 0 offen")
    a(f"buffer_load_dwordx4 {vr(WB + 4, 4)}, v9, s[{SSH}:{SSH + 3}], 0 offen offset:16")
    stamp(a, 1)
    a("s_mov_b32 s29, 0xffff0000")
    a("s_waitcnt vmcnt(0)")
    a("s_cmp_ge_u32 s26, 8")
    a("s_cbranch_scc1 P1_E_NOH")
    job_params(a, 26)
    a("s_cmp_eq_u32 s51, 0")
    a("s_cbranch_scc1 P1_E_NOH")
    h_load(a)
    a.label("P1_E_NOH")
    for ch in range(4):
        KF, WF, UO = T, T + 11, 4
        dw, hi = ch // 2, ch % 2
        for r in range(11):
            if hi == 0:
                a(f"v_lshlrev_b32 v{KF + r}, 16, v{KR + 2 * r + dw}")
            else:
                a(f"v_and_b32 v{KF + r}, s29, v{KR + 2 * r + dw}")
        w = WB + 2 * ch
        a(f"v_lshlrev_b32 v{WF}, 16, v{w}")
        a(f"v_and_b32 v{WF + 1}, s29, v{w}")
        a(f"v_lshlrev_b32 v{WF + 2}, 16, v{w + 1}")
        a(f"v_and_b32 v{WF + 3}, s29, v{w + 1}")
        for r in range(8):
            a(f"v_mul_f32 v{UO + r}, v{WF + 3}, v{KF + r}")
            a(f"v_fmac_f32 v{UO + r}, v{WF + 2}, v{KF + r + 1}")
            a(f"v_fmac_f32 v{UO + r}, v{WF + 1}, v{KF + r + 2}")
            a(f"v_fmac_f32 v{UO + r}, v{WF}, v{KF + r + 3}")
            if hi == 0:
                a(f"v_lshlrev_b32 v{T + 15}, 16, v{VR_ + 2 * r + dw}")
            else:
                a(f"v_and_b32 v{T + 15}, s29, v{VR_ + 2 * r + dw}")
            a(f"v_mul_f32 v{UO + r}, v{UO + r}, v{T + 15}")
        for d in range(4):
            a(f"v_cvt_pk_bf16_f32 v{12 + d}, v{UO + 7 - 2 * d}, v{UO + 6 - 2 * d}")
        a(f"ds_write_b128 v54, v[12:15] offset:{80 * ch}")
        a("s_nop 0")
    a("s_waitcnt lgkmcnt(0)")
    a.label("P1_E_B1")
    a("s_cmp_lt_u32 s26, 8")
    a("s_cbranch_scc1 P1_E_NON")
    srd(a, 36, 78, 256)
    a("v_mov_b32 v16, 0")
    a("v_mov_b32 v18, 0")
    a("v_mov_b32 v19, 0")
    nonce_check_or_poll(a, 16, 36)
    nonce_to_lds(a, 16)
    a.label("P1_E_NON")
    a("s_barrier")
    stamp(a, 2)
    a("s_cmp_lt_u32 s26, 4")
    a("s_cbranch_scc1 P15_CONV")
    a("s_cmp_lt_u32 s26, 8")
    a("s_cbranch_scc1 P1_E_COPY")
    a("v_lshlrev_b32 v20, 6, v1")
    a(f"v_add_u32 v20, 0x{WS_F1 + 192 * 64:x}, v20")
    a("v_mov_b32 v22, 0")
    a("v_mov_b32 v23, 0")
    a("s_mov_b32 s18, 40960")
    for i in range(5):
        a(f"v_add_u32 v24, {64 * i}, v1")
        a("v_mul_u32_u24 v25, 0xcccd, v24")
        a("v_lshrrev_b32 v25, 18, v25")
        a("v_mul_u32_u24 v26, 5, v25")
        a("v_sub_u32 v24, v24, v26")
        a("v_min_u32 v24, 3, v24")
        a("v_mul_lo_u32 v25, v25, s18")
        a(f"v_lshl_add_u32 v{28 + i}, v24, 4, v25")
    a("s_sub_u32 s35, s26, 8")
    job_params(a, 35)
    a("s_branch P1_HU")
    a.label("P1_E_COPY")
    a("v_lshrrev_b32 v2, 2, v1")
    a("v_mul_u32_u24 v2, 80, v2")
    a("v_and_b32 v3, 3, v1")
    a("v_lshl_add_u32 v2, v3, 4, v2")
    a("s_sub_u32 s11, s26, 4")
    a("s_mul_i32 s10, s11, 12800")
    a("v_add_u32 v2, s10, v2")
    a("v_lshlrev_b32 v3, 4, v1")
    a("s_sub_u32 s10, 63, s24")
    a("s_mul_i32 s10, s10, 40960")
    a("s_mul_i32 s11, s11, 10240")
    a("s_add_u32 s10, s10, s11")
    a(f"s_add_u32 s10, s10, 0x{WS_U:x}")
    a("s_add_u32 s11, s10, 4096")
    a("s_add_u32 s29, s10, 8192")
    for i in range(10):
        a(f"ds_read_b128 {vr(16 + 4 * i, 4)}, v2 offset:{1280 * i}")
    for i in range(10):
        a(f"s_waitcnt lgkmcnt({9 - i})")
        so = [10, 11, 29][i // 4]
        a(f"buffer_store_dwordx4 {vr(16 + 4 * i, 4)}, v3, s[{SWS}:{SWS + 3}], s{so} offen offset:{1024 * (i % 4)} sc1")
    a.label("P1_SIGNAL")
    read_nonce(a, 4)
    a(f"v_mov_b32 v4, {RES + 16}")
    a("v_mov_b32 v5, 1")
    a("s_waitcnt vmcnt(0)")
    a("s_mov_b64 exec, 1")
    a("ds_add_rtn_u32 v6, v4, v5")
    a("s_waitcnt lgkmcnt(0)")
    a("v_readfirstlane_b32 s10, v6")
    a("s_mov_b64 exec, -1")
    a("s_cmp_lg_u32 s10, 3")
    a("s_cbranch_scc1 P1_NOSIG")
    write_flag(a, WS_F1, 55, 4)
    a.label("P1_NOSIG")
    stamp(a, 3)
    a("s_cmp_eq_u32 s51, 0")
    a("s_cbranch_scc1 P2_COMMON")

    a.label("P15_CONV")
    a("s_waitcnt vmcnt(0)")
    conv_build(a)
    conv_run(a)
    read_nonce(a, 16)
    stamp(a, 3)

    a.label("P2_COMMON")
    a("v_and_b32 v2, 31, v1")
    a("v_lshrrev_b32 v3, 5, v1")
    a("s_and_b32 s24, s2, 7")
    a("s_lshl_b32 s24, s24, 2")
    a("s_lshr_b32 s10, s2, 3")
    a("s_and_b32 s10, s10, 3")
    a("s_add_u32 s24, s24, s10")
    a("s_lshr_b32 s25, s2, 5")
    a("s_mul_i32 s27, s24, 196608")
    a(f"s_add_u32 s27, s27, 0x{WS_KV:x}")
    a("s_cmp_ge_u32 s26, 8")
    a("s_cbranch_scc1 P2_HELP")

    VK, VKH, VV = 5, 6, 7
    QLO, QHI = 8, 12
    KB = [16, 24]
    VB, P = 32, 40
    S = [48, 64]
    O, NM, TMP = 80, 96, 112
    a("v_and_b32 v14, 0x13, v2")
    a("v_and_b32 v15, 4, v2")
    a("v_lshl_or_b32 v14, v15, 1, v14")
    a("v_and_b32 v15, 8, v2")
    a("v_lshrrev_b32 v15, 1, v15")
    a("v_or_b32 v14, v14, v15")
    a("v_mul_u32_u24 v14, 48, v14")
    a(f"v_add_u32 v{TMP}, 32, v14")
    a(f"v_lshl_add_u32 v{TMP + 1}, v3, 4, v14")
    a("v_min_u32 v14, 21, v2")
    a("v_lshlrev_b32 v14, 4, v14")
    a("v_mul_u32_u24 v15, 352, v3")
    a(f"v_add_u32 v{TMP + 2}, v14, v15")
    a(f"v_add_u32 v{TMP + 2}, 12288, v{TMP + 2}")
    a(f"v_mov_b32 v{VK}, v{TMP + 1}")
    a(f"v_mov_b32 v{VKH}, v{TMP}")
    a(f"v_mov_b32 v{VV}, v{TMP + 2}")
    a("s_lshl_b32 s10, s26, 5")
    a("v_add_u32 v14, s10, v2")
    a("v_mul_u32_u24 v14, 48, v14")
    a(f"v_add_u32 v14, {QST}, v14")
    a("v_lshl_add_u32 v15, v3, 4, v14")
    for r in range(16):
        a(f"v_mov_b32 v{O + r}, 0")
    for r in range(4):
        a(f"v_mov_b32 v{P + 4 + r}, 0")
        a(f"v_mov_b32 v{VB + 4 + r}, 0")

    def kread(buf, tile):
        return [f"ds_read_b128 {vr(KB[buf], 4)}, v{VK} offset:{tile * 1536}",
                f"ds_read_b64 {vr(KB[buf] + 4, 2)}, v{VKH} offset:{tile * 1536}"]

    def qk1(sb, kb, c):
        return f"v_mfma_f32_32x32x16_bf16 {vr(S[sb], 16)}, {vr(KB[kb], 4)}, {vr(QLO, 4)}, {c}"

    def qk2(sb, kb):
        return f"v_mfma_f32_32x32x8_bf16 {vr(S[sb], 16)}, {vr(KB[kb] + 4, 2)}, {vr(QHI, 2)}, {vr(S[sb], 16)}"

    pv1 = f"v_mfma_f32_32x32x16_bf16 {vr(O, 16)}, {vr(VB, 4)}, {vr(P, 4)}, {vr(O, 16)}"
    pv2 = f"v_mfma_f32_32x32x16_bf16 {vr(O, 16)}, {vr(VB + 4, 4)}, {vr(P + 4, 4)}, {vr(O, 16)}"
    a("v_cmp_eq_u32 vcc, 0, v3")
    a("s_waitcnt lgkmcnt(0)")
    a("s_barrier")
    stamp(a, 4)
    a(f"ds_read_b128 {vr(QLO, 4)}, v15")
    a(f"ds_read_b64 {vr(QHI, 2)}, v14 offset:32")
    for r in kread(0, 0) + kread(1, 1):
        a(r)
    a(f"ds_read_b128 {vr(VB, 4)}, v{VV}")
    a("s_waitcnt lgkmcnt(3)")
    a(f"v_cndmask_b32 v{QHI}, 0, v{QHI}, vcc")
    a(f"v_cndmask_b32 v{QHI + 1}, 0, v{QHI + 1}, vcc")
    a(qk1(0, 0, "0"))
    a("s_nop 0")
    a(qk2(0, 0))
    a("s_nop 15")
    a("s_nop 3")
    s0 = S[0]
    a(f"v_max3_f32 v14, v{s0}, v{s0 + 1}, v{s0 + 2}")
    for r in range(3, 15, 2):
        a(f"v_max3_f32 v14, v14, v{s0 + r}, v{s0 + r + 1}")
    a(f"v_max_f32 v14, v14, v{s0 + 15}")
    a("v_mov_b32 v15, v14")
    a("s_nop 1")
    a("v_permlane32_swap_b32 v14, v15")
    a("s_nop 1")
    a("v_max_f32 v14, v14, v15")
    for r in range(16):
        a(f"v_sub_f32 v{NM + r}, 0, v14")
    for r in range(16):
        a(f"v_sub_f32 v{s0 + r}, v{s0 + r}, v14")
    a("s_mov_b32 s30, 0")
    a(f"s_mov_b32 s32, {SLOT}")
    a("s_mov_b32 s33, 0")
    a.raw(".p2align 6")
    a.label("P2_LOOP")
    for t in range(8):
        cur, nxt = t % 2, (t + 1) % 2
        sc = S[cur]

        def ex(r):
            return f"v_exp_f32 v{sc + r}, v{sc + r}"

        def cv(p):
            return f"v_cvt_pk_bf16_f32 v{P + p}, v{sc + 2 * p}, v{sc + 2 * p + 1}"

        a("s_waitcnt lgkmcnt(1)")
        a(qk1(nxt, nxt, vr(NM, 16)))
        a(ex(0)); a(ex(1)); a(ex(2)); a(ex(3)); a(cv(0))
        a(pv2)
        a(f"ds_read_b128 {vr(VB + 4, 4)}, v{VV} offset:{t * 1408 + 704}")
        a(ex(4)); a(cv(1)); a(ex(5)); a(ex(6)); a(ex(7)); a(cv(2))
        a(qk2(nxt, nxt))
        if t == 6:
            a(f"v_add_u32 v{VK}, s32, v{VK}")
            a(f"v_add_u32 v{VKH}, s32, v{VKH}")
        for r in kread(cur, (t + 2) % 8):
            a(r)
        a(ex(8)); a(cv(3)); a(ex(9)); a(ex(10))
        if t == 5:
            a("s_waitcnt vmcnt(0)")
            a("s_barrier")
        a(ex(11)); a(cv(4))
        a("s_waitcnt lgkmcnt(3)")
        a(pv1)
        if t == 7:
            a(f"v_add_u32 v{VV}, s32, v{VV}")
        a(f"ds_read_b128 {vr(VB, 4)}, v{VV} offset:{((t + 1) % 8) * 1408}")
        a(ex(12)); a(cv(5)); a(ex(13)); a(ex(14)); a(ex(15)); a(cv(6)); a(cv(7))
    a("s_add_u32 s33, s33, 1")
    a("s_cmp_eq_u32 s33, 3")
    a("s_cselect_b32 s33, 0, s33")
    a("s_cmp_eq_u32 s33, 2")
    a(f"s_mov_b32 s32, {SLOT}")
    a(f"s_cselect_b32 s32, {(-2 * SLOT) & 0xffffffff}, s32")
    a("s_add_u32 s30, s30, 1")
    a("s_cmp_lt_u32 s30, 8")
    a("s_cbranch_scc1 P2_LOOP")
    a("s_waitcnt lgkmcnt(0)")
    a(pv2)
    stamp(a, 5)
    a("s_nop 15")
    a(f"v_mov_b32 v14, v{O + 8}")
    a(f"v_mov_b32 v15, v{O + 8}")
    a("s_nop 1")
    a("v_permlane32_swap_b32 v14, v15")
    a("s_mov_b32 s10, 0x53800000")
    a("s_nop 0")
    a("v_cmp_nge_f32 vcc, s10, v15")
    a("s_cmp_eq_u64 vcc, 0")
    a("s_cbranch_scc1 P2_STORE")
    a("v_mov_b32 v14, 0xff800000")
    for r in range(16):
        a(f"v_mov_b32 v{O + r}, 0")
    a("s_mov_b32 s31, 0")
    a.label("P2_SPASS")
    a("s_mov_b32 s30, 0")
    a("s_mov_b32 s29, s27")
    a.label("P2_SCHUNK")
    a("s_mov_b32 s28, s29")
    a("s_mov_b32 s34, s29")
    a("s_mov_b32 s33, 0")
    a.label("P2_STILE")
    a(f"buffer_load_dwordx4 {vr(KB[0], 4)}, v{TMP + 1}, s[{SWS}:{SWS + 3}], s28 offen sc1")
    a(f"buffer_load_dwordx2 {vr(KB[0] + 4, 2)}, v{TMP}, s[{SWS}:{SWS + 3}], s28 offen sc1")
    a(f"buffer_load_dwordx4 {vr(VB, 4)}, v{TMP + 2}, s[{SWS}:{SWS + 3}], s34 offen sc1")
    a(f"buffer_load_dwordx4 {vr(VB + 4, 4)}, v{TMP + 2}, s[{SWS}:{SWS + 3}], s34 offen offset:704 sc1")
    a("s_waitcnt vmcnt(0)")
    a(qk1(0, 0, "0"))
    a(qk2(0, 0))
    a("s_nop 15")
    a("s_nop 3")
    a("s_cmp_lg_u32 s31, 0")
    a("s_cbranch_scc1 P2_SEXP")
    for r in range(0, 16, 2):
        a(f"v_max3_f32 v14, v14, v{s0 + r}, v{s0 + r + 1}")
    a("s_branch P2_SNEXT")
    a.label("P2_SEXP")
    for r in range(16):
        a(f"v_sub_f32 v{s0 + r}, v{s0 + r}, v14")
    for r in range(16):
        a(f"v_exp_f32 v{s0 + r}, v{s0 + r}")
    a("s_nop 0")
    for p in range(8):
        a(f"v_cvt_pk_bf16_f32 v{P + p}, v{s0 + 2 * p}, v{s0 + 2 * p + 1}")
    a("s_nop 1")
    a(pv1)
    a(pv2)
    a.label("P2_SNEXT")
    a("s_add_u32 s28, s28, 1536")
    a("s_add_u32 s34, s34, 1408")
    a("s_add_u32 s33, s33, 1")
    a("s_cmp_lt_u32 s33, 8")
    a("s_cbranch_scc1 P2_STILE")
    a(f"s_add_u32 s29, s29, {SLOT}")
    a("s_add_u32 s30, s30, 1")
    a("s_cmp_lt_u32 s30, 8")
    a("s_cbranch_scc1 P2_SCHUNK")
    a("s_cmp_lg_u32 s31, 0")
    a("s_cbranch_scc1 P2_SDONE")
    a("v_mov_b32 v15, v14")
    a("s_nop 1")
    a("v_permlane32_swap_b32 v14, v15")
    a("s_nop 1")
    a("v_max_f32 v14, v14, v15")
    a("s_mov_b32 s31, 1")
    a("s_branch P2_SPASS")
    a.label("P2_SDONE")
    a("s_nop 15")
    a(f"v_mov_b32 v14, v{O + 8}")
    a(f"v_mov_b32 v15, v{O + 8}")
    a("s_nop 1")
    a("v_permlane32_swap_b32 v14, v15")
    a("s_nop 1")
    a.label("P2_STORE")
    a("v_rcp_f32 v15, v15")
    a("s_lshl_b32 s10, s25, 8")
    a("s_lshl_b32 s11, s26, 5")
    a("s_add_u32 s10, s10, s11")
    a("v_add_u32 v16, s10, v2")
    a("v_lshrrev_b32 v17, 4, v16")
    a("v_mul_u32_u24 v17, 20480, v17")
    a("v_and_b32 v16, 15, v16")
    a("v_lshl_add_u32 v17, v16, 4, v17")
    a(f"v_add_u32 v17, 0x{WS_O:x}, v17")
    a("s_lshr_b32 s10, s24, 1")
    a("s_mul_i32 s10, s10, 5")
    a("s_and_b32 s11, s24, 1")
    a("s_lshl_b32 s28, s11, 1")
    a("s_add_u32 s28, s28, s10")
    a("v_add_u32 v18, s28, v3")
    a("v_lshl_add_u32 v28, v18, 8, v17")
    a("s_add_u32 s10, s10, 4")
    a("s_lshl_b32 s10, s10, 8")
    a("s_lshl_b32 s11, s11, 3")
    a("s_add_u32 s10, s10, s11")
    a("v_add_u32 v29, s10, v17")
    for r in range(12):
        a(f"v_mul_f32 v{O + r}, v{O + r}, v15")
    for p in range(6):
        a(f"v_cvt_pk_bf16_f32 v{20 + p}, v{O + 2 * p}, v{O + 2 * p + 1}")
    a(f"buffer_store_dwordx4 v[20:23], v28, s[{SWS}:{SWS + 3}], 0 offen sc1")
    a("s_mov_b32 exec_hi, 0")
    a(f"buffer_store_dwordx2 v[24:25], v29, s[{SWS}:{SWS + 3}], 0 offen sc1")
    a("s_mov_b32 exec_hi, -1")
    a("s_lshl_b32 s28, s24, 3")
    a("s_add_u32 s28, s28, s25")
    a("s_lshl_b32 s28, s28, 3")
    a("s_add_u32 s28, s28, s26")
    a("s_cmp_ge_u32 s26, 4")
    a("s_cbranch_scc1 P2_DONE_HI")

    SO = 16
    srd(a, SO, 76, XBYTES)
    OF, ACC3 = 32, 112
    WF = [132, 8]
    a("v_lshlrev_b32 v5, 4, v1")
    a("s_lshl_b32 s3, s24, 2")
    a("s_add_u32 s3, s3, s26")
    a("s_mul_i32 s32, s3, 20480")
    a(f"s_add_u32 s32, s32, 0x{WS_O:x}")
    a("s_lshl_b32 s36, s3, 4")
    a("s_mul_i32 s40, s36, 1280")
    a("s_mul_i32 s41, s26, 2560")
    a(f"s_add_u32 s41, s41, {L_X}")
    a("v_and_b32 v2, 15, v1")
    a("v_lshrrev_b32 v3, 4, v1")
    a("v_lshrrev_b32 v6, 2, v2")
    a("v_lshl_add_u32 v6, v3, 2, v6")
    a("v_and_b32 v7, 3, v1")
    WBASE = 158
    a("v_lshrrev_b32 v28, 2, v2")
    a("v_mul_u32_u24 v28, 160, v28")
    a("v_lshl_add_u32 v28, v7, 3, v28")
    a(f"v_add_u32 v28, {L_WO}, v28")
    for k5 in range(5):
        for T in range(2):
            rows = []
            for g in range(4):
                j, i = divmod(4 * k5 + g, 5)
                rows.append(40 * j + (20 * (i // 2) + 4 * (i % 2) + 8 * T if i < 4 else 16 + 20 * T))
            pk = rows[0] | rows[1] << 8 | rows[2] << 16 | rows[3] << 24
            a(f"s_mov_b32 s10, 0x{pk:x}")
            a("v_lshlrev_b32 v29, 3, v3")
            a("v_lshrrev_b32 v29, v29, s10")
            a("v_and_b32 v29, 0xff, v29")
            a("v_mul_u32_u24 v29, 160, v29")
            a(f"v_add_u32 v{WBASE + 2 * k5 + T}, v29, v28")
    a("v_lshlrev_b32 v30, 7, v6")
    a("v_lshl_add_u32 v30, v7, 3, v30")
    a("s_lshl_b32 s37, s26, 5")
    a(f"s_add_u32 s37, s37, {L_Z}")
    a("v_add_u32 v30, s37, v30")
    a("v_mul_u32_u24 v31, 160, v2")
    a("v_lshl_add_u32 v31, v3, 3, v31")
    a("v_add_u32 v31, s41, v31")
    a("v_lshlrev_b32 v7, 2, v2")
    a("s_lshl_b32 s36, s36, 2")
    a(f"s_add_u32 s36, s36, 0x{WS_G:x}")
    for r in range(20):
        a(f"v_mov_b32 v{ACC3 + r}, 0")
    a(f"v_mov_b32 v156, {RES + 64}")
    a("s_waitcnt vmcnt(0)")
    write_flag(a, WS_F2, 28, 152)
    stamp(a, 6)
    a(f"buffer_load_dword v6, v7, s[{SWS}:{SWS + 3}], s36 offen sc1")

    def wreads(ks, st):
        k2 = (ks // 5) % 2
        return [f"ds_read_b64_tr_b16 {vr(WF[st] + 4 * j + 2 * T, 2)}, v{WBASE + 2 * (ks % 5) + T} offset:{k2 * 25600 + j * 32}"
                for j in range(5) for T in range(2)]

    a("s_mul_i32 s3, s25, 160")
    a("s_movk_i32 s10, 1280")
    for i in range(3):
        a(f"v_add_u32 v155, {64 * i}, v1")
        a("v_mul_u32_u24 v28, 0xcccd, v155")
        a("v_lshrrev_b32 v28, 19, v28")
        a("v_mul_u32_u24 v29, 10, v28")
        a("v_sub_u32 v155, v155, v29")
        a("v_mul_lo_u32 v28, v28, s10")
        a("v_lshl_add_u32 v155, v155, 4, v28")
        a(f"v_add_u32 v{152 + i}, s3, v155")
    lds_wait(a, 156, 157, 4, 10, 11)
    a("s_lshr_b32 s10, s26, 1")
    a("s_lshl_b32 s10, s10, 2")
    a(f"s_add_u32 s10, s10, {RES + 88}")
    a("v_mov_b32 v156, s10")
    a("s_mov_b32 s44, 0")
    a("s_mov_b32 s45, 0")
    a.label("P3_WAIT")
    a("ds_read_b32 v157, v156")
    a("s_waitcnt lgkmcnt(0)")
    a("v_readfirstlane_b32 s46, v157")
    a("s_add_u32 s45, s45, 1")
    a(f"s_cmp_gt_u32 s45, {POLL_LIMIT * 8}")
    a("s_cselect_b32 s46, -1, s46")
    a("s_mov_b32 s47, 0")
    for gam in range(4):
        a(f"s_bfe_u32 s10, s46, 0x{0x80000 + 8 * gam:x}")
        a("s_cmp_eq_u32 s10, 0xff")
        a(f"s_cselect_b32 s10, {1 << gam}, 0")
        a("s_or_b32 s47, s47, s10")
    a("s_andn2_b32 s47, s47, s44")
    a("s_cmp_eq_u32 s47, 0")
    a("s_cbranch_scc1 P3_WAIT")
    for gam in range(4):
        a(f"s_bitcmp0_b32 s47, {gam}")
        a(f"s_cbranch_scc1 P3_NL{gam}")
        a(f"s_add_u32 s35, s32, {gam * 5120}")
        a("s_add_u32 s33, s35, 4096")
        for k in range(5):
            ks = 5 * gam + k
            so, off = (35, k * 1024) if k < 4 else (33, 0)
            a(f"buffer_load_dwordx4 {vr(OF + 4 * ks, 4)}, v5, s[{SWS}:{SWS + 3}], s{so} offen offset:{off} sc1")
        a.label(f"P3_NL{gam}")
    for gam in range(4):
        a(f"s_bitcmp0_b32 s47, {gam}")
        a(f"s_cbranch_scc1 P3_NM{gam}")
        if gam >= 2:
            for r in range(10):
                a(f"v_add_u32 v{WBASE + r}, 51200, v{WBASE + r}")
        for r in wreads(5 * gam, 0):
            a(r)
        a("s_waitcnt vmcnt(0)")
        for k in range(5):
            ks = 5 * gam + k
            st = k % 2
            if k < 4:
                for r in wreads(ks + 1, 1 - st):
                    a(r)
                a("s_waitcnt lgkmcnt(10)")
            else:
                a("s_waitcnt lgkmcnt(0)")
            for j in range(5):
                d = ACC3 + 4 * j
                a(f"v_mfma_f32_16x16x32_bf16 {vr(d, 4)}, {vr(WF[st] + 4 * j, 4)}, {vr(OF + 4 * ks, 4)}, {vr(d, 4)}")
        if gam >= 2:
            for r in range(10):
                a(f"v_subrev_u32 v{WBASE + r}, 51200, v{WBASE + r}")
        a.label(f"P3_NM{gam}")
    a("s_or_b32 s44, s44, s47")
    a("s_cmp_lg_u32 s44, 15")
    a("s_cbranch_scc1 P3_WAIT")
    for j in range(5):
        a(f"ds_read_b64 {vr(32 + 2 * j, 2)}, v31 offset:{32 * j}")
        a(f"ds_read_b64_tr_b16 {vr(44 + 2 * j, 2)}, v30 offset:{2048 * j}")
    a("v_sub_f32 v17, 1.0, v6")
    a("s_mov_b32 s42, 0xffff0000")
    a("s_waitcnt lgkmcnt(0)")
    for j in range(5):
        d = ACC3 + 4 * j
        for r in range(4):
            xs = 32 + 2 * j + r // 2
            zs = 44 + 2 * j + r // 2
            if r % 2 == 0:
                a(f"v_lshlrev_b32 v18, 16, v{xs}")
                a(f"v_lshlrev_b32 v19, 16, v{zs}")
            else:
                a(f"v_and_b32 v18, s42, v{xs}")
                a(f"v_and_b32 v19, s42, v{zs}")
            a("v_mul_f32 v18, v18, v19")
            a("v_mul_f32 v18, v18, v17")
            a(f"v_fma_f32 v{d + r}, v{d + r}, v6, v18")
        a(f"v_cvt_pk_bf16_f32 v{56 + 2 * j}, v{d}, v{d + 1}")
        a(f"v_cvt_pk_bf16_f32 v{57 + 2 * j}, v{d + 2}, v{d + 3}")
        a(f"ds_write_b64 v31, {vr(56 + 2 * j, 2)} offset:{32 * j}")
    a("v_add_u32 v18, s41, v5")
    a("s_waitcnt lgkmcnt(0)")
    for i in range(3):
        a(f"ds_read_b128 {vr(68 + 4 * i, 4)}, v18 offset:{1024 * i}")
    a("s_waitcnt lgkmcnt(0)")
    for i in range(2):
        a(f"buffer_store_dwordx4 {vr(68 + 4 * i, 4)}, v{152 + i}, s[{SO}:{SO + 3}], s40 offen{OUTPOL}")
    a("s_mov_b32 exec_hi, 0")
    a(f"buffer_store_dwordx4 {vr(76, 4)}, v154, s[{SO}:{SO + 3}], s40 offen{OUTPOL}")
    if DIAG:
        a("s_waitcnt vmcnt(0)")
    stamp(a, 7)
    stamp_flush(a)
    a("s_endpgm")
    a.label("P2_DONE_HI")
    a("s_waitcnt vmcnt(0)")
    write_flag(a, WS_F2, 28, 4)
    stamp(a, 6)
    stamp_flush(a)
    a("s_endpgm")

    a.label("P2_HELP")
    SX, SG, SWO = 16, 28, 36
    if os.environ.get("HPRIO", "3") != "0":
        a("s_setprio " + os.environ.get("HPRIO", "3"))
    srd(a, SX, 4, XBYTES)
    srd(a, SG, 74, 1280)
    srd(a, SWO, 60, WO_BYTES)
    a("s_sub_u32 s34, s26, 8")
    a("v_lshlrev_b32 v4, 4, v1")
    a("s_lshl_b32 s10, s2, 3")
    a("s_lshl_b32 s11, s34, 1")
    a("s_add_u32 s35, s10, s11")
    a("s_mul_i32 s10, s35, 1280")
    a("s_add_u32 s11, s10, 1280")
    a("v_add_u32 v5, 1024, v4")
    a("v_cmp_gt_u32 vcc, 16, v1")
    a(f"v_mov_b32 v6, 0x{OOB:x}")
    a("s_nop 0")
    a("v_cndmask_b32 v5, v6, v5, vcc")
    G = 64
    a("v_mov_b32 v9, v5")
    a("s_mov_b32 s46, s10")
    a("s_mov_b32 s47, s11")
    a("s_lshr_b32 s10, s24, 3")
    a("v_and_b32 v5, 15, v1")
    a("v_bfe_u32 v6, v1, 4, 1")
    a("v_lshlrev_b32 v6, 6, v6")
    a("v_add3_u32 v5, v5, v6, 64")
    a("v_and_b32 v6, 1, v1")
    a("s_lshl_b32 s11, s25, 1")
    a("v_add_u32 v6, s11, v6")
    a("v_cmp_gt_u32 vcc, 32, v1")
    a("s_lshl_b32 s10, s10, 4")
    a("s_nop 0")
    a("v_cndmask_b32 v5, v6, v5, vcc")
    a("v_add_u32 v5, s10, v5")
    a("v_lshlrev_b32 v5, 6, v5")
    a(f"v_add_u32 v5, 0x{WS_F1:x}, v5")
    a("v_and_b32 v11, 3, v1")
    a("v_min_u32 v11, 2, v11")
    a("v_lshlrev_b32 v11, 6, v11")
    a("v_bfe_u32 v12, v1, 2, 1")
    a("v_add3_u32 v11, v11, v12, s10")
    a("v_add_u32 v11, s11, v11")
    a("v_lshlrev_b32 v11, 6, v11")
    a(f"v_add_u32 v13, 0x{WS_F1:x}, v11")
    VD = 10
    a("s_mul_i32 s40, s34, 6144")
    a(f"v_add_u32 v{VD}, s40, v4")
    a("s_mov_b32 s41, s25")
    a("s_mov_b32 s42, 0")

    def kv_dma():
        a("s_mul_i32 s43, s41, 24576")
        a("s_add_u32 s43, s43, s27")
        a("s_add_u32 m0, s42, s40")
        a("s_add_u32 s41, s41, 1")
        for i in range(4):
            o = f" offset:{1024 * i}" if i else ""
            a(f"buffer_load_dwordx4 v{VD}, s[{SWS}:{SWS + 3}], s43 offen{o} sc1 lds")
        a("s_add_u32 m0, m0, 4096")
        a("s_add_u32 s43, s43, 4096")
        a("s_and_b32 s41, s41, 7")
        for i in range(2):
            o = f" offset:{1024 * i}" if i else ""
            a(f"buffer_load_dwordx4 v{VD}, s[{SWS}:{SWS + 3}], s43 offen{o} sc1 lds")
        a(f"s_add_u32 s42, s42, {SLOT}")
        a(f"s_cmp_ge_u32 s42, {3 * SLOT}")
        a("s_cselect_b32 s42, 0, s42")

    VP = 24
    a("s_mul_i32 s3, s25, 160")
    a("s_movk_i32 s10, 1280")
    for i in range(5):
        a(f"v_add_u32 v7, {64 * i}, v1")
        a("v_mul_u32_u24 v8, 0xcccd, v7")
        a("v_lshrrev_b32 v8, 19, v8")
        a("v_mul_u32_u24 v11, 10, v8")
        a("v_sub_u32 v7, v7, v11")
        a("v_mul_lo_u32 v8, v8, s10")
        a("v_lshl_add_u32 v7, v7, 4, v8")
        a(f"v_add_u32 v{VP + i}, s3, v7")
    a("s_lshl_b32 s44, s24, 11")
    a("s_lshl_b32 s11, s25, 8")
    a("s_add_u32 s44, s44, s11")
    a("s_mul_i32 s44, s44, 48")
    a("s_mul_i32 s45, s34, 3072")
    a("s_add_u32 s44, s44, s45")
    a(f"v_mov_b32 v6, {RES + 16}")
    lds_wait(a, 6, 7, 4, 10, 11)
    shared_poll(a, 8, [13], 20, 72, 6)
    stamp(a, 4)
    a(f"s_add_u32 m0, s45, {QST}")
    a("s_nop 0")
    for i in range(3):
        o = f" offset:{1024 * i}" if i else ""
        a(f"buffer_load_dwordx4 v4, s[{SWS}:{SWS + 3}], s44 offen{o} sc1 lds")
    kv_dma()
    a(f"buffer_load_dwordx4 {vr(G, 4)}, v4, s[{SG}:{SG + 3}], 0 offen")
    a(f"buffer_load_dwordx4 {vr(G + 4, 4)}, v9, s[{SG}:{SG + 3}], 0 offen")
    a(f"buffer_load_dwordx4 {vr(G + 8, 4)}, v4, s[{SX}:{SX + 3}], s46 offen")
    a(f"buffer_load_dwordx4 {vr(G + 12, 4)}, v9, s[{SX}:{SX + 3}], s46 offen")
    a(f"buffer_load_dwordx4 {vr(G + 16, 4)}, v4, s[{SX}:{SX + 3}], s47 offen")
    a(f"buffer_load_dwordx4 {vr(G + 20, 4)}, v9, s[{SX}:{SX + 3}], s47 offen")
    a("s_waitcnt vmcnt(6)")
    a("s_barrier")
    shared_poll(a, 8, [5], 20, 76, 6)
    kv_dma()
    a("v_mov_b32 v20, 0")
    a("v_mov_b32 v21, 0")
    a("s_waitcnt vmcnt(6)")
    for r in range(8):
        a(f"v_dot2_f32_bf16 v20, v{G + 8 + r}, v{G + r}, v20")
        a(f"v_dot2_f32_bf16 v21, v{G + 16 + r}, v{G + r}, v21")
    a("s_nop 3")
    for sh in (1, 2, 4, 8):
        a(f"v_add_f32_dpp v20, v20, v20 row_shr:{sh} row_mask:0xf bank_mask:0xf bound_ctrl:0")
        a(f"v_add_f32_dpp v21, v21, v21 row_shr:{sh} row_mask:0xf bank_mask:0xf bound_ctrl:0")
        a("s_nop 1")
    a("s_nop 1")
    a("v_readlane_b32 s10, v20, 15")
    a("v_readlane_b32 s11, v20, 31")
    a("v_readlane_b32 s49, v20, 47")
    a("v_readlane_b32 s50, v20, 63")
    a("v_readlane_b32 s51, v21, 15")
    a("v_readlane_b32 s52, v21, 31")
    a("v_readlane_b32 s53, v21, 47")
    a("v_readlane_b32 s54, v21, 63")
    a("s_nop 3")
    a("v_mov_b32 v22, s10")
    a("v_mov_b32 v23, s51")
    a("v_add_f32 v22, s11, v22")
    a("v_add_f32 v23, s52, v23")
    a("v_add_f32 v22, s49, v22")
    a("v_add_f32 v23, s53, v23")
    a("v_add_f32 v22, s50, v22")
    a("v_add_f32 v23, s54, v23")
    a("v_cmp_eq_u32 vcc, 1, v1")
    a("s_nop 1")
    a("v_cndmask_b32 v22, v22, v23, vcc")
    a(f"v_mul_f32 v22, {f32hex(-math.log2(math.e))}, v22")
    a("v_exp_f32 v22, v22")
    a("s_nop 0")
    a("v_add_f32 v22, 1.0, v22")
    a("v_rcp_f32 v22, v22")
    a("s_lshl_b32 s10, s35, 2")
    a(f"s_add_u32 s10, s10, 0x{WS_G:x}")
    a("v_lshlrev_b32 v23, 2, v1")
    a("s_mov_b64 exec, 3")
    a(f"buffer_store_dword v22, v23, s[{SWS}:{SWS + 3}], s10 offen sc1")
    a("s_mov_b64 exec, -1")
    a("s_waitcnt vmcnt(0)")
    a("s_barrier")
    a("s_cmp_lg_u32 s26, 8")
    a("s_cbranch_scc1 P2H_NOF3")
    write_flag(a, WS_F3, 2, 12)
    a.label("P2H_NOF3")

    def wo_rep(srep):
        a(f"s_mul_i32 s10, s{srep}, 40960")
        a(f"s_mul_i32 s11, s{srep}, 5120")
        a(f"s_add_u32 s11, s11, {L_WO}")
        for i in range(5):
            a(f"s_add_u32 m0, s11, {1024 * i}")
            a("s_nop 0")
            a(f"buffer_load_dwordx4 v{VP + i}, s[{SWO}:{SWO + 3}], s10 offen lds")

    a("s_add_u32 s44, s34, 4")
    a.label("P2H_WO")
    kv_dma()
    wo_rep(44)
    a("s_waitcnt vmcnt(5)")
    a("s_barrier")
    a("s_add_u32 s44, s44, 4")
    a("s_cmp_lt_u32 s44, 20")
    a("s_cbranch_scc1 P2H_WO")
    stamp(a, 5)
    kv_dma()
    a("v_lshlrev_b32 v5, 6, v1")
    a(f"v_add_u32 v5, 0x{WS_F3:x}, v5")
    a("v_add_u32 v6, 4096, v5")
    a("v_add_u32 v7, 8192, v5")
    a("v_add_u32 v8, 12288, v5")
    a("s_waitcnt vmcnt(0)")
    a("s_barrier")
    kv_dma()
    a("s_cmp_lg_u32 s26, 8")
    a("s_cbranch_scc1 P2H_NOP3")
    poll(a, [5, 6, 7, 8], 12, 10)
    a.label("P2H_NOP3")
    a("s_waitcnt vmcnt(0)")
    a("s_barrier")
    wo_rep(34)
    a("s_lshl_b32 s10, s24, 6")
    a("s_lshl_b32 s11, s34, 4")
    a("s_add_u32 s10, s10, s11")
    a("s_mul_i32 s10, s10, 1280")
    a("s_mul_i32 s11, s34, 2560")
    a(f"s_add_u32 s11, s11, {L_X}")
    for i in range(3):
        a(f"s_add_u32 m0, s11, {1024 * i}")
        if i == 2:
            a("s_mov_b32 exec_hi, 0")
        else:
            a("s_nop 0")
        a(f"buffer_load_dwordx4 v{VP + i}, s[{SX}:{SX + 3}], s10 offen lds")
    a("s_mov_b64 exec, -1")
    a("v_lshrrev_b32 v7, 3, v1")
    a("v_lshlrev_b32 v7, 12, v7")
    a("v_and_b32 v8, 7, v1")
    a("v_lshl_add_u32 v7, v8, 4, v7")
    a("s_mul_i32 s10, s25, 80")
    a("s_lshl_b32 s10, s10, 12")
    a("s_lshl_b32 s11, s24, 7")
    a("s_add_u32 s10, s10, s11")
    a(f"s_add_u32 s10, s10, 0x{WS_Z:x}")
    a("s_lshl_b32 s11, s34, 15")
    a("s_add_u32 s10, s10, s11")
    a("s_lshl_b32 s11, s34, 10")
    a(f"s_add_u32 s11, s11, {L_Z}")
    a("s_barrier")
    for k in range(3):
        if k == 2:
            a("s_cmp_lt_u32 s34, 2")
            a("s_cselect_b32 s44, 2, 1")
            a("s_lshl_b32 s43, s44, 17")
            a("s_lshl_b32 s44, s44, 12")
            a("s_add_u32 s43, s43, s10")
            a("s_add_u32 m0, s11, s44")
        else:
            a(f"s_add_u32 s43, s10, {k * 131072}")
            a(f"s_add_u32 m0, s11, {k * 4096}")
        a("s_nop 0")
        a(f"buffer_load_dwordx4 v7, s[{SWS}:{SWS + 3}], s43 offen sc1 lds")
    a(f"v_mov_b32 v5, {RES + 64}")
    a("v_mov_b32 v6, 1")
    a("s_waitcnt vmcnt(0)")
    a("s_mov_b64 exec, 1")
    a("ds_add_u32 v5, v6")
    a("s_mov_b64 exec, -1")
    a("s_cmp_lg_u32 s26, 8")
    a("s_cbranch_scc1 P2H_FIN")
    a("s_lshr_b32 s10, s24, 2")
    a("s_lshl_b32 s10, s10, 3")
    a("s_and_b32 s11, s24, 3")
    a("s_lshl_b32 s11, s11, 1")
    a("s_add_u32 s10, s10, s11")
    a("v_lshlrev_b32 v7, 6, v2")
    a("v_add3_u32 v7, v7, v3, s10")
    a("v_lshlrev_b32 v7, 6, v7")
    a(f"v_add_u32 v7, 0x{WS_F2:x}, v7")
    a(f"v_mov_b32 v8, {RES + 88}")
    a("s_mov_b32 s10, 0")
    a("s_mov_b64 s[20:21], 0")
    a.label("P2H_OP")
    if os.environ.get("OPM", "1") == "1":
        a("s_not_b64 exec, s[20:21]")
    a(f"buffer_load_dwordx2 v[12:13], v7, s[{SWS}:{SWS + 3}], 0 offen sc0 sc1")
    a("s_waitcnt vmcnt(0)")
    a("v_cmp_eq_u64 vcc, s[56:57], v[12:13]")
    a("s_mov_b64 exec, -1")
    a("s_or_b64 s[20:21], s[20:21], vcc")
    a("s_add_u32 s10, s10, 1")
    a("v_mov_b32 v14, s20")
    a("v_mov_b32 v15, s21")
    a("ds_write_b64 v8, v[14:15]")
    a(f"s_cmp_gt_u32 s10, {POLL_LIMIT}")
    a("s_cbranch_scc1 P2H_FIN")
    a("s_cmp_lg_u64 s[20:21], -1")
    a("s_cbranch_scc1 P2H_OP")
    a.label("P2H_FIN")
    a("s_waitcnt lgkmcnt(0)")
    stamp(a, 6)
    stamp_flush(a)
    a.label("L_END")
    a("s_endpgm")


def main():
    hdr = open("cdna_kernels/" + NAME + ".s.ref").read().split("\n")
    head = [l for l in hdr if l.startswith(";") and "@launch" not in l and "Override" not in l and "grid=ceil" not in l]
    a = Asm()
    gen(a)
    out = "\n".join(head) + "\n"
    if os.environ.get("ASLIST", "0") == "1":
        out += f"; @launch kernel={KNAME} grid=(256,1,1) block=(768,1,1) lds={LDS_TOTAL}\n"
    else:
        out += f"; @launch grid=(256,1,1) block=(768,1,1) lds={LDS_TOTAL}\n"
    out += '.amdgcn_target "amdgcn-amd-amdhsa--gfx950"\n.text\n'
    out += a.text()
    out += '.section .rodata,"a"\n.p2align 6\n'
    out += f""".amdhsa_kernel {KNAME}
  .amdhsa_next_free_vgpr 168
  .amdhsa_next_free_sgpr 102
  .amdhsa_accum_offset 168
  .amdhsa_group_segment_fixed_size 0
  .amdhsa_kernarg_size 104
  .amdhsa_user_sgpr_count 2
  .amdhsa_user_sgpr_kernarg_segment_ptr 1
  .amdhsa_system_sgpr_workgroup_id_x 1
.end_amdhsa_kernel
"""
    path = sys.argv[1] if len(sys.argv) > 1 else "cdna_kernels/" + NAME + ".s"
    open(path, "w").write(out)
    print("wrote", path, len(out), "bytes")


if __name__ == "__main__":
    main()
```

```python
import struct, sys, math, os

NAME = "gated_mix__softmax_full_mha__ssm_conv_h3__prompt"
KNAME = NAME + "_kernel"

WS_Q = 0x0
WS_KV = 0x300000
WS_U = 0x900000
WS_Z = 0xC00000
WS_O = 0xF00000
OLAYOUT = 2
VROWS = 22
WS_G = 0x1200000
WS_F1 = 0x1210000
WS_F3 = 0x1218000
WS_F2 = 0x1220000
WS_DIAG = 0x1280000
WS_SIZE = 0x1400000

XBYTES = 2048 * 640 * 2
WQKV_BYTES = 640 * 1920 * 2
WO_BYTES = 640 * 640 * 2
OOB = 0x7F000000
DIAG = int(os.environ.get("DIAG", "0"))
POLL_LIMIT = 30000
ZDEF = int(os.environ.get('ZDEF', '1'))
HPOS = int(os.environ.get('HPOS', '1'))
OUTPOL = os.environ.get('OUTPOL', '')
NT_E = ' nt' if os.environ.get('NT_E', '1') == '1' else ''
NT_G = ' nt' if os.environ.get('NT_G', '0') == '1' else ''
NT_H = ' nt' if os.environ.get('NT_H', '1') == '1' else ''

G_STAGE = 36864
SLOT = 24576
CONVB = 51200
CJ_BIG, CJ_SMALL = 24240, 13488
QST = CONVB + 3 * CJ_BIG + 2 * CJ_SMALL
RES = 163584
LDS_TOTAL = 163840
L_WO = RES - 102400
L_X = 2 * SLOT
L_Z = 0
assert QST + 12288 <= RES and L_X + 10240 <= L_WO

SWS = 12


def f32hex(x):
    return "0x%08x" % struct.unpack("<I", struct.pack("<f", x))[0]


class Asm:
    def __init__(self):
        self.L = []
        self.uid = 0

    def __call__(self, s):
        self.L.append("    " + s)

    def label(self, s):
        self.L.append(s + ":")

    def raw(self, s):
        self.L.append(s)

    def newlabel(self, p):
        self.uid += 1
        return f"{p}_{self.uid}"

    def text(self):
        return "\n".join(self.L) + "\n"


def vr(a, n=1):
    return f"v{a}" if n == 1 else f"v[{a}:{a + n - 1}]"


def srd(a, d, base, nbytes):
    a(f"s_mov_b32 s{d}, s{base}")
    a(f"s_and_b32 s{d + 1}, s{base + 1}, 0xffff")
    a(f"s_mov_b32 s{d + 2}, 0x{nbytes:x}")
    a(f"s_mov_b32 s{d + 3}, 0x00020000")


def stamp(a, idx):
    if not DIAG:
        return
    a("s_waitcnt lgkmcnt(0)")
    a("s_memtime s[96:97]")
    a("s_memrealtime s[98:99]")
    a("s_waitcnt lgkmcnt(0)")
    a(f"s_mov_b32 s{80 + 2 * idx}, s96")
    a(f"s_mov_b32 s{81 + 2 * idx}, s98")


def stamp_flush(a):
    if not DIAG:
        return
    a("s_mov_b64 exec, 1")
    if DIAG == 2:
        sel = {(37, 0): [(0, 2), (2, 3), (1, 4), (3, 5), (4, 6), (5, 7), (6, 8), (7, 9)], (37, 4): [(1, 10), (3, 11)],
               (37, 8): [(3, 12), (4, 13)], (200, 4): [(2, 14), (3, 15)]}
        srd(a, 16, 78, 256)
        a("v_mov_b32 v2, 0")
        a("s_lshl_b32 s96, s2, 4")
        a("s_add_u32 s96, s96, s26")
        for (wg, wv), lst in sel.items():
            lb = a.newlabel("DG")
            a(f"s_cmp_lg_u32 s96, {wg * 16 + wv}")
            a(f"s_cbranch_scc1 {lb}")
            for st, word in lst:
                a(f"v_mov_b32 v3, s{81 + 2 * st}")
                a(f"buffer_store_dword v3, v2, s[16:19], 0 offen offset:{4 * word}")
                a("s_nop 1")
            a.label(lb)
        return
    a("s_lshl_b32 s96, s2, 4")
    a("s_add_u32 s96, s96, s26")
    a("s_lshl_b32 s96, s96, 6")
    a(f"s_add_u32 s96, s96, 0x{WS_DIAG:x}")
    a("v_mov_b32 v2, 0")
    for i in range(16):
        a(f"v_mov_b32 v3, s{80 + i}")
        a(f"buffer_store_dword v3, v2, s[{SWS}:{SWS + 3}], s96 offen offset:{4 * i}")
        a("s_nop 1")


def poll(a, vaddrs, vtmp, scnt, preloaded=False):
    lp, done, chk = a.newlabel("POLL"), a.newlabel("POLLD"), a.newlabel("POLLC")
    a(f"s_mov_b32 s{scnt}, 0")
    if len(vaddrs) == 1 and os.environ.get('POLL2', '0') == '1':
        va = vaddrs[0]
        ld = lambda k: f"buffer_load_dwordx2 {vr(vtmp + 2 * k, 2)}, v{va}, s[{SWS}:{SWS + 3}], 0 offen sc0 sc1"
        if not preloaded:
            a(ld(0))
        a.label(lp)
        for k in range(2):
            a(ld(1 - k))
            a("s_waitcnt vmcnt(1)")
            a(f"v_cmp_ne_u64 vcc, s[56:57], {vr(vtmp + 2 * k, 2)}")
            a(f"s_add_u32 s{scnt}, s{scnt}, 1")
            a("s_cmp_eq_u64 vcc, 0")
            a(f"s_cbranch_scc1 {done}")
        a(f"s_cmp_le_u32 s{scnt}, {POLL_LIMIT}")
        a(f"s_cbranch_scc1 {lp}")
        a.label(done)
        return
    if preloaded:
        a(f"s_branch {chk}")
    a.label(lp)
    for k, va in enumerate(vaddrs):
        a(f"buffer_load_dwordx2 {vr(vtmp + 2 * k, 2)}, v{va}, s[{SWS}:{SWS + 3}], 0 offen sc0 sc1")
    a.label(chk)
    a("s_waitcnt vmcnt(0)")
    a(f"v_cmp_ne_u64 vcc, s[56:57], {vr(vtmp, 2)}")
    for k in range(1, len(vaddrs)):
        a(f"v_cmp_ne_u64 s[58:59], s[56:57], {vr(vtmp + 2 * k, 2)}")
        a("s_or_b64 vcc, vcc, s[58:59]")
    a(f"s_add_u32 s{scnt}, s{scnt}, 1")
    a(f"s_cmp_gt_u32 s{scnt}, {POLL_LIMIT}")
    a(f"s_cbranch_scc1 {done}")
    a("s_cmp_lg_u64 vcc, 0")
    a(f"s_cbranch_scc1 {lp}")
    a.label(done)


def lds_wait(a, vaddr, vt, target, s0, s1):
    lp, done = a.newlabel("LW"), a.newlabel("LWD")
    a(f"s_mov_b32 s{s0}, 0")
    a.label(lp)
    a(f"ds_read_b32 v{vt}, v{vaddr}")
    a("s_waitcnt lgkmcnt(0)")
    a(f"v_readfirstlane_b32 s{s1}, v{vt}")
    a(f"s_add_u32 s{s0}, s{s0}, 1")
    a(f"s_cmp_gt_u32 s{s0}, {POLL_LIMIT * 8}")
    a(f"s_cbranch_scc1 {done}")
    a(f"s_cmp_lt_u32 s{s1}, {target}")
    a(f"s_cbranch_scc1 {lp}")
    a.label(done)


def shared_poll(a, poller, vaddrs, vtmp, ldsoff, vl, preloaded=False):
    oth, done = a.newlabel("SP"), a.newlabel("SPD")
    a(f"v_mov_b32 v{vl}, {RES + ldsoff}")
    a(f"s_cmp_lg_u32 s26, {poller}")
    a(f"s_cbranch_scc1 {oth}")
    poll(a, vaddrs, vtmp, 10, preloaded)
    a(f"v_mov_b32 v{vl + 1}, 1")
    a(f"ds_write_b32 v{vl}, v{vl + 1}")
    a(f"s_branch {done}")
    a.label(oth)
    lds_wait(a, vl, vl + 1, 1, 10, 11)
    a.label(done)


def get_nonce(a, vt):
    lp, done = a.newlabel("NON"), a.newlabel("NOND")
    a("s_cmp_eq_u32 s2, 0")
    a(f"s_cbranch_scc1 {done}")
    srd(a, 16, 78, 256)
    a(f"v_mov_b32 v{vt}, 0")
    a("s_mov_b32 s20, 0")
    a.label(lp)
    a(f"buffer_load_dwordx2 {vr(vt + 2, 2)}, v{vt}, s[16:19], 0 offen sc0 sc1")
    a("s_waitcnt vmcnt(0)")
    a(f"v_readfirstlane_b32 s56, v{vt + 2}")
    a(f"v_readfirstlane_b32 s57, v{vt + 3}")
    a("s_add_u32 s20, s20, 1")
    a(f"s_cmp_gt_u32 s20, {POLL_LIMIT}")
    a(f"s_cbranch_scc1 {done}")
    a("s_not_b32 s21, s56")
    a("s_cmp_lg_u32 s21, s57")
    a(f"s_cbranch_scc1 {lp}")
    a.label(done)
    a(f"v_mov_b32 v{vt}, {RES}")
    a(f"v_mov_b32 v{vt + 2}, s56")
    a(f"v_mov_b32 v{vt + 3}, s57")
    a(f"ds_write_b64 v{vt}, {vr(vt + 2, 2)}")
    a("s_waitcnt lgkmcnt(0)")


def nonce_check_or_poll(a, vt, sdbg):
    lp, chk, done = a.newlabel("NON"), a.newlabel("NONC"), a.newlabel("NOND")
    a("s_mov_b32 s58, 0")
    a(f"s_branch {chk}")
    a.label(lp)
    a(f"buffer_load_dwordx2 {vr(vt + 2, 2)}, v{vt}, s[{sdbg}:{sdbg + 3}], 0 offen sc0 sc1")
    a("s_waitcnt vmcnt(0)")
    a.label(chk)
    a(f"v_readfirstlane_b32 s56, v{vt + 2}")
    a(f"v_readfirstlane_b32 s57, v{vt + 3}")
    a("s_add_u32 s58, s58, 1")
    a(f"s_cmp_gt_u32 s58, {POLL_LIMIT}")
    a(f"s_cbranch_scc1 {done}")
    a("s_not_b32 s59, s56")
    a("s_cmp_lg_u32 s59, s57")
    a(f"s_cbranch_scc1 {lp}")
    a.label(done)


def nonce_to_lds(a, vt):
    a(f"v_mov_b32 v{vt}, {RES}")
    a(f"v_mov_b32 v{vt + 2}, s56")
    a(f"v_mov_b32 v{vt + 3}, s57")
    a(f"ds_write_b64 v{vt}, {vr(vt + 2, 2)}")
    a("s_waitcnt lgkmcnt(0)")


def read_nonce(a, vt):
    a(f"v_mov_b32 v{vt}, {RES}")
    a(f"ds_read_b64 {vr(vt + 2, 2)}, v{vt}")
    a("s_waitcnt lgkmcnt(0)")
    a(f"v_readfirstlane_b32 s56, v{vt + 2}")
    a(f"v_readfirstlane_b32 s57, v{vt + 3}")


def write_flag(a, base, sslot, vt):
    a(f"s_lshl_b32 s58, s{sslot}, 6")
    a(f"s_add_u32 s58, s58, 0x{base:x}")
    a(f"v_mov_b32 v{vt}, s58")
    a(f"v_mov_b32 v{vt + 2}, s56")
    a(f"v_mov_b32 v{vt + 3}, s57")
    a("s_mov_b64 exec, 1")
    a(f"buffer_store_dwordx2 {vr(vt + 2, 2)}, v{vt}, s[{SWS}:{SWS + 3}], 0 offen sc0 sc1")
    a("s_mov_b64 exec, -1")


SH = 20
HREG = 124


def pack4(l):
    v = 0
    for i, x in enumerate(l):
        v |= x << (4 * i)
    return v


def job_params(a, swave):
    ty = [pack4([1, 1, 1, 2, 0, 0, 0, 2]), pack4([1, 1, 2, 2, 0, 0, 2, 0])]
    ch = [pack4([0, 1, 2, 0, 0, 0, 0, 1]), pack4([3, 4, 2, 4, 0, 0, 3, 0])]
    nb = [pack4([0, 1, 2, 3, 0, 0, 0, 3]), pack4([0, 1, 2, 2, 0, 0, 2, 0])]
    ns = [pack4([0, 0, 0, 0, 0, 0, 0, 1]), pack4([0, 0, 0, 2, 0, 0, 1, 0])]
    a(f"s_lshl_b32 s17, s{swave}, 2")
    a("s_or_b32 s17, s17, 0x40000")
    a("s_and_b32 s18, s2, 1")

    def sel(dst, t):
        a(f"s_mov_b32 s{dst}, 0x{t[0]:x}")
        a("s_cmp_eq_u32 s18, 0")
        a(f"s_cselect_b32 s{dst}, s{dst}, 0x{t[1]:x}")
        a(f"s_bfe_u32 s{dst}, s{dst}, s17")
    sel(51, ty)
    sel(50, ch)
    sel(16, nb)
    sel(19, ns)
    a("s_lshr_b32 s18, s2, 1")
    a("s_mul_i32 s18, s18, 5")
    a("s_add_u32 s50, s50, s18")
    a(f"s_mul_i32 s16, s16, {CJ_BIG}")
    a(f"s_mul_i32 s19, s19, {CJ_SMALL}")
    a("s_add_u32 s16, s16, s19")
    a(f"s_add_u32 s16, s16, {CONVB}")


def h_load(a):
    srd(a, SH, 70, XBYTES)
    a("s_lshl_b32 s17, s50, 12")
    if os.environ.get("NOH", "0") == "1":
        a(f"s_mov_b32 s17, 0x{OOB:x}")
    a(f"v_lshlrev_b32 v{HREG + 24}, 4, v1")
    for i in range(4):
        a(f"buffer_load_dwordx4 {vr(HREG + 4 * i, 4)}, v{HREG + 24}, s[{SH}:{SH + 3}], s17 offen offset:{1024 * i}{NT_H}")
    for i in range(4):
        a(f"buffer_load_dwordx2 {vr(HREG + 16 + 2 * i, 2)}, v{HREG + 24}, s[{SH}:{SH + 3}], s17 offen offset:{1024 * i + 16}{NT_H}")


def u_dma(a, uo):
    end = a.newlabel("UD")
    a("s_lshl_b32 s17, s50, 6")
    a(f"s_add_u32 s17, s17, 0x{WS_U:x}")
    a("s_cmp_eq_u32 s51, 2")
    a(f"s_cselect_b32 s18, {32 * 40960}, 0")
    a("s_cselect_b32 s19, 0, -1")
    a("s_add_u32 s17, s17, s18")
    for i in range(5):
        a(f"s_add_u32 m0, s16, {1024 * i}")
        if i == 2:
            a("s_mov_b32 exec_hi, s19")
        else:
            a("s_nop 0")
        a(f"buffer_load_dwordx4 v{uo + i}, s[{SWS}:{SWS + 3}], s17 offen sc1 lds")
        if i == 2:
            a("s_mov_b32 exec_hi, -1")
            a("s_cmp_eq_u32 s51, 2")
            a(f"s_cbranch_scc1 {end}")
    a.label(end)


def conv_build(a):
    T1, T2, T3, T4 = 64, 68, 72, 76
    VW = 20

    def build(d, n, off):
        dd = [d, d + 1, d + 2, d + 3, n, n + 1]
        for i in range(4):
            a(f"v_alignbit_b32 v{T1 + i}, v{dd[i + 1]}, v{dd[i]}, 16")
            a(f"v_mov_b32 v{T2 + i}, v{dd[i + 1]}")
            a(f"v_alignbit_b32 v{T3 + i}, v{dd[i + 2]}, v{dd[i + 1]}, 16")
            a(f"v_mov_b32 v{T4 + i}, v{dd[i + 2]}")
        a(f"ds_write_b128 v{VW}, {vr(T1, 4)} offset:{off}")
        a(f"ds_write_b128 v{VW + 1}, {vr(T2, 4)} offset:{off}")
        a(f"ds_write_b128 v{VW + 2}, {vr(T3, 4)} offset:{off}")
        a(f"ds_write_b128 v{VW + 3}, {vr(T4, 4)} offset:{off}")

    a("s_lshr_b32 s17, s50, 1")
    a("s_lshl_b32 s17, s17, 2")
    a("s_load_dword s54, s[72:73], s17")
    a("s_cmp_eq_u32 s51, 1")
    a("s_movk_i32 s17, 2560")
    a("s_cselect_b32 s17, 5120, s17")
    a("s_movk_i32 s53, 2112")
    a("s_cselect_b32 s53, 4160, s53")
    a("s_add_u32 s17, s17, s16")
    a("s_add_u32 s52, s17, 2480")
    a("v_and_b32 v2, 31, v1")
    a("v_lshrrev_b32 v3, 5, v1")
    a("v_lshlrev_b32 v9, 4, v1")
    a("v_add_u32 v10, s17, v9")
    a(f"v_add_u32 v{VW}, s52, v9")
    for r in range(1, 4):
        a(f"v_add_u32 v{VW + r}, s53, v{VW + r - 1}")
    for r in range(4):
        a(f"v_mov_b32 v{12 + r}, 0")
    a("ds_write_b128 v10, v[12:15]")
    a("ds_write_b128 v10, v[12:15] offset:1024")
    a("s_mov_b32 exec_hi, 0")
    a("s_mov_b32 exec_lo, 0x7ffffff")
    a("ds_write_b128 v10, v[12:15] offset:2048")
    a("s_mov_b64 exec, -1")
    a(f"v_readfirstlane_b32 s17, v{HREG}")
    a(f"v_readfirstlane_b32 s18, v{HREG + 1}")
    a("v_cmp_eq_u32 vcc, 3, v1")
    a("v_mov_b32 v16, s17")
    a("v_mov_b32 v17, s18")
    a("v_cndmask_b32 v16, 0, v16, vcc")
    a("v_cndmask_b32 v17, 0, v17, vcc")
    a("s_mov_b64 exec, 15")
    build(12, 16, 0)
    a("s_mov_b64 exec, -1")
    sk = a.newlabel("CVB")
    for i in range(4):
        if i == 2:
            a("s_cmp_eq_u32 s51, 2")
            a(f"s_cbranch_scc1 {sk}")
        build(HREG + 4 * i, HREG + 16 + 2 * i, 64 + 1024 * i)
    a.label(sk)


def conv_run(a):
    VA, VBB, VU = 4, 5, 6
    Y = 32
    FR = [96, 104, 112, 48]
    a("v_and_b32 v11, 3, v2")
    a("v_mul_lo_u32 v11, v11, s53")
    a("v_lshrrev_b32 v10, 2, v2")
    a("v_lshl_add_u32 v10, v10, 3, v11")
    a("v_lshl_add_u32 v10, v3, 4, v10")
    a(f"v_add_u32 v{VA}, s52, v10")
    a("s_cmp_eq_u32 s51, 1")
    a("s_cselect_b32 s53, 8, 4")
    a("v_sub_u32 v10, 31, v2")
    a("v_mul_u32_u24 v10, 80, v10")
    a("v_add_u32 v10, s16, v10")
    a(f"v_lshl_add_u32 v{VBB}, v3, 4, v10")
    a("v_lshlrev_b32 v11, 3, v3")
    a("v_sub_u32 v10, v10, v11")
    a(f"v_add_u32 v{VU}, 8, v10")
    for r in range(16):
        a(f"v_mov_b32 v{Y + r}, 0")
    a("s_lshl_b32 s17, s26, 2")
    a(f"s_add_u32 s17, s17, {RES + 32}")
    a("v_mov_b32 v10, s17")
    lds_wait(a, 10, 11, 1, 17, 18)
    stamp(a, 1)

    def rd(s):
        st = s % 4
        bo = (s // 2) * 80 + (s % 2) * 32
        return [f"ds_read_b64 {vr(FR[st], 2)}, v{VA} offset:{s * 32}",
                f"ds_read_b64 {vr(FR[st] + 2, 2)}, v{VA} offset:{s * 32 + 8}",
                f"ds_read_b128 {vr(FR[st] + 4, 4)}, v{VBB} offset:{bo}"]
    for s in range(3):
        for r in rd(s):
            a(r)
    a.label("CV_SEG")
    for s in range(16):
        for r in rd(s + 3):
            a(r)
        a("s_waitcnt lgkmcnt(9)")
        st = s % 4
        a(f"v_mfma_f32_32x32x16_bf16 {vr(Y, 16)}, {vr(FR[st], 4)}, {vr(FR[st] + 4, 4)}, {vr(Y, 16)}")
    a(f"v_add_u32 v{VBB}, 640, v{VBB}")
    a(f"v_add_u32 v{VA}, 512, v{VA}")
    a("s_sub_u32 s53, s53, 1")
    a("s_cmp_lg_u32 s53, 0")
    a("s_cbranch_scc1 CV_SEG")
    for q in range(4):
        a(f"ds_read_b64 {vr(64 + 2 * q, 2)}, v{VU} offset:{48 - 16 * q}")
    a("s_and_b32 s17, s50, 1")
    a("s_lshl_b32 s18, s54, 16")
    a("s_and_b32 s54, s54, 0xffff0000")
    a("s_cmp_eq_u32 s17, 0")
    a("s_cselect_b32 s54, s18, s54")
    a("v_lshlrev_b32 v11, 6, v2")
    a("v_lshl_add_u32 v11, v3, 3, v11")
    a("v_add_u32 v11, s52, v11")
    a("v_add_u32 v10, s52, v9")
    a("s_lshl_b32 s17, s50, 12")
    a("s_and_b32 s18, s51, 1")
    a("s_lshl_b32 s18, s18, 11")
    a("s_add_u32 s17, s17, s18")
    a(f"s_add_u32 s17, s17, 0x{WS_Z:x}")
    a("s_mov_b32 s18, 0xffff0000")
    a("s_waitcnt lgkmcnt(0)")
    a("s_nop 4")
    for q in range(4):
        u = 64 + 2 * q
        a(f"v_and_b32 v16, s18, v{u + 1}")
        a(f"v_lshlrev_b32 v17, 16, v{u + 1}")
        a(f"v_and_b32 v18, s18, v{u}")
        a(f"v_lshlrev_b32 v19, 16, v{u}")
        for r in range(4):
            a(f"v_fmac_f32 v{Y + 4 * q + r}, s54, v{16 + r}")
        d = 72 + 2 * q
        a(f"v_cvt_pk_bf16_f32 v{d}, v{Y + 4 * q}, v{Y + 4 * q + 1}")
        a(f"v_cvt_pk_bf16_f32 v{d + 1}, v{Y + 4 * q + 2}, v{Y + 4 * q + 3}")
        a(f"ds_write_b64 v11, {vr(d, 2)} offset:{16 * q}")
    if ZDEF:
        a("ds_read_b128 v[152:155], v10")
        a("ds_read_b128 v[156:159], v10 offset:1024")
        a("v_mov_b32 v151, v9")
        a("s_mov_b32 s39, s17")
        return
    a("ds_read_b128 v[64:67], v10")
    a("ds_read_b128 v[68:71], v10 offset:1024")
    a("s_waitcnt lgkmcnt(1)")
    a(f"buffer_store_dwordx4 v[64:67], v9, s[{SWS}:{SWS + 3}], s17 offen sc1")
    a("s_waitcnt lgkmcnt(0)")
    a(f"buffer_store_dwordx4 v[68:71], v9, s[{SWS}:{SWS + 3}], s17 offen offset:1024 sc1")


def gen(a):
    a.raw(f".globl {KNAME}")
    a.raw(".p2align 8")
    a.raw(f".type {KNAME},@function")
    a.label(KNAME)
    a("s_cmp_ge_u32 s2, 256")
    a("s_cbranch_scc1 L_END")
    a("s_load_dwordx4 s[4:7], s[0:1], 0")
    a("s_load_dwordx2 s[8:9], s[0:1], 96")
    a("s_load_dwordx2 s[60:61], s[0:1], 16")
    a("s_load_dwordx8 s[64:71], s[0:1], 32")
    a("s_load_dwordx4 s[72:75], s[0:1], 64")
    a("s_load_dwordx4 s[76:79], s[0:1], 80")
    a("v_and_b32 v1, 63, v0")
    a("v_lshrrev_b32 v2, 6, v0")
    a("s_nop 0")
    a("v_readfirstlane_b32 s26, v2")
    a("s_mov_b32 s56, 0")
    a("s_mov_b32 s57, 0")
    a("v_mov_b32 v151, 0")
    if DIAG:
        for i in range(16):
            a(f"s_mov_b32 s{80 + i}, 0")
    a("s_waitcnt lgkmcnt(0)")
    srd(a, SWS, 8, WS_SIZE)
    stamp(a, 0)
    a("s_cmp_lg_u32 s2, 0")
    a("s_cbranch_scc1 L_NOPUB")
    a("s_cmp_lg_u32 s26, 8")
    a("s_cbranch_scc1 L_NOPUB")
    a("s_memrealtime s[56:57]")
    srd(a, 16, 78, 256)
    a("s_waitcnt lgkmcnt(0)")
    a("s_or_b32 s56, s56, 1")
    a("s_not_b32 s57, s56")
    a("v_mov_b32 v2, 0")
    a("v_mov_b32 v4, s56")
    a("v_mov_b32 v5, s57")
    a("s_mov_b64 exec, 1")
    a("buffer_store_dwordx2 v[4:5], v2, s[16:19], 0 offen sc0 sc1")
    a("s_mov_b64 exec, -1")
    a.label("L_NOPUB")
    a("v_lshlrev_b32 v2, 2, v1")
    a(f"v_add_u32 v2, {RES + 8}, v2")
    a("v_mov_b32 v4, 0")
    a("s_mov_b32 exec_hi, 0")
    a("ds_write_b32 v2, v4")
    a("s_mov_b64 exec, -1")
    a("s_cmp_ge_u32 s2, 192")
    a("s_cbranch_scc1 P1_E")
    a("s_and_b32 s3, s2, 7")
    a("s_lshr_b32 s10, s2, 3")
    a("s_and_b32 s24, s3, 3")
    a("s_lshl_b32 s24, s24, 2")
    a("s_and_b32 s11, s10, 3")
    a("s_add_u32 s24, s24, s11")
    a("s_lshr_b32 s25, s3, 2")
    a("s_mul_i32 s25, s25, 6")
    a("s_lshr_b32 s10, s10, 2")
    a("s_add_u32 s25, s25, s10")
    a("s_lshl_b32 s27, s24, 7")
    a("s_lshr_b32 s28, s25, 2")
    a("s_and_b32 s29, s25, 3")
    a("s_lshl_b32 s29, s29, 3")
    a("s_lshl_b32 s55, s25, 4")
    a("s_add_u32 s55, s55, s24")
    a("s_cmp_lt_u32 s26, 8")
    a("s_cbranch_scc1 P1_COMP")
    SX, SW = 16, 20
    srd(a, SX, 4, XBYTES)
    srd(a, SW, 6, WQKV_BYTES)
    ra, rb = [int(x) for x in os.environ.get("ROT", "3,2").split(",")]
    if os.environ.get("LPRIO", "0") != "0":
        a("s_setprio " + os.environ["LPRIO"])
    a(f"s_mul_i32 s34, s11, {ra}")
    a(f"s_mul_i32 s10, s10, {rb}")
    a("s_add_u32 s34, s34, s10")
    for _ in range((3 * ra + 5 * rb) // 10):
        a("s_cmp_ge_u32 s34, 10")
        a("s_cselect_b32 s10, 10, 0")
        a("s_sub_u32 s34, s34, s10")
    a("s_sub_u32 s35, s26, 8")
    VXO, VWO = 4, 8
    a("v_lshrrev_b32 v2, 3, v1")
    a("v_and_b32 v3, 7, v1")
    a("v_lshrrev_b32 v13, 4, v1")
    a("s_lshl_b32 s10, s35, 5")
    a("s_add_u32 s10, s10, s27")
    a("v_add_u32 v2, s10, v2")
    a("s_movk_i32 s11, 1280")
    a("v_mul_lo_u32 v2, v2, s11")
    a("v_xor_b32 v14, v3, v13")
    a("v_xor_b32 v15, 4, v14")
    a("v_lshlrev_b32 v14, 4, v14")
    a("v_lshlrev_b32 v15, 4, v15")
    for i in range(4):
        a(f"v_add_u32 v{VXO + i}, {i * 8 * 1280 - 1024 * i}, v2")
        a(f"v_add_u32 v{VXO + i}, v{VXO + i}, v{14 + (i & 1)}")
    a("s_mul_i32 s10, s25, 320")
    a("s_mul_i32 s11, s35, 61440")
    a("s_add_u32 s10, s10, s11")
    a("s_movk_i32 s11, 3840")
    for i in range(5):
        a(f"v_add_u32 v2, {64 * i}, v1")
        a("v_mul_u32_u24 v3, 0xcccd, v2")
        a("v_lshrrev_b32 v3, 20, v3")
        a("v_mul_u32_u24 v14, 20, v3")
        a("v_sub_u32 v2, v2, v14")
        a("v_lshrrev_b32 v14, 3, v3")
        a("v_and_b32 v14, 1, v14")
        a("v_lshlrev_b32 v14, 1, v14")
        a("v_xor_b32 v2, v2, v14")
        a("v_lshlrev_b32 v2, 4, v2")
        a("v_mul_lo_u32 v3, v3, s11")
        a("v_add3_u32 v2, v2, v3, s10")
        comp = 1024 * i if i < 4 else 0
        if comp:
            a(f"v_subrev_u32 v{VWO + i}, {comp}, v2")
        else:
            a(f"v_mov_b32 v{VWO + i}, v2")
    a("s_lshl_b32 s42, s35, 12")
    a("s_mul_i32 s43, s35, 5120")
    a("s_add_u32 s43, s43, 16384")
    a("s_mov_b32 s32, 0")
    a("s_mov_b32 s33, 0")

    def issue_stage():
        if os.environ.get("NODMA", "0") == "1":
            return
        a("s_lshl_b32 s30, s34, 7")
        a("s_mul_i32 s31, s34, 245760")
        a("s_add_u32 m0, s32, s42")
        a("s_add_u32 s34, s34, 1")
        for i in range(4):
            o = f" offset:{1024 * i}" if i else ""
            a(f"buffer_load_dwordx4 v{VXO + i}, s[{SX}:{SX + 3}], s30 offen{o}{NT_G} lds")
        a("s_add_u32 m0, s32, s43")
        a("s_cmp_ge_u32 s34, 10")
        for i in range(4):
            o = f" offset:{1024 * i}" if i else ""
            a(f"buffer_load_dwordx4 v{VWO + i}, s[{SW}:{SW + 3}], s31 offen{o}{NT_G} lds")
        a("s_cselect_b32 s34, 0, s34")
        a("s_add_u32 m0, m0, 4096")
        a(f"s_add_u32 s32, s32, {G_STAGE}")
        a(f"buffer_load_dwordx4 v{VWO + 4}, s[{SW}:{SW + 3}], s31 offen{NT_G} lds")
        a(f"s_cmp_ge_u32 s32, {4 * G_STAGE}")
        a("s_cselect_b32 s32, 0, s32")

    srd(a, 36, 78, 256)
    a("v_mov_b32 v16, 0")
    a("v_lshlrev_b32 v20, 6, v1")
    a(f"v_add_u32 v20, 0x{WS_F1 + 192 * 64:x}, v20")
    issue_stage()
    issue_stage()
    a("s_waitcnt vmcnt(9) lgkmcnt(0)")
    a("s_barrier")
    stamp(a, 1)
    issue_stage()
    issue_stage()
    a("buffer_load_dwordx2 v[18:19], v16, s[36:39], 0 offen sc0 sc1")
    a("s_mov_b32 s33, 4")
    a.label("P1_LLOOP")
    a("s_waitcnt vmcnt(18)")
    a("s_barrier")
    issue_stage()
    a("s_add_u32 s33, s33, 1")
    a("s_cmp_lt_u32 s33, 10")
    a("s_cbranch_scc1 P1_LLOOP")
    a("s_waitcnt vmcnt(18)")
    a("s_barrier")
    nonce_check_or_poll(a, 16, 36)
    a("s_cmp_lg_u32 s26, 8")
    a("s_cbranch_scc1 P1_LNON")
    nonce_to_lds(a, 16)
    a.label("P1_LNON")
    a("s_mov_b32 s18, 40960")
    for i in range(5):
        a(f"v_add_u32 v24, {64 * i}, v1")
        a("v_mul_u32_u24 v25, 0xcccd, v24")
        a("v_lshrrev_b32 v25, 18, v25")
        a("v_mul_u32_u24 v26, 5, v25")
        a("v_sub_u32 v24, v24, v26")
        a("v_min_u32 v24, 3, v24")
        a("v_mul_lo_u32 v25, v25, s18")
        a(f"v_lshl_add_u32 v{28 + i}, v24, 4, v25")
    a(f"v_mov_b32 v24, {RES + 68}")
    a("v_mov_b32 v25, 1")

    def e_issue():
        lb = a.newlabel("EI")
        a("s_cmp_lg_u32 s26, 9")
        a(f"s_cbranch_scc1 {lb}")
        a(f"buffer_load_dwordx2 v[22:23], v20, s[{SWS}:{SWS + 3}], 0 offen sc0 sc1")
        a.label(lb)

    def e_check():
        lb = a.newlabel("EC")
        a("s_cmp_lg_u32 s26, 9")
        a(f"s_cbranch_scc1 {lb}")
        a("v_cmp_ne_u64 vcc, s[56:57], v[22:23]")
        a("s_cmp_lg_u64 vcc, 0")
        a(f"s_cbranch_scc1 {lb}")
        a("ds_write_b32 v24, v25")
        a("s_waitcnt lgkmcnt(0)")
        a.label(lb)

    a("s_waitcnt vmcnt(9)")
    a("s_barrier")
    a("s_waitcnt vmcnt(0)")
    e_issue()
    a("s_barrier")
    a("s_barrier")
    stamp(a, 2)
    a("s_waitcnt vmcnt(0)")
    e_check()
    e_issue()
    a("s_barrier")
    a("ds_read_b32 v26, v24")
    a("s_sub_u32 s35, s26, 8")
    job_params(a, 35)
    a("s_waitcnt lgkmcnt(0)")
    a("v_readfirstlane_b32 s10, v26")
    a("s_cmp_eq_u32 s10, 0")
    if os.environ.get("UFIRST", "1") == "1":
        a("s_cbranch_scc0 P1_UF")
        shared_poll(a, 9, [20], 22, 68, 4, preloaded=True)
        a.label("P1_UF")
    else:
        a("s_cbranch_scc1 P1_LATE")
    a("s_mov_b32 s33, 1")
    a("s_branch P1_HU2")
    a.label("P1_LATE")
    a("s_barrier")
    a.label("P1_HU")
    a("s_mov_b32 s33, 0")
    shared_poll(a, 9, [20], 22, 68, 4, preloaded=True)
    a.label("P1_HU2")
    u_dma(a, 28)
    a("s_add_u32 s35, s35, 4")
    job_params(a, 35)
    a("s_cmp_eq_u32 s51, 0")
    a("s_cbranch_scc1 P1_HU1")
    u_dma(a, 28)
    a.label("P1_HU1")
    a("s_cmp_eq_u32 s33, 0")
    a("s_cbranch_scc1 P1_HU3")
    a("s_barrier")
    a.label("P1_HU3")
    a("s_lshl_b32 s17, s35, 2")
    a(f"s_add_u32 s17, s17, {RES + 32 - 16}")
    a("v_mov_b32 v4, s17")
    a("v_mov_b32 v5, 1")
    a("s_waitcnt vmcnt(0)")
    a("ds_write2_b32 v4, v5, v5 offset1:4")
    stamp(a, 3)
    a("s_branch P2_COMMON")

    a.label("P1_COMP")
    VXB0, VXB1, VWE0, VWO0 = 16, 17, 18, 19
    VXC0, VXC1, VWEC, VWOC = 20, 21, 22, 23
    X0, W0, X1, W1, ACC = 28, 36, 56, 64, 84
    a("v_lshrrev_b32 v13, 4, v1")
    a("s_and_b32 s10, s26, 3")
    a("s_lshr_b32 s11, s26, 2")
    a("v_and_b32 v2, 15, v1")
    a("v_lshrrev_b32 v3, 1, v2")
    a("v_xor_b32 v3, v3, v13")
    a("s_lshl_b32 s35, s10, 5")
    a("v_add_u32 v14, s35, v2")
    a("v_lshlrev_b32 v14, 7, v14")
    a(f"v_lshl_add_u32 v{VXB0}, v3, 4, v14")
    a("v_xor_b32 v3, 4, v3")
    a(f"v_lshl_add_u32 v{VXB1}, v3, 4, v14")
    a("v_lshrrev_b32 v3, 2, v2")
    a("v_lshl_add_u32 v3, v13, 3, v3")
    a("v_mul_u32_u24 v3, 320, v3")
    a("v_and_b32 v14, 3, v1")
    a("v_lshl_add_u32 v3, v14, 3, v3")
    a("s_mul_i32 s35, s11, 160")
    a("s_add_u32 s35, s35, 16384")
    a("v_add_u32 v3, s35, v3")
    a("v_and_b32 v14, 1, v13")
    a("v_lshlrev_b32 v14, 5, v14")
    a("v_add_u32 v15, v3, v14")
    a("v_sub_u32 v14, v3, v14")
    a("s_cmp_eq_u32 s11, 0")
    a("s_cselect_b64 vcc, -1, 0")
    a("s_nop 1")
    a(f"v_cndmask_b32 v{VWE0}, v14, v15, vcc")
    a(f"v_cndmask_b32 v{VWO0}, v15, v14, vcc")
    for r in range(40):
        a(f"v_mov_b32 v{ACC + r}, 0")

    def reads(ks, XS, WS_):
        xb = VXC0 if ks == 0 else VXC1
        x = [f"ds_read_b128 {vr(XS + 4 * i, 4)}, v{xb} offset:{i * 2048}" for i in range(2)]
        w = []
        for j in range(5):
            wb = VWEC if j % 2 == 0 else VWOC
            for T in range(2):
                w.append(f"ds_read_b64_tr_b16 {vr(WS_ + 4 * j + 2 * T, 2)}, v{wb} offset:{ks * 10240 + T * 1280 + j * 32}")
        return [x[0], w[0], w[1], x[1]] + w[2:]

    def mfmas(XS, WS_, vtype):
        m = []
        for j in range(5):
            for i in range(2):
                d = ACC + (i * 5 + j) * 4
                if vtype:
                    m.append(f"v_mfma_f32_16x16x32_bf16 {vr(d, 4)}, {vr(XS + 4 * i, 4)}, {vr(WS_ + 4 * j, 4)}, {vr(d, 4)}")
                else:
                    m.append(f"v_mfma_f32_16x16x32_bf16 {vr(d, 4)}, {vr(WS_ + 4 * j, 4)}, {vr(XS + 4 * i, 4)}, {vr(d, 4)}")
        return m

    def set_bases():
        a(f"v_add_u32 v{VXC0}, s33, v{VXB0}")
        a(f"v_add_u32 v{VXC1}, s33, v{VXB1}")
        a(f"v_add_u32 v{VWEC}, s33, v{VWE0}")
        a(f"v_add_u32 v{VWOC}, s33, v{VWO0}")

    RPM = int(os.environ.get("RPM", "0"))

    def group(m, r):
        if os.environ.get("NOCOMP", "0") == "1":
            return
        if RPM == 0:
            a("s_waitcnt lgkmcnt(0)")
            k = 0
            for i, mm in enumerate(m):
                a(mm)
                for _ in range(2 if i < 2 else 1):
                    if k < len(r):
                        a(r[k]); k += 1
            return
        need = {0: 3, 1: 4, 2: 6, 4: 8, 6: 10, 8: 12}
        issued = 0
        for i, mm in enumerate(m):
            if i in need:
                a(f"s_waitcnt lgkmcnt({min(15, 12 - need[i] + issued)})")
            a(mm)
            for _ in range(RPM):
                if issued < 12:
                    a(r[issued]); issued += 1

    a("s_mov_b32 s33, 0")
    a("s_mov_b32 s34, 0")
    set_bases()
    job_params(a, 26)
    a("s_waitcnt lgkmcnt(0)")
    a("s_barrier")
    stamp(a, 1)
    for r in reads(0, X0, W0):
        a(r)
    a("s_cmp_eq_u32 s28, 2")
    a("s_cbranch_scc1 P1_LOOP_V")
    for vtype in (0, 1):
        lbl = "P1_LOOP_V" if vtype else "P1_LOOP_QK"
        a.raw(".p2align 6")
        a.label(lbl)
        group(mfmas(X0, W0, vtype), reads(1, X1, W1))
        a(f"s_add_u32 s33, s33, {G_STAGE}")
        a(f"s_cmp_ge_u32 s33, {4 * G_STAGE}")
        a("s_cselect_b32 s33, 0, s33")
        a("s_waitcnt lgkmcnt(0)")
        a("s_barrier")
        set_bases()
        group(mfmas(X1, W1, vtype), reads(0, X0, W0))
        a("s_add_u32 s34, s34, 1")
        if HPOS == 0:
            a("s_cmp_lg_u32 s34, 5")
            a(f"s_cbranch_scc1 {lbl}_NH")
            h_load(a)
            a.label(f"{lbl}_NH")
        a("s_cmp_lt_u32 s34, 10")
        a(f"s_cbranch_scc1 {lbl}")
        a("s_waitcnt lgkmcnt(0)")
        a("s_barrier")
        stamp(a, 2)
        if HPOS == 1:
            a("s_cmp_eq_u32 s51, 0")
            a(f"s_cbranch_scc1 {lbl}_NH")
            h_load(a)
            a.label(f"{lbl}_NH")

        a("s_mul_i32 s35, s11, 80")
        OFFJ = 28
        if not vtype:
            a("s_lshl_b32 s44, s10, 5")
            a("v_add_u32 v3, s44, v2")
            a("v_mul_u32_u24 v3, 48, v3")
            a("v_lshlrev_b32 v14, 2, v13")
            a("v_add_u32 v14, s35, v14")
            for j in range(5):
                a(f"v_add_u32 v15, {16 * j}, v14")
                a("v_mul_u32_u24 v24, 0xcccd, v15")
                a("v_lshrrev_b32 v24, 20, v24")
                a("v_mul_u32_u24 v25, 20, v24")
                a("v_sub_u32 v25, v15, v25")
                a("v_mul_u32_u24 v24, 6144, v24")
                a("v_lshl_add_u32 v24, v25, 1, v24")
                a(f"v_add_u32 v{OFFJ + j}, v24, v3")
            qs = math.log2(math.e) / math.sqrt(20.0)
            a(f"s_mov_b32 s44, {f32hex(qs)}")
            a("s_cmp_eq_u32 s28, 0")
            a("s_cselect_b32 s44, s44, 1.0")
            for i in range(2):
                for j in range(5):
                    d = ACC + (i * 5 + j) * 4
                    t = 36 + ((i * 5 + j) % 4) * 2
                    for r in range(4):
                        a(f"v_mul_f32 v{d + r}, s44, v{d + r}")
                    a(f"v_cvt_pk_bf16_f32 v{t}, v{d}, v{d + 1}")
                    a(f"v_cvt_pk_bf16_f32 v{t + 1}, v{d + 2}, v{d + 3}")
                    a(f"ds_write_b64 v{OFFJ + j}, {vr(t, 2)} offset:{768 * i}")
            a("s_movk_i32 s45, 6144")
            a("s_mul_i32 s46, s29, 98304")
            a("s_mul_i32 s48, s27, 48")
            a("s_add_u32 s46, s46, s48")
            a(f"s_add_u32 s46, s46, 0x{WS_Q:x}")
            a("s_mul_i32 s48, s29, 196608")
            a("s_lshr_b32 s49, s27, 8")
            a("s_mul_i32 s49, s49, 24576")
            a("s_add_u32 s48, s48, s49")
            a("s_and_b32 s49, s27, 255")
            a("s_mul_i32 s49, s49, 48")
            a("s_add_u32 s48, s48, s49")
            a(f"s_add_u32 s48, s48, 0x{WS_KV:x}")
            a("s_cmp_eq_u32 s28, 0")
            a("s_cselect_b32 s46, s46, s48")
            a("s_mov_b32 s48, 196608")
            a("s_cselect_b32 s47, 98304, s48")
            a("s_branch P1_COPY")
        else:
            a("v_lshrrev_b32 v3, 1, v13")
            a("s_lshl_b32 s44, s10, 2")
            a("v_add_u32 v3, s44, v3")
            a("v_mul_u32_u24 v3, 352, v3")
            a("v_and_b32 v14, 1, v13")
            a("v_lshl_add_u32 v3, v14, 3, v3")
            a("v_add_u32 v14, s35, v2")
            for j in range(5):
                a(f"v_add_u32 v15, {16 * j}, v14")
                a("v_mul_u32_u24 v24, 0xcccd, v15")
                a("v_lshrrev_b32 v24, 20, v24")
                a("v_mul_u32_u24 v25, 20, v24")
                a("v_sub_u32 v25, v15, v25")
                a("v_mul_u32_u24 v24, 5632, v24")
                a("v_lshl_add_u32 v24, v25, 4, v24")
                a(f"v_add_u32 v{OFFJ + j}, v24, v3")
            for i in range(2):
                for j in range(5):
                    d = ACC + (i * 5 + j) * 4
                    t = 36 + ((i * 5 + j) % 4) * 2
                    a(f"v_cvt_pk_bf16_f32 v{t}, v{d}, v{d + 1}")
                    a(f"v_cvt_pk_bf16_f32 v{t + 1}, v{d + 2}, v{d + 3}")
                    a(f"ds_write_b64 v{OFFJ + j}, {vr(t, 2)} offset:{704 * i}")
            a("s_mul_i32 s44, s26, 5632")
            a("v_mul_u32_u24 v14, 352, v1")
            a("v_add_u32 v3, s44, v14")
            for r in range(4):
                a(f"v_mov_b32 v{44 + r}, 0x3f803f80")
                a(f"v_mov_b32 v{48 + r}, 0")
            a("s_mov_b64 exec, 0xffff")
            a("ds_write_b128 v3, v[44:47] offset:320")
            a("ds_write_b128 v3, v[48:51] offset:336")
            a("s_mov_b64 exec, -1")
            a("s_movk_i32 s45, 5632")
            a("s_mul_i32 s46, s29, 196608")
            a("s_lshr_b32 s49, s27, 8")
            a("s_mul_i32 s49, s49, 24576")
            a("s_add_u32 s46, s46, s49")
            a("s_and_b32 s49, s27, 255")
            a("s_mul_i32 s49, s49, 44")
            a("s_add_u32 s46, s46, s49")
            a(f"s_add_u32 s46, s46, 0x{WS_KV + 12288:x}")
            a("s_mov_b32 s47, 196608")
    a.label("P1_COPY")
    a("s_waitcnt lgkmcnt(0)")
    a("s_barrier")
    a("s_cmp_lt_u32 s26, 4")
    a("s_cbranch_scc1 P15_CONV")
    a("v_lshlrev_b32 v2, 4, v1")
    a("s_sub_u32 s10, s26, 4")
    a("s_lshl_b32 s10, s10, 1")
    a("s_mul_i32 s11, s10, s45")
    a("s_mul_i32 s48, s10, s47")
    a("s_add_u32 s46, s46, s48")
    a("v_add_u32 v3, s11, v2")
    a("v_add_u32 v14, s45, v3")
    a("s_add_u32 s48, s46, s47")
    a("s_add_u32 s49, s46, 4096")
    a("s_add_u32 s38, s48, 4096")
    for h in range(2):
        for i in range(6):
            a(f"ds_read_b128 {vr(28 + (h * 6 + i) * 4, 4)}, v{3 if h == 0 else 14} offset:{1024 * i}")
    a("v_add_u32 v15, 5120, v2")
    a("v_cmp_gt_u32 vcc, s45, v15")
    for h in range(2):
        for i in range(5):
            a(f"s_waitcnt lgkmcnt({11 - (h * 6 + i)})")
            so = (46 if h == 0 else 48) if i < 4 else (49 if h == 0 else 38)
            a(f"buffer_store_dwordx4 {vr(28 + (h * 6 + i) * 4, 4)}, v2, s[{SWS}:{SWS + 3}], s{so} offen offset:{1024 * (i % 4)} sc1")
    a("s_waitcnt lgkmcnt(0)")
    a("s_and_saveexec_b64 s[36:37], vcc")
    a(f"buffer_store_dwordx4 {vr(28 + 5 * 4, 4)}, v2, s[{SWS}:{SWS + 3}], s49 offen offset:1024 sc1")
    a(f"buffer_store_dwordx4 {vr(28 + 11 * 4, 4)}, v2, s[{SWS}:{SWS + 3}], s38 offen offset:1024 sc1")
    a("s_mov_b64 exec, s[36:37]")
    a("s_branch P1_SIGNAL")

    a.label("P1_E")
    SK, SV, SSH = 16, 20, 44
    a("s_sub_u32 s24, s2, 192")
    a("s_mov_b32 s55, s2")
    a("s_cmp_ge_u32 s26, 10")
    a("s_cbranch_scc1 P1_E_B1")
    srd(a, SK, 64, XBYTES)
    srd(a, SV, 66, XBYTES)
    srd(a, SSH, 68, 640 * 8)
    a("s_lshl_b32 s25, s24, 5")
    a("s_movk_i32 s27, 5120")
    a("s_movk_i32 s28, 1280")
    KR, VR_, WB, T = 16, 38, 56, 64
    a("v_mul_u32_u24 v3, 0xcccd, v0")
    a("v_lshrrev_b32 v3, 23, v3")
    a("v_mul_u32_u24 v4, 160, v3")
    a("v_sub_u32 v4, v0, v4")
    a("v_lshlrev_b32 v5, 3, v3")
    a("v_add_u32 v5, s25, v5")
    a("v_mul_lo_u32 v6, v5, s28")
    a("v_lshl_add_u32 v6, v4, 3, v6")
    a("v_subrev_u32 v7, 3840, v6")
    a("v_cmp_eq_u32 vcc, 0, v5")
    a(f"v_mov_b32 v8, 0x{OOB:x}")
    a("v_lshlrev_b32 v9, 5, v4")
    a("v_cndmask_b32 v7, v7, v8, vcc")
    a("v_mul_u32_u24 v10, 320, v4")
    a("v_sub_u32 v11, 3, v3")
    a("v_lshl_add_u32 v54, v11, 4, v10")
    if os.environ.get("NOE", "0") == "1":
        a("v_mov_b32 v6, v8")
        a("v_mov_b32 v7, v8")
    for r in range(3):
        a(f"buffer_load_dwordx2 {vr(KR + 2 * r, 2)}, v7, s[{SK}:{SK + 3}], 0 offen offset:{1280 * r}{NT_E}")
    for r in range(8):
        so = "0" if r < 4 else "s27"
        a(f"buffer_load_dwordx2 {vr(KR + 6 + 2 * r, 2)}, v6, s[{SK}:{SK + 3}], {so} offen offset:{1280 * (r % 4)}{NT_E}")
    for r in range(8):
        so = "0" if r < 4 else "s27"
        a(f"buffer_load_dwordx2 {vr(VR_ + 2 * r, 2)}, v6, s[{SV}:{SV + 3}], {so} offen offset:{1280 * (r % 4)}{NT_E}")
    a(f"buffer_load_dwordx4 {vr(WB, 4)}, v9, s[{SSH}:{SSH + 3}], 0 offen")
    a(f"buffer_load_dwordx4 {vr(WB + 4, 4)}, v9, s[{SSH}:{SSH + 3}], 0 offen offset:16")
    stamp(a, 1)
    a("s_mov_b32 s29, 0xffff0000")
    a("s_waitcnt vmcnt(0)")
    a("s_cmp_ge_u32 s26, 8")
    a("s_cbranch_scc1 P1_E_NOH")
    job_params(a, 26)
    a("s_cmp_eq_u32 s51, 0")
    a("s_cbranch_scc1 P1_E_NOH")
    h_load(a)
    a.label("P1_E_NOH")
    for ch in range(4):
        KF, WF, UO = T, T + 11, 4
        dw, hi = ch // 2, ch % 2
        for r in range(11):
            if hi == 0:
                a(f"v_lshlrev_b32 v{KF + r}, 16, v{KR + 2 * r + dw}")
            else:
                a(f"v_and_b32 v{KF + r}, s29, v{KR + 2 * r + dw}")
        w = WB + 2 * ch
        a(f"v_lshlrev_b32 v{WF}, 16, v{w}")
        a(f"v_and_b32 v{WF + 1}, s29, v{w}")
        a(f"v_lshlrev_b32 v{WF + 2}, 16, v{w + 1}")
        a(f"v_and_b32 v{WF + 3}, s29, v{w + 1}")
        for r in range(8):
            a(f"v_mul_f32 v{UO + r}, v{WF + 3}, v{KF + r}")
            a(f"v_fmac_f32 v{UO + r}, v{WF + 2}, v{KF + r + 1}")
            a(f"v_fmac_f32 v{UO + r}, v{WF + 1}, v{KF + r + 2}")
            a(f"v_fmac_f32 v{UO + r}, v{WF}, v{KF + r + 3}")
            if hi == 0:
                a(f"v_lshlrev_b32 v{T + 15}, 16, v{VR_ + 2 * r + dw}")
            else:
                a(f"v_and_b32 v{T + 15}, s29, v{VR_ + 2 * r + dw}")
            a(f"v_mul_f32 v{UO + r}, v{UO + r}, v{T + 15}")
        for d in range(4):
            a(f"v_cvt_pk_bf16_f32 v{12 + d}, v{UO + 7 - 2 * d}, v{UO + 6 - 2 * d}")
        a(f"ds_write_b128 v54, v[12:15] offset:{80 * ch}")
        a("s_nop 0")
    a("s_waitcnt lgkmcnt(0)")
    a.label("P1_E_B1")
    a("s_cmp_lt_u32 s26, 8")
    a("s_cbranch_scc1 P1_E_NON")
    srd(a, 36, 78, 256)
    a("v_mov_b32 v16, 0")
    a("v_mov_b32 v18, 0")
    a("v_mov_b32 v19, 0")
    nonce_check_or_poll(a, 16, 36)
    nonce_to_lds(a, 16)
    a.label("P1_E_NON")
    a("s_barrier")
    stamp(a, 2)
    a("s_cmp_lt_u32 s26, 4")
    a("s_cbranch_scc1 P15_CONV")
    a("s_cmp_lt_u32 s26, 8")
    a("s_cbranch_scc1 P1_E_COPY")
    a("v_lshlrev_b32 v20, 6, v1")
    a(f"v_add_u32 v20, 0x{WS_F1 + 192 * 64:x}, v20")
    a("v_mov_b32 v22, 0")
    a("v_mov_b32 v23, 0")
    a("s_mov_b32 s18, 40960")
    for i in range(5):
        a(f"v_add_u32 v24, {64 * i}, v1")
        a("v_mul_u32_u24 v25, 0xcccd, v24")
        a("v_lshrrev_b32 v25, 18, v25")
        a("v_mul_u32_u24 v26, 5, v25")
        a("v_sub_u32 v24, v24, v26")
        a("v_min_u32 v24, 3, v24")
        a("v_mul_lo_u32 v25, v25, s18")
        a(f"v_lshl_add_u32 v{28 + i}, v24, 4, v25")
    a("s_sub_u32 s35, s26, 8")
    job_params(a, 35)
    a("s_branch P1_HU")
    a.label("P1_E_COPY")
    a("v_lshrrev_b32 v2, 2, v1")
    a("v_mul_u32_u24 v2, 80, v2")
    a("v_and_b32 v3, 3, v1")
    a("v_lshl_add_u32 v2, v3, 4, v2")
    a("s_sub_u32 s11, s26, 4")
    a("s_mul_i32 s10, s11, 12800")
    a("v_add_u32 v2, s10, v2")
    a("v_lshlrev_b32 v3, 4, v1")
    a("s_sub_u32 s10, 63, s24")
    a("s_mul_i32 s10, s10, 40960")
    a("s_mul_i32 s11, s11, 10240")
    a("s_add_u32 s10, s10, s11")
    a(f"s_add_u32 s10, s10, 0x{WS_U:x}")
    a("s_add_u32 s11, s10, 4096")
    a("s_add_u32 s29, s10, 8192")
    for i in range(10):
        a(f"ds_read_b128 {vr(16 + 4 * i, 4)}, v2 offset:{1280 * i}")
    for i in range(10):
        a(f"s_waitcnt lgkmcnt({9 - i})")
        so = [10, 11, 29][i // 4]
        a(f"buffer_store_dwordx4 {vr(16 + 4 * i, 4)}, v3, s[{SWS}:{SWS + 3}], s{so} offen offset:{1024 * (i % 4)} sc1")
    a.label("P1_SIGNAL")
    read_nonce(a, 4)
    a(f"v_mov_b32 v4, {RES + 16}")
    a("v_mov_b32 v5, 1")
    a("s_waitcnt vmcnt(0)")
    a("s_mov_b64 exec, 1")
    a("ds_add_rtn_u32 v6, v4, v5")
    a("s_waitcnt lgkmcnt(0)")
    a("v_readfirstlane_b32 s10, v6")
    a("s_mov_b64 exec, -1")
    a("s_cmp_lg_u32 s10, 3")
    a("s_cbranch_scc1 P1_NOSIG")
    write_flag(a, WS_F1, 55, 4)
    a.label("P1_NOSIG")
    stamp(a, 3)
    a("s_cmp_eq_u32 s51, 0")
    a("s_cbranch_scc1 P2_COMMON")

    a.label("P15_CONV")
    if HPOS == 3:
        a("s_cmp_ge_u32 s2, 192")
        a("s_cbranch_scc1 P15_NH")
        h_load(a)
        a.label("P15_NH")
    a("s_waitcnt vmcnt(0)")
    conv_build(a)
    conv_run(a)
    read_nonce(a, 16)
    stamp(a, 3)

    a.label("P2_COMMON")
    a("v_and_b32 v2, 31, v1")
    a("v_lshrrev_b32 v3, 5, v1")
    a("s_and_b32 s24, s2, 7")
    a("s_lshl_b32 s24, s24, 2")
    a("s_lshr_b32 s10, s2, 3")
    a("s_and_b32 s10, s10, 3")
    a("s_add_u32 s24, s24, s10")
    a("s_lshr_b32 s25, s2, 5")
    a("s_mul_i32 s27, s24, 196608")
    a(f"s_add_u32 s27, s27, 0x{WS_KV:x}")
    a("s_cmp_ge_u32 s26, 8")
    a("s_cbranch_scc1 P2_HELP")

    VK, VKH, VV = 5, 6, 7
    QLO, QHI = 8, 12
    KB = [16, 24]
    VB, P = 32, 40
    S = [48, 64]
    O, NM, TMP = 80, 96, 112
    a("v_and_b32 v14, 0x13, v2")
    a("v_and_b32 v15, 4, v2")
    a("v_lshl_or_b32 v14, v15, 1, v14")
    a("v_and_b32 v15, 8, v2")
    a("v_lshrrev_b32 v15, 1, v15")
    a("v_or_b32 v14, v14, v15")
    a("v_mul_u32_u24 v14, 48, v14")
    a(f"v_add_u32 v{TMP}, 32, v14")
    a(f"v_lshl_add_u32 v{TMP + 1}, v3, 4, v14")
    a("v_min_u32 v14, 21, v2")
    a("v_lshlrev_b32 v14, 4, v14")
    a("v_mul_u32_u24 v15, 352, v3")
    a(f"v_add_u32 v{TMP + 2}, v14, v15")
    a(f"v_add_u32 v{TMP + 2}, 12288, v{TMP + 2}")
    a(f"v_mov_b32 v{VK}, v{TMP + 1}")
    a(f"v_mov_b32 v{VKH}, v{TMP}")
    a(f"v_mov_b32 v{VV}, v{TMP + 2}")
    a("s_lshl_b32 s10, s26, 5")
    a("v_add_u32 v14, s10, v2")
    a("v_mul_u32_u24 v14, 48, v14")
    a(f"v_add_u32 v14, {QST}, v14")
    a("v_lshl_add_u32 v15, v3, 4, v14")
    for r in range(16):
        a(f"v_mov_b32 v{O + r}, 0")
    for r in range(4):
        a(f"v_mov_b32 v{P + 4 + r}, 0")
        a(f"v_mov_b32 v{VB + 4 + r}, 0")

    def kread(buf, tile):
        return [f"ds_read_b128 {vr(KB[buf], 4)}, v{VK} offset:{tile * 1536}",
                f"ds_read_b64 {vr(KB[buf] + 4, 2)}, v{VKH} offset:{tile * 1536}"]

    def qk1(sb, kb, c):
        return f"v_mfma_f32_32x32x16_bf16 {vr(S[sb], 16)}, {vr(KB[kb], 4)}, {vr(QLO, 4)}, {c}"

    def qk2(sb, kb):
        return f"v_mfma_f32_32x32x8_bf16 {vr(S[sb], 16)}, {vr(KB[kb] + 4, 2)}, {vr(QHI, 2)}, {vr(S[sb], 16)}"

    pv1 = f"v_mfma_f32_32x32x16_bf16 {vr(O, 16)}, {vr(VB, 4)}, {vr(P, 4)}, {vr(O, 16)}"
    pv2 = f"v_mfma_f32_32x32x16_bf16 {vr(O, 16)}, {vr(VB + 4, 4)}, {vr(P + 4, 4)}, {vr(O, 16)}"
    a("v_cmp_eq_u32 vcc, 0, v3")
    a("s_waitcnt lgkmcnt(0)")
    a("s_barrier")
    stamp(a, 4)
    a(f"ds_read_b128 {vr(QLO, 4)}, v15")
    a(f"ds_read_b64 {vr(QHI, 2)}, v14 offset:32")
    for r in kread(0, 0) + kread(1, 1):
        a(r)
    a(f"ds_read_b128 {vr(VB, 4)}, v{VV}")
    a("s_waitcnt lgkmcnt(3)")
    a(f"v_cndmask_b32 v{QHI}, 0, v{QHI}, vcc")
    a(f"v_cndmask_b32 v{QHI + 1}, 0, v{QHI + 1}, vcc")
    a(qk1(0, 0, "0"))
    a("s_nop 0")
    a(qk2(0, 0))
    a("s_nop 15")
    a("s_nop 3")
    s0 = S[0]
    a(f"v_max3_f32 v14, v{s0}, v{s0 + 1}, v{s0 + 2}")
    for r in range(3, 15, 2):
        a(f"v_max3_f32 v14, v14, v{s0 + r}, v{s0 + r + 1}")
    a(f"v_max_f32 v14, v14, v{s0 + 15}")
    a("v_mov_b32 v15, v14")
    a("s_nop 1")
    a("v_permlane32_swap_b32 v14, v15")
    a("s_nop 1")
    a("v_max_f32 v14, v14, v15")
    for r in range(16):
        a(f"v_sub_f32 v{NM + r}, 0, v14")
    for r in range(16):
        a(f"v_sub_f32 v{s0 + r}, v{s0 + r}, v14")
    if ZDEF:
        a("s_cmp_eq_u32 s51, 0")
        a("s_cbranch_scc1 P2_NOZ")
        a(f"buffer_store_dwordx4 v[152:155], v151, s[{SWS}:{SWS + 3}], s39 offen sc1")
        a(f"buffer_store_dwordx4 v[156:159], v151, s[{SWS}:{SWS + 3}], s39 offen offset:1024 sc1")
        a.label("P2_NOZ")
    if os.environ.get("APRIO", "0") != "0":
        a("s_cmp_lt_u32 s26, 4")
        a("s_cbranch_scc1 P2_NOPR")
        a("s_setprio " + os.environ["APRIO"])
        a.label("P2_NOPR")
    a("s_mov_b32 s30, 0")
    a(f"s_mov_b32 s32, {SLOT}")
    a("s_mov_b32 s33, 0")
    a.raw(".p2align 6")
    a.label("P2_LOOP")
    for t in range(8):
        cur, nxt = t % 2, (t + 1) % 2
        sc = S[cur]

        def ex(r):
            return f"v_exp_f32 v{sc + r}, v{sc + r}"

        def cv(p):
            return f"v_cvt_pk_bf16_f32 v{P + p}, v{sc + 2 * p}, v{sc + 2 * p + 1}"

        a("s_waitcnt lgkmcnt(1)")
        a(qk1(nxt, nxt, vr(NM, 16)))
        a(ex(0)); a(ex(1)); a(ex(2)); a(ex(3)); a(cv(0))
        a(pv2)
        a(f"ds_read_b128 {vr(VB + 4, 4)}, v{VV} offset:{t * 1408 + 704}")
        a(ex(4)); a(cv(1)); a(ex(5)); a(ex(6)); a(ex(7)); a(cv(2))
        a(qk2(nxt, nxt))
        if t == 6:
            a(f"v_add_u32 v{VK}, s32, v{VK}")
            a(f"v_add_u32 v{VKH}, s32, v{VKH}")
        for r in kread(cur, (t + 2) % 8):
            a(r)
        a(ex(8)); a(cv(3)); a(ex(9)); a(ex(10))
        if t == 5:
            a("s_waitcnt vmcnt(0)")
            a("s_barrier")
        a(ex(11)); a(cv(4))
        a("s_waitcnt lgkmcnt(3)")
        a(pv1)
        if t == 7:
            a(f"v_add_u32 v{VV}, s32, v{VV}")
        a(f"ds_read_b128 {vr(VB, 4)}, v{VV} offset:{((t + 1) % 8) * 1408}")
        a(ex(12)); a(cv(5)); a(ex(13)); a(ex(14)); a(ex(15)); a(cv(6)); a(cv(7))
    a("s_add_u32 s33, s33, 1")
    a("s_cmp_eq_u32 s33, 3")
    a("s_cselect_b32 s33, 0, s33")
    a("s_cmp_eq_u32 s33, 2")
    a(f"s_mov_b32 s32, {SLOT}")
    a(f"s_cselect_b32 s32, {(-2 * SLOT) & 0xffffffff}, s32")
    a("s_add_u32 s30, s30, 1")
    a("s_cmp_lt_u32 s30, 8")
    a("s_cbranch_scc1 P2_LOOP")
    a("s_waitcnt lgkmcnt(0)")
    a(pv2)
    stamp(a, 5)
    a("s_nop 15")
    a(f"v_mov_b32 v14, v{O + 8}")
    a(f"v_mov_b32 v15, v{O + 8}")
    a("s_nop 1")
    a("v_permlane32_swap_b32 v14, v15")
    a("s_mov_b32 s10, 0x53800000")
    a("s_nop 0")
    a("v_cmp_nge_f32 vcc, s10, v15")
    a("s_cmp_eq_u64 vcc, 0")
    a("s_cbranch_scc1 P2_STORE")
    a("v_mov_b32 v14, 0xff800000")
    for r in range(16):
        a(f"v_mov_b32 v{O + r}, 0")
    a("s_mov_b32 s31, 0")
    a.label("P2_SPASS")
    a("s_mov_b32 s30, 0")
    a("s_mov_b32 s29, s27")
    a.label("P2_SCHUNK")
    a("s_mov_b32 s28, s29")
    a("s_mov_b32 s34, s29")
    a("s_mov_b32 s33, 0")
    a.label("P2_STILE")
    a(f"buffer_load_dwordx4 {vr(KB[0], 4)}, v{TMP + 1}, s[{SWS}:{SWS + 3}], s28 offen sc1")
    a(f"buffer_load_dwordx2 {vr(KB[0] + 4, 2)}, v{TMP}, s[{SWS}:{SWS + 3}], s28 offen sc1")
    a(f"buffer_load_dwordx4 {vr(VB, 4)}, v{TMP + 2}, s[{SWS}:{SWS + 3}], s34 offen sc1")
    a(f"buffer_load_dwordx4 {vr(VB + 4, 4)}, v{TMP + 2}, s[{SWS}:{SWS + 3}], s34 offen offset:704 sc1")
    a("s_waitcnt vmcnt(0)")
    a(qk1(0, 0, "0"))
    a(qk2(0, 0))
    a("s_nop 15")
    a("s_nop 3")
    a("s_cmp_lg_u32 s31, 0")
    a("s_cbranch_scc1 P2_SEXP")
    for r in range(0, 16, 2):
        a(f"v_max3_f32 v14, v14, v{s0 + r}, v{s0 + r + 1}")
    a("s_branch P2_SNEXT")
    a.label("P2_SEXP")
    for r in range(16):
        a(f"v_sub_f32 v{s0 + r}, v{s0 + r}, v14")
    for r in range(16):
        a(f"v_exp_f32 v{s0 + r}, v{s0 + r}")
    a("s_nop 0")
    for p in range(8):
        a(f"v_cvt_pk_bf16_f32 v{P + p}, v{s0 + 2 * p}, v{s0 + 2 * p + 1}")
    a("s_nop 1")
    a(pv1)
    a(pv2)
    a.label("P2_SNEXT")
    a("s_add_u32 s28, s28, 1536")
    a("s_add_u32 s34, s34, 1408")
    a("s_add_u32 s33, s33, 1")
    a("s_cmp_lt_u32 s33, 8")
    a("s_cbranch_scc1 P2_STILE")
    a(f"s_add_u32 s29, s29, {SLOT}")
    a("s_add_u32 s30, s30, 1")
    a("s_cmp_lt_u32 s30, 8")
    a("s_cbranch_scc1 P2_SCHUNK")
    a("s_cmp_lg_u32 s31, 0")
    a("s_cbranch_scc1 P2_SDONE")
    a("v_mov_b32 v15, v14")
    a("s_nop 1")
    a("v_permlane32_swap_b32 v14, v15")
    a("s_nop 1")
    a("v_max_f32 v14, v14, v15")
    a("s_mov_b32 s31, 1")
    a("s_branch P2_SPASS")
    a.label("P2_SDONE")
    a("s_nop 15")
    a(f"v_mov_b32 v14, v{O + 8}")
    a(f"v_mov_b32 v15, v{O + 8}")
    a("s_nop 1")
    a("v_permlane32_swap_b32 v14, v15")
    a("s_nop 1")
    a.label("P2_STORE")
    a("v_rcp_f32 v15, v15")
    a("s_lshl_b32 s10, s25, 8")
    a("s_lshl_b32 s11, s26, 5")
    a("s_add_u32 s10, s10, s11")
    a("v_add_u32 v16, s10, v2")
    a("v_lshrrev_b32 v17, 4, v16")
    a("v_mul_u32_u24 v17, 20480, v17")
    a("v_and_b32 v16, 15, v16")
    a("v_lshl_add_u32 v17, v16, 4, v17")
    a(f"v_add_u32 v17, 0x{WS_O:x}, v17")
    a("s_lshr_b32 s10, s24, 1")
    a("s_mul_i32 s10, s10, 5")
    a("s_and_b32 s11, s24, 1")
    a("s_lshl_b32 s28, s11, 1")
    a("s_add_u32 s28, s28, s10")
    a("v_add_u32 v18, s28, v3")
    a("v_lshl_add_u32 v28, v18, 8, v17")
    a("s_add_u32 s10, s10, 4")
    a("s_lshl_b32 s10, s10, 8")
    a("s_lshl_b32 s11, s11, 3")
    a("s_add_u32 s10, s10, s11")
    a("v_add_u32 v29, s10, v17")
    for r in range(12):
        a(f"v_mul_f32 v{O + r}, v{O + r}, v15")
    for p in range(6):
        a(f"v_cvt_pk_bf16_f32 v{20 + p}, v{O + 2 * p}, v{O + 2 * p + 1}")
    a(f"buffer_store_dwordx4 v[20:23], v28, s[{SWS}:{SWS + 3}], 0 offen sc1")
    a("s_mov_b32 exec_hi, 0")
    a(f"buffer_store_dwordx2 v[24:25], v29, s[{SWS}:{SWS + 3}], 0 offen sc1")
    a("s_mov_b32 exec_hi, -1")
    a("s_lshl_b32 s28, s24, 3")
    a("s_add_u32 s28, s28, s25")
    a("s_lshl_b32 s28, s28, 3")
    a("s_add_u32 s28, s28, s26")
    a("s_cmp_ge_u32 s26, 4")
    a("s_cbranch_scc1 P2_DONE_HI")

    SO = 16
    srd(a, SO, 76, XBYTES)
    OF, ACC3 = 32, 112
    WF = [132, 8]
    a("v_lshlrev_b32 v5, 4, v1")
    a("s_lshl_b32 s3, s24, 2")
    a("s_add_u32 s3, s3, s26")
    a("s_mul_i32 s32, s3, 20480")
    a(f"s_add_u32 s32, s32, 0x{WS_O:x}")
    a("s_lshl_b32 s36, s3, 4")
    a("s_mul_i32 s40, s36, 1280")
    a("s_mul_i32 s41, s26, 2560")
    a(f"s_add_u32 s41, s41, {L_X}")
    a("v_and_b32 v2, 15, v1")
    a("v_lshrrev_b32 v3, 4, v1")
    a("v_lshrrev_b32 v6, 2, v2")
    a("v_lshl_add_u32 v6, v3, 2, v6")
    a("v_and_b32 v7, 3, v1")
    WBASE = 158
    a("v_lshrrev_b32 v28, 2, v2")
    a("v_mul_u32_u24 v28, 160, v28")
    a("v_lshl_add_u32 v28, v7, 3, v28")
    a(f"v_add_u32 v28, {L_WO}, v28")
    for k5 in range(5):
        for T in range(2):
            rows = []
            for g in range(4):
                j, i = divmod(4 * k5 + g, 5)
                rows.append(40 * j + (20 * (i // 2) + 4 * (i % 2) + 8 * T if i < 4 else 16 + 20 * T))
            pk = rows[0] | rows[1] << 8 | rows[2] << 16 | rows[3] << 24
            a(f"s_mov_b32 s10, 0x{pk:x}")
            a("v_lshlrev_b32 v29, 3, v3")
            a("v_lshrrev_b32 v29, v29, s10")
            a("v_and_b32 v29, 0xff, v29")
            a("v_mul_u32_u24 v29, 160, v29")
            a(f"v_add_u32 v{WBASE + 2 * k5 + T}, v29, v28")
    a("v_lshlrev_b32 v30, 7, v6")
    a("v_lshl_add_u32 v30, v7, 3, v30")
    a("s_lshl_b32 s37, s26, 5")
    a(f"s_add_u32 s37, s37, {L_Z}")
    a("v_add_u32 v30, s37, v30")
    a("v_mul_u32_u24 v31, 160, v2")
    a("v_lshl_add_u32 v31, v3, 3, v31")
    a("v_add_u32 v31, s41, v31")
    a("v_lshlrev_b32 v7, 2, v2")
    a("s_lshl_b32 s36, s36, 2")
    a(f"s_add_u32 s36, s36, 0x{WS_G:x}")
    for r in range(20):
        a(f"v_mov_b32 v{ACC3 + r}, 0")
    a(f"v_mov_b32 v156, {RES + 64}")
    a("s_waitcnt vmcnt(0)")
    write_flag(a, WS_F2, 28, 152)
    stamp(a, 6)
    a(f"buffer_load_dword v6, v7, s[{SWS}:{SWS + 3}], s36 offen sc1")

    def wreads(ks, st):
        k2 = (ks // 5) % 2
        return [f"ds_read_b64_tr_b16 {vr(WF[st] + 4 * j + 2 * T, 2)}, v{WBASE + 2 * (ks % 5) + T} offset:{k2 * 25600 + j * 32}"
                for j in range(5) for T in range(2)]

    a("s_mul_i32 s3, s25, 160")
    a("s_movk_i32 s10, 1280")
    for i in range(3):
        a(f"v_add_u32 v155, {64 * i}, v1")
        a("v_mul_u32_u24 v28, 0xcccd, v155")
        a("v_lshrrev_b32 v28, 19, v28")
        a("v_mul_u32_u24 v29, 10, v28")
        a("v_sub_u32 v155, v155, v29")
        a("v_mul_lo_u32 v28, v28, s10")
        a("v_lshl_add_u32 v155, v155, 4, v28")
        a(f"v_add_u32 v{152 + i}, s3, v155")
    lds_wait(a, 156, 157, 4, 10, 11)
    a("s_lshr_b32 s10, s26, 1")
    a("s_lshl_b32 s10, s10, 2")
    a(f"s_add_u32 s10, s10, {RES + 88}")
    a("v_mov_b32 v156, s10")
    a("s_mov_b32 s44, 0")
    a("s_mov_b32 s45, 0")
    a.label("P3_WAIT")
    a("ds_read_b32 v157, v156")
    a("s_waitcnt lgkmcnt(0)")
    a("v_readfirstlane_b32 s46, v157")
    a("s_add_u32 s45, s45, 1")
    a(f"s_cmp_gt_u32 s45, {POLL_LIMIT * 8}")
    a("s_cselect_b32 s46, -1, s46")
    a("s_mov_b32 s47, 0")
    for gam in range(4):
        a(f"s_bfe_u32 s10, s46, 0x{0x80000 + 8 * gam:x}")
        a("s_cmp_eq_u32 s10, 0xff")
        a(f"s_cselect_b32 s10, {1 << gam}, 0")
        a("s_or_b32 s47, s47, s10")
    a("s_andn2_b32 s47, s47, s44")
    a("s_cmp_eq_u32 s47, 0")
    a("s_cbranch_scc1 P3_WAIT")
    for gam in range(4):
        a(f"s_bitcmp0_b32 s47, {gam}")
        a(f"s_cbranch_scc1 P3_NL{gam}")
        a(f"s_add_u32 s35, s32, {gam * 5120}")
        a("s_add_u32 s33, s35, 4096")
        for k in range(5):
            ks = 5 * gam + k
            so, off = (35, k * 1024) if k < 4 else (33, 0)
            a(f"buffer_load_dwordx4 {vr(OF + 4 * ks, 4)}, v5, s[{SWS}:{SWS + 3}], s{so} offen offset:{off} sc1")
        a.label(f"P3_NL{gam}")
    for gam in range(4):
        a(f"s_bitcmp0_b32 s47, {gam}")
        a(f"s_cbranch_scc1 P3_NM{gam}")
        if gam >= 2:
            for r in range(10):
                a(f"v_add_u32 v{WBASE + r}, 51200, v{WBASE + r}")
        for r in wreads(5 * gam, 0):
            a(r)
        a("s_waitcnt vmcnt(0)")
        for k in range(5):
            ks = 5 * gam + k
            st = k % 2
            if k < 4:
                for r in wreads(ks + 1, 1 - st):
                    a(r)
                a("s_waitcnt lgkmcnt(10)")
            else:
                a("s_waitcnt lgkmcnt(0)")
            for j in range(5):
                d = ACC3 + 4 * j
                a(f"v_mfma_f32_16x16x32_bf16 {vr(d, 4)}, {vr(WF[st] + 4 * j, 4)}, {vr(OF + 4 * ks, 4)}, {vr(d, 4)}")
        if gam >= 2:
            for r in range(10):
                a(f"v_subrev_u32 v{WBASE + r}, 51200, v{WBASE + r}")
        a.label(f"P3_NM{gam}")
    a("s_or_b32 s44, s44, s47")
    a("s_cmp_lg_u32 s44, 15")
    a("s_cbranch_scc1 P3_WAIT")
    for j in range(5):
        a(f"ds_read_b64 {vr(32 + 2 * j, 2)}, v31 offset:{32 * j}")
        a(f"ds_read_b64_tr_b16 {vr(44 + 2 * j, 2)}, v30 offset:{2048 * j}")
    a("v_sub_f32 v17, 1.0, v6")
    a("s_mov_b32 s42, 0xffff0000")
    a("s_waitcnt lgkmcnt(0)")
    for j in range(5):
        d = ACC3 + 4 * j
        for r in range(4):
            xs = 32 + 2 * j + r // 2
            zs = 44 + 2 * j + r // 2
            if r % 2 == 0:
                a(f"v_lshlrev_b32 v18, 16, v{xs}")
                a(f"v_lshlrev_b32 v19, 16, v{zs}")
            else:
                a(f"v_and_b32 v18, s42, v{xs}")
                a(f"v_and_b32 v19, s42, v{zs}")
            a("v_mul_f32 v18, v18, v19")
            a("v_mul_f32 v18, v18, v17")
            a(f"v_fma_f32 v{d + r}, v{d + r}, v6, v18")
        a(f"v_cvt_pk_bf16_f32 v{56 + 2 * j}, v{d}, v{d + 1}")
        a(f"v_cvt_pk_bf16_f32 v{57 + 2 * j}, v{d + 2}, v{d + 3}")
        a(f"ds_write_b64 v31, {vr(56 + 2 * j, 2)} offset:{32 * j}")
    a("v_add_u32 v18, s41, v5")
    a("s_waitcnt lgkmcnt(0)")
    for i in range(3):
        a(f"ds_read_b128 {vr(68 + 4 * i, 4)}, v18 offset:{1024 * i}")
    a("s_waitcnt lgkmcnt(0)")
    for i in range(2):
        a(f"buffer_store_dwordx4 {vr(68 + 4 * i, 4)}, v{152 + i}, s[{SO}:{SO + 3}], s40 offen{OUTPOL}")
    a("s_mov_b32 exec_hi, 0")
    a(f"buffer_store_dwordx4 {vr(76, 4)}, v154, s[{SO}:{SO + 3}], s40 offen{OUTPOL}")
    if DIAG:
        a("s_waitcnt vmcnt(0)")
    stamp(a, 7)
    stamp_flush(a)
    a("s_endpgm")
    a.label("P2_DONE_HI")
    a("s_waitcnt vmcnt(0)")
    write_flag(a, WS_F2, 28, 4)
    stamp(a, 6)
    stamp_flush(a)
    a("s_endpgm")

    a.label("P2_HELP")
    SX, SG, SWO = 16, 28, 36
    if os.environ.get("HPRIO", "3") != "0":
        a("s_setprio " + os.environ.get("HPRIO", "3"))
    srd(a, SX, 4, XBYTES)
    srd(a, SG, 74, 1280)
    srd(a, SWO, 60, WO_BYTES)
    a("s_sub_u32 s34, s26, 8")
    a("v_lshlrev_b32 v4, 4, v1")
    a("s_lshl_b32 s10, s2, 3")
    a("s_lshl_b32 s11, s34, 1")
    a("s_add_u32 s35, s10, s11")
    a("s_mul_i32 s10, s35, 1280")
    a("s_add_u32 s11, s10, 1280")
    a("v_add_u32 v5, 1024, v4")
    a("v_cmp_gt_u32 vcc, 16, v1")
    a(f"v_mov_b32 v6, 0x{OOB:x}")
    a("s_nop 0")
    a("v_cndmask_b32 v5, v6, v5, vcc")
    G = 64
    a("v_mov_b32 v9, v5")
    a("s_mov_b32 s46, s10")
    a("s_mov_b32 s47, s11")
    a("s_lshr_b32 s10, s24, 3")
    a("v_and_b32 v5, 15, v1")
    a("v_bfe_u32 v6, v1, 4, 1")
    a("v_lshlrev_b32 v6, 6, v6")
    a("v_add3_u32 v5, v5, v6, 64")
    a("v_and_b32 v6, 1, v1")
    a("s_lshl_b32 s11, s25, 1")
    a("v_add_u32 v6, s11, v6")
    a("v_cmp_gt_u32 vcc, 32, v1")
    a("s_lshl_b32 s10, s10, 4")
    a("s_nop 0")
    a("v_cndmask_b32 v5, v6, v5, vcc")
    a("v_add_u32 v5, s10, v5")
    a("v_lshlrev_b32 v5, 6, v5")
    a(f"v_add_u32 v5, 0x{WS_F1:x}, v5")
    a("v_and_b32 v11, 3, v1")
    a("v_min_u32 v11, 2, v11")
    a("v_lshlrev_b32 v11, 6, v11")
    a("v_bfe_u32 v12, v1, 2, 1")
    a("v_add3_u32 v11, v11, v12, s10")
    a("v_add_u32 v11, s11, v11")
    a("v_lshlrev_b32 v11, 6, v11")
    a(f"v_add_u32 v13, 0x{WS_F1:x}, v11")
    VD = 10
    a("s_mul_i32 s40, s34, 6144")
    a(f"v_add_u32 v{VD}, s40, v4")
    a("s_mov_b32 s41, s25")
    a("s_mov_b32 s42, 0")

    def kv_dma():
        a("s_mul_i32 s43, s41, 24576")
        a("s_add_u32 s43, s43, s27")
        a("s_add_u32 m0, s42, s40")
        a("s_add_u32 s41, s41, 1")
        for i in range(4):
            o = f" offset:{1024 * i}" if i else ""
            a(f"buffer_load_dwordx4 v{VD}, s[{SWS}:{SWS + 3}], s43 offen{o} sc1 lds")
        a("s_add_u32 m0, m0, 4096")
        a("s_add_u32 s43, s43, 4096")
        a("s_and_b32 s41, s41, 7")
        for i in range(2):
            o = f" offset:{1024 * i}" if i else ""
            a(f"buffer_load_dwordx4 v{VD}, s[{SWS}:{SWS + 3}], s43 offen{o} sc1 lds")
        a(f"s_add_u32 s42, s42, {SLOT}")
        a(f"s_cmp_ge_u32 s42, {3 * SLOT}")
        a("s_cselect_b32 s42, 0, s42")

    VP = 24
    a("s_mul_i32 s3, s25, 160")
    a("s_movk_i32 s10, 1280")
    for i in range(5):
        a(f"v_add_u32 v7, {64 * i}, v1")
        a("v_mul_u32_u24 v8, 0xcccd, v7")
        a("v_lshrrev_b32 v8, 19, v8")
        a("v_mul_u32_u24 v11, 10, v8")
        a("v_sub_u32 v7, v7, v11")
        a("v_mul_lo_u32 v8, v8, s10")
        a("v_lshl_add_u32 v7, v7, 4, v8")
        a(f"v_add_u32 v{VP + i}, s3, v7")
    a("s_lshl_b32 s44, s24, 11")
    a("s_lshl_b32 s11, s25, 8")
    a("s_add_u32 s44, s44, s11")
    a("s_mul_i32 s44, s44, 48")
    a("s_mul_i32 s45, s34, 3072")
    a("s_add_u32 s44, s44, s45")
    a(f"v_mov_b32 v6, {RES + 16}")
    lds_wait(a, 6, 7, 4, 10, 11)
    shared_poll(a, 8, [13], 20, 72, 6)
    stamp(a, 4)
    a(f"s_add_u32 m0, s45, {QST}")
    a("s_nop 0")
    for i in range(3):
        o = f" offset:{1024 * i}" if i else ""
        a(f"buffer_load_dwordx4 v4, s[{SWS}:{SWS + 3}], s44 offen{o} sc1 lds")
    kv_dma()
    a(f"buffer_load_dwordx4 {vr(G, 4)}, v4, s[{SG}:{SG + 3}], 0 offen")
    a(f"buffer_load_dwordx4 {vr(G + 4, 4)}, v9, s[{SG}:{SG + 3}], 0 offen")
    a(f"buffer_load_dwordx4 {vr(G + 8, 4)}, v4, s[{SX}:{SX + 3}], s46 offen")
    a(f"buffer_load_dwordx4 {vr(G + 12, 4)}, v9, s[{SX}:{SX + 3}], s46 offen")
    a(f"buffer_load_dwordx4 {vr(G + 16, 4)}, v4, s[{SX}:{SX + 3}], s47 offen")
    a(f"buffer_load_dwordx4 {vr(G + 20, 4)}, v9, s[{SX}:{SX + 3}], s47 offen")
    a("s_waitcnt vmcnt(6)")
    a("s_barrier")
    shared_poll(a, 8, [5], 20, 76, 6)
    kv_dma()
    a("v_mov_b32 v20, 0")
    a("v_mov_b32 v21, 0")
    a("s_waitcnt vmcnt(6)")
    for r in range(8):
        a(f"v_dot2_f32_bf16 v20, v{G + 8 + r}, v{G + r}, v20")
        a(f"v_dot2_f32_bf16 v21, v{G + 16 + r}, v{G + r}, v21")
    a("s_nop 3")
    for sh in (1, 2, 4, 8):
        a(f"v_add_f32_dpp v20, v20, v20 row_shr:{sh} row_mask:0xf bank_mask:0xf bound_ctrl:0")
        a(f"v_add_f32_dpp v21, v21, v21 row_shr:{sh} row_mask:0xf bank_mask:0xf bound_ctrl:0")
        a("s_nop 1")
    a("s_nop 1")
    a("v_readlane_b32 s10, v20, 15")
    a("v_readlane_b32 s11, v20, 31")
    a("v_readlane_b32 s49, v20, 47")
    a("v_readlane_b32 s50, v20, 63")
    a("v_readlane_b32 s51, v21, 15")
    a("v_readlane_b32 s52, v21, 31")
    a("v_readlane_b32 s53, v21, 47")
    a("v_readlane_b32 s54, v21, 63")
    a("s_nop 3")
    a("v_mov_b32 v22, s10")
    a("v_mov_b32 v23, s51")
    a("v_add_f32 v22, s11, v22")
    a("v_add_f32 v23, s52, v23")
    a("v_add_f32 v22, s49, v22")
    a("v_add_f32 v23, s53, v23")
    a("v_add_f32 v22, s50, v22")
    a("v_add_f32 v23, s54, v23")
    a("v_cmp_eq_u32 vcc, 1, v1")
    a("s_nop 1")
    a("v_cndmask_b32 v22, v22, v23, vcc")
    a(f"v_mul_f32 v22, {f32hex(-math.log2(math.e))}, v22")
    a("v_exp_f32 v22, v22")
    a("s_nop 0")
    a("v_add_f32 v22, 1.0, v22")
    a("v_rcp_f32 v22, v22")
    a("s_lshl_b32 s10, s35, 2")
    a(f"s_add_u32 s10, s10, 0x{WS_G:x}")
    a("v_lshlrev_b32 v23, 2, v1")
    a("s_mov_b64 exec, 3")
    a(f"buffer_store_dword v22, v23, s[{SWS}:{SWS + 3}], s10 offen sc1")
    a("s_mov_b64 exec, -1")
    a("s_waitcnt vmcnt(0)")
    a("s_barrier")
    a("s_cmp_lg_u32 s26, 8")
    a("s_cbranch_scc1 P2H_NOF3")
    write_flag(a, WS_F3, 2, 12)
    a.label("P2H_NOF3")

    def wo_rep(srep):
        a(f"s_mul_i32 s10, s{srep}, 40960")
        a(f"s_mul_i32 s11, s{srep}, 5120")
        a(f"s_add_u32 s11, s11, {L_WO}")
        for i in range(5):
            a(f"s_add_u32 m0, s11, {1024 * i}")
            a("s_nop 0")
            a(f"buffer_load_dwordx4 v{VP + i}, s[{SWO}:{SWO + 3}], s10 offen lds")

    a("s_add_u32 s44, s34, 4")
    a.label("P2H_WO")
    kv_dma()
    wo_rep(44)
    a("s_waitcnt vmcnt(5)")
    a("s_barrier")
    a("s_add_u32 s44, s44, 4")
    a("s_cmp_lt_u32 s44, 20")
    a("s_cbranch_scc1 P2H_WO")
    stamp(a, 5)
    kv_dma()
    a("v_lshlrev_b32 v5, 6, v1")
    a(f"v_add_u32 v5, 0x{WS_F3:x}, v5")
    a("v_add_u32 v6, 4096, v5")
    a("v_add_u32 v7, 8192, v5")
    a("v_add_u32 v8, 12288, v5")
    a("s_waitcnt vmcnt(0)")
    a("s_barrier")
    kv_dma()
    a("s_cmp_lg_u32 s26, 8")
    a("s_cbranch_scc1 P2H_NOP3")
    poll(a, [5, 6, 7, 8], 12, 10)
    a.label("P2H_NOP3")
    a("s_waitcnt vmcnt(0)")
    a("s_barrier")
    wo_rep(34)
    a("s_lshl_b32 s10, s24, 6")
    a("s_lshl_b32 s11, s34, 4")
    a("s_add_u32 s10, s10, s11")
    a("s_mul_i32 s10, s10, 1280")
    a("s_mul_i32 s11, s34, 2560")
    a(f"s_add_u32 s11, s11, {L_X}")
    for i in range(3):
        a(f"s_add_u32 m0, s11, {1024 * i}")
        if i == 2:
            a("s_mov_b32 exec_hi, 0")
        else:
            a("s_nop 0")
        a(f"buffer_load_dwordx4 v{VP + i}, s[{SX}:{SX + 3}], s10 offen lds")
    a("s_mov_b64 exec, -1")
    a("v_lshrrev_b32 v7, 3, v1")
    a("v_lshlrev_b32 v7, 12, v7")
    a("v_and_b32 v8, 7, v1")
    a("v_lshl_add_u32 v7, v8, 4, v7")
    a("s_mul_i32 s10, s25, 80")
    a("s_lshl_b32 s10, s10, 12")
    a("s_lshl_b32 s11, s24, 7")
    a("s_add_u32 s10, s10, s11")
    a(f"s_add_u32 s10, s10, 0x{WS_Z:x}")
    a("s_lshl_b32 s11, s34, 15")
    a("s_add_u32 s10, s10, s11")
    a("s_lshl_b32 s11, s34, 10")
    a(f"s_add_u32 s11, s11, {L_Z}")
    a("s_barrier")
    for k in range(3):
        if k == 2:
            a("s_cmp_lt_u32 s34, 2")
            a("s_cselect_b32 s44, 2, 1")
            a("s_lshl_b32 s43, s44, 17")
            a("s_lshl_b32 s44, s44, 12")
            a("s_add_u32 s43, s43, s10")
            a("s_add_u32 m0, s11, s44")
        else:
            a(f"s_add_u32 s43, s10, {k * 131072}")
            a(f"s_add_u32 m0, s11, {k * 4096}")
        a("s_nop 0")
        a(f"buffer_load_dwordx4 v7, s[{SWS}:{SWS + 3}], s43 offen sc1 lds")
    a(f"v_mov_b32 v5, {RES + 64}")
    a("v_mov_b32 v6, 1")
    a("s_waitcnt vmcnt(0)")
    a("s_mov_b64 exec, 1")
    a("ds_add_u32 v5, v6")
    a("s_mov_b64 exec, -1")
    a("s_cmp_lg_u32 s26, 8")
    a("s_cbranch_scc1 P2H_FIN")
    a("s_lshr_b32 s10, s24, 2")
    a("s_lshl_b32 s10, s10, 3")
    a("s_and_b32 s11, s24, 3")
    a("s_lshl_b32 s11, s11, 1")
    a("s_add_u32 s10, s10, s11")
    a("v_lshlrev_b32 v7, 6, v2")
    a("v_add3_u32 v7, v7, v3, s10")
    a("v_lshlrev_b32 v7, 6, v7")
    a(f"v_add_u32 v7, 0x{WS_F2:x}, v7")
    a(f"v_mov_b32 v8, {RES + 88}")
    a("s_mov_b32 s10, 0")
    a("s_mov_b64 s[20:21], 0")
    a.label("P2H_OP")
    if os.environ.get("OPM", "1") == "1":
        a("s_not_b64 exec, s[20:21]")
    a(f"buffer_load_dwordx2 v[12:13], v7, s[{SWS}:{SWS + 3}], 0 offen sc0 sc1")
    a("s_waitcnt vmcnt(0)")
    a("v_cmp_eq_u64 vcc, s[56:57], v[12:13]")
    a("s_mov_b64 exec, -1")
    a("s_or_b64 s[20:21], s[20:21], vcc")
    a("s_add_u32 s10, s10, 1")
    a("v_mov_b32 v14, s20")
    a("v_mov_b32 v15, s21")
    a("ds_write_b64 v8, v[14:15]")
    a(f"s_cmp_gt_u32 s10, {POLL_LIMIT}")
    a("s_cbranch_scc1 P2H_FIN")
    a("s_cmp_lg_u64 s[20:21], -1")
    a("s_cbranch_scc1 P2H_OP")
    a.label("P2H_FIN")
    a("s_waitcnt lgkmcnt(0)")
    stamp(a, 6)
    stamp_flush(a)
    a.label("L_END")
    a("s_endpgm")


def main():
    hdr = open("cdna_kernels/" + NAME + ".s.ref").read().split("\n")
    head = [l for l in hdr if l.startswith(";") and "@launch" not in l and "Override" not in l and "grid=ceil" not in l]
    a = Asm()
    gen(a)
    out = "\n".join(head) + "\n"
    if os.environ.get("ASLIST", "0") == "1":
        out += f"; @launch kernel={KNAME} grid=(256,1,1) block=(768,1,1) lds={LDS_TOTAL}\n"
    else:
        out += f"; @launch grid=(256,1,1) block=(768,1,1) lds={LDS_TOTAL}\n"
    out += """; Design (generated by gen/gen7.py, hand-designed): one persistent kernel, 256 workgroups x 12 waves, 1 per CU.
"""
    out += '.amdgcn_target "amdgcn-amd-amdhsa--gfx950"\n.text\n'
    out += a.text()
    out += '.section .rodata,"a"\n.p2align 6\n'
    out += f""".amdhsa_kernel {KNAME}
  .amdhsa_next_free_vgpr 168
  .amdhsa_next_free_sgpr 102
  .amdhsa_accum_offset 168
  .amdhsa_group_segment_fixed_size 0
  .amdhsa_kernarg_size 104
  .amdhsa_user_sgpr_count 2
  .amdhsa_user_sgpr_kernarg_segment_ptr 1
  .amdhsa_system_sgpr_workgroup_id_x 1
.end_amdhsa_kernel
"""
    path = sys.argv[1] if len(sys.argv) > 1 else "cdna_kernels/" + NAME + ".s"
    open(path, "w").write(out)
    print("wrote", path, len(out), "bytes")


if __name__ == "__main__":
    main()
```
